```python
import torch

def _softmax(x, axis=-1):
    return torch.softmax(x, dim=axis)

def _gelu(x):
    return torch.nn.functional.gelu(x, approximate='tanh')

def _silu(x):
    return torch.nn.functional.silu(x)

def _sigmoid(x):
    return torch.sigmoid(x)

def _layernorm(x, axis=-1, eps=1e-05):
    m = x.mean(dim=axis, keepdim=True)
    v = x.var(dim=axis, keepdim=True, unbiased=False)
    return (x - m) / torch.sqrt(v + eps)

def _scatter_add(tgt, idx, src, axis=0):
    return tgt.clone().index_add_(axis, idx, src)

def _segment_sum(src, seg, n):
    out = torch.zeros((n,) + src.shape[1:], dtype=src.dtype)
    return out.index_add_(0, seg, src)

def _pad(x, pw):
    flat = tuple((v for pair in reversed(pw) for v in pair))
    return torch.nn.functional.pad(x, flat)
kernel_name = 'sequential_preLN__memory_aug_recurrent_mem_tr__swiglu_ffn__prompt'

def setup_inputs():

    _w = lambda a: (lambda t: t.to(torch.bfloat16) if t.is_floating_point() else t)(torch.as_tensor(a))

    def _A_setup():
        B, S, Dm = (1, 2048, 1024)
        H, Dh = (32, 128)
        M, seg = (8, 32)
        seg = min(seg, S)
        S = S // seg * seg
        return {'x': _w((lambda *s: torch.randn(*s, dtype=torch.bfloat16) * 0.05)(B, S, Dm)), 'mem0': _w((lambda *s: torch.randn(*s, dtype=torch.bfloat16) * 0.2)(B, M, Dm)), 'Wq': _w((lambda *s: torch.randn(*s, dtype=torch.bfloat16) * 1.6)(Dm, H, Dh) * Dm ** (-0.5)), 'Wk': _w((lambda *s: torch.randn(*s, dtype=torch.bfloat16) * 1.6)(Dm, H, Dh) * Dm ** (-0.5)), 'Wv': _w((lambda *s: torch.randn(*s, dtype=torch.bfloat16) * 0.2)(Dm, H, Dh) * Dm ** (-0.5)), 'Wo': _w((lambda *s: torch.randn(*s, dtype=torch.bfloat16) * 0.2)(H, Dh, Dm) * (H * Dh) ** (-0.5)), 'seg_len': seg}
    _A_in = _A_setup()

    def _B_setup():
        B, S, D, F = (1, 2048, 1024, 3584)
        return {'x': _w((lambda *s: torch.randn(*s, dtype=torch.bfloat16) * 0.05)(B, S, D)), 'w_gate': _w((lambda *s: torch.randn(*s, dtype=torch.bfloat16) * 0.05)(D, F)), 'w_up': _w((lambda *s: torch.randn(*s, dtype=torch.bfloat16) * 0.05)(D, F)), 'w_down': _w((lambda *s: torch.randn(*s, dtype=torch.bfloat16) * 0.05)(F, D))}
    _B_in = _B_setup()
    return {'A_x': _A_in['x'], 'A_mem0': _A_in['mem0'], 'A_Wq': _A_in['Wq'], 'A_Wk': _A_in['Wk'], 'A_Wv': _A_in['Wv'], 'A_Wo': _A_in['Wo'], 'A_seg_len': _A_in['seg_len'], 'B_x': _B_in['x'], 'B_w_gate': _B_in['w_gate'], 'B_w_up': _B_in['w_up'], 'B_w_down': _B_in['w_down']}

def reference(A_x, A_mem0, A_Wq, A_Wk, A_Wv, A_Wo, A_seg_len, B_x, B_w_gate, B_w_up, B_w_down):

    def _A_ref(x, mem0, Wq, Wk, Wv, Wo, seg_len):
        B, S, Dm = x.shape
        H, Dh = (Wq.shape[1], Wq.shape[2])
        M = mem0.shape[1]
        scale = Dh ** (-0.5)
        n_seg = S // seg_len
        L = M + seg_len
        idx = torch.arange(L)
        mask = (idx[:, None] < M) | (idx[:, None] >= idx[None, :])
        mem = mem0
        outs = []
        for s in range(n_seg):
            xs = x[:, s * seg_len:(s + 1) * seg_len, :].clone()
            h = torch.concatenate([mem, xs], axis=1)
            q = torch.einsum('btd,dhe->bhte', h, Wq)
            k = torch.einsum('btd,dhe->bhte', h, Wk)
            v = torch.einsum('btd,dhe->bhte', h, Wv)
            scores = torch.einsum('bhqe,bhke->bhqk', q, k) * scale
            scores = torch.where(mask[None, None], scores, -1000000000.0)
            p = _softmax(scores, axis=-1)
            o = torch.einsum('bhqk,bhke->bhqe', p, v)
            o = torch.einsum('bhte,hed->btd', o, Wo)
            mem = o[:, :M, :].clone()
            outs.append(o[:, M:, :])
        return torch.concatenate(outs, axis=1)

    def _B_ref(x, w_gate, w_up, w_down):
        g = _silu(x @ w_gate)
        u = x @ w_up
        return g * u @ w_down
    x = A_x
    h = x + _A_ref(_layernorm(x, axis=-1), A_mem0, A_Wq, A_Wk, A_Wv, A_Wo, A_seg_len)
    h2 = h + _B_ref(_layernorm(h, axis=-1), B_w_gate, B_w_up, B_w_down)
    return h2
```

```python
class Asm:
    def __init__(self):
        self.lines = []
        self.uid = 0
    def __call__(self, s):
        for l in s.split("\n"):
            l = l.strip()
            if not l: continue
            if l.endswith(":") or l.startswith(".") or l.startswith(";"):
                self.lines.append(l)
            else:
                self.lines.append("    " + l)
    def label(self, base="L"):
        self.uid += 1
        return "%s_%d" % (base, self.uid)
    def text(self):
        return "\n".join(self.lines) + "\n"

def kernel_begin(a, name):
    a(".text\n.globl %s\n.p2align 8\n.type %s,@function\n%s:" % (name, name, name))

def kernel_desc(a, name, vgpr, sgpr, accum, kernarg=112, extra=""):
    a('.section .rodata,"a"\n.p2align 6\n.amdhsa_kernel %s' % name)
    a(".amdhsa_next_free_vgpr %d\n.amdhsa_next_free_sgpr %d\n.amdhsa_accum_offset %d" % (vgpr, sgpr, accum))
    a(".amdhsa_group_segment_fixed_size 0\n.amdhsa_kernarg_size %d" % kernarg)
    a(".amdhsa_user_sgpr_count 2\n.amdhsa_user_sgpr_kernarg_segment_ptr 1\n.amdhsa_system_sgpr_workgroup_id_x 1")
    if extra: a(extra)
    a(".end_amdhsa_kernel")
```

```python
import sys
from asmlib import *
from layout import *

L_WO = 0; L_PL = 98304; L_PR = 114688; L_KX = 131072; L_VX = 139264; L_F = 147456; L_O = 151552; L_VM = 153600
L_DUM = 157696; L_MISC = 158720
LDS_BYTES = 163840
OOB = 0x80000000
SPIN = 100000

def nop(a, n):
    while n > 0:
        k = min(n, 16); a("s_nop %d" % (k - 1)); n -= k

def srd(a, d, lo, hi, nbytes):
    a("s_mov_b32 s%d, s%d\ns_mov_b32 s%d, s%d\ns_mov_b32 s%d, 0x%x\ns_mov_b32 s%d, 0x00020000" % (d, lo, d + 1, hi, d + 2, nbytes, d + 3))

S_WS = 8; S_W = 12; S_DBG = 16
s_xcc, s_w, s_i, s_x, s_h, s_b, s_step, s_spin = 20, 21, 22, 23, 24, 25, 26, 27
s_sent, s_scale = 28, 29
s_t0, s_t1, s_t2, s_t3 = 4, 5, 6, 7
o_qk_own, o_qk_par, o_vx_own, o_vx_par = 30, 31, 32, 33
o_i3st = 34
o_i3ld, o_pl, o_pr, o_plf, o_prf = 38, 39, 40, 41, 42
m_pl, m_kv = 43, 44
o_kv, o_km, o_kmn = 45, 46, 47
CUR, NXT, P2 = "s[12:15]", "s[48:51]", "s[52:55]"
WS = "s[8:11]"
MK = "s[4:5]"
v_af, v_lane, v_l16, v_l8, v_idx, v_cinit, v_pst, v_i3st, v_i3l0, v_i3l1, v_fown, v_fpar, v_owr, v_flag, v_word, v_ahi = range(0, 16)
v_avx = 1
v_sent = 16; v_ord = 18; v_kmr = 19; v_ones = 20; v_sel = 24
v_aq, v_ak, v_av = 28, 32, 36
V_WO = 96; V_WV = 128
HI = 98304

def r4(v): return "v[%d:%d]" % (v, v + 3)
def r2(v): return "v[%d:%d]" % (v, v + 1)
def r8(v): return "v[%d:%d]" % (v, v + 7)

def wtile(m, f):
    if m == 0: return "a[%d:%d]" % (8 * f, 8 * f + 7)
    if m == 1: return "a[%d:%d]" % (128 + 8 * f, 128 + 8 * f + 7)
    return "v[%d:%d]" % (V_WV + 8 * f, V_WV + 8 * f + 7)

class LQ:
    def __init__(self, a): self.a = a; self.q = []
    def op(self, ins, tag=None): self.a(ins); self.q.append(tag)
    def need(self, tag):
        if tag not in self.q: return
        k = len(self.q) - 1 - self.q[::-1].index(tag)
        self.a("s_waitcnt lgkmcnt(%d)" % (len(self.q) - 1 - k)); self.q = self.q[k + 1:]
    def all(self):
        self.a("s_waitcnt lgkmcnt(0)"); self.q = []

def emit_chain(a, stamps=False, nsteps=64, pq=(5, 9, 12, 15), rdelay=0, nokv=0, nokm=0, tw=0, xd0=0, xd1=24, fdelay=0, forcec=None, focus=None, rgap=0, vpos=0, align=0):
    A = a
    def stamp(k):
        if focus:
            k = focus.get(k)
            if k is None: return
        elif not isinstance(k, int): return
        if stamps > 1: A("s_memtime s[%d:%d]" % (60 + 2 * k, 61 + 2 * k))
    def cnt(k):
        if stamps: A("s_add_u32 s%d, s%d, 1" % (96 + k, 96 + k))
    A("s_lshr_b32 s%d, s%d, 1\ns_lshl_b32 s%d, s%d, 4\ns_add_u32 s%d, s%d, s%d\ns_and_b32 s%d, s%d, 1" % (s_h, s_i, s_t0, s_x, s_h, s_h, s_t0, s_b, s_i))
    A("s_mov_b32 s%d, 0x%x" % (s_sent, SENT))
    import struct, math
    sc = struct.unpack("<I", struct.pack("<f", 128 ** -0.5 * math.log2(math.e)))[0]
    A("s_mov_b32 s%d, 0x%x" % (s_scale, sc))
    T = 40
    A("v_lshlrev_b32 v%d, 4, v%d\nv_lshlrev_b32 v%d, 3, v%d" % (v_l16, v_lane, v_l8, v_lane))
    A("v_and_b32 v%d, 15, v%d" % (T, v_lane))
    A("v_lshrrev_b32 v%d, 4, v%d" % (T + 1, v_lane))
    A("v_and_b32 v%d, 7, v%d" % (T + 2, v_lane))
    A("v_cmp_gt_u32 vcc, 8, v%d" % T)
    A("v_mov_b32 v%d, 0xeeee\nv_mov_b32 v%d, 0x4444" % (T + 3, T + 4))
    A("v_cndmask_b32 v%d, v%d, v%d, vcc" % (v_idx, T + 3, T + 4))
    A("v_lshl_add_u32 v%d, v%d, 3, v%d\nv_lshlrev_b32 v%d, 4, v%d" % (T + 5, T + 1, T + 2, T + 5, T + 5))
    A("s_lshl_b32 s%d, s%d, 9\ns_cmp_eq_u32 s%d, 0\ns_cselect_b32 s%d, s%d, 0x%x" % (s_t0, s_i, s_w, s_t0, s_t0, OOB))
    A("v_and_b32 v%d, 8, v%d\nv_add3_u32 v%d, s%d, v%d, v%d" % (T + 6, v_lane, v_pst, s_t0, T + 5, T + 6))
    A("s_lshl_b32 s%d, s%d, 9\ns_add_u32 s%d, s%d, %d" % (s_t0, s_w, s_t0, s_t0, L_O))
    A("v_add_u32 v%d, s%d, v%d\nv_add_u32 v%d, %d, v%d" % (T + 6, s_t0, T + 5, T + 7, L_DUM, v_l16))
    A("v_cndmask_b32 v%d, v%d, v%d, vcc" % (v_owr, T + 7, T + 6))
    A("v_cmp_gt_u32 vcc, 2, v%d\nv_mov_b32 v%d, 0\nv_mov_b32 v%d, 0xff000000" % (T + 1, T + 3, T + 4))
    A("v_cndmask_b32 v%d, v%d, v%d, vcc" % (v_cinit, T + 3, T + 4))
    A("v_lshrrev_b32 v%d, 1, v%d\nv_lshl_add_u32 v%d, v%d, 4, v%d\nv_lshlrev_b32 v%d, 4, v%d" % (T + 3, T + 1, T + 3, T + 3, T, T + 3, T + 3))
    A("v_and_b32 v%d, 1, v%d\nv_lshl_add_u32 v%d, v%d, 3, v%d" % (T + 4, T + 1, v_i3st, T + 4, T + 3))
    A("v_lshl_add_u32 v%d, v%d, 9, v%d\nv_add_u32 v%d, 4096, v%d" % (v_i3l0, T + 4, T + 3, v_i3l1, v_i3l0))
    A("v_lshlrev_b32 v%d, 5, v%d\nv_lshl_add_u32 v%d, v%d, 3, v%d" % (T + 3, T, T + 3, T + 1, T + 3))
    A("s_lshl_b32 s%d, s%d, 2\ns_add_u32 s%d, s%d, s%d\ns_lshl_b32 s%d, s%d, 9\ns_add_u32 s%d, s%d, %d" % (s_t0, s_b, s_t0, s_t0, s_w, s_t0, s_t0, s_t0, s_t0, L_F))
    A("v_add_u32 v%d, s%d, v%d\nv_xor_b32 v%d, 2048, v%d" % (v_fown, s_t0, T + 3, v_fpar, v_fown))
    assert L_F % 4096 == 0
    A("s_lshl_b32 s%d, s%d, 12\ns_add_u32 s%d, s%d, %d\nv_add_u32 v%d, s%d, v%d" % (s_t0, s_w, s_t0, s_t0, L_PL, v_flag, s_t0, v_l16))
    A("v_lshl_add_u32 v%d, v%d, 3, v%d\nv_lshlrev_b32 v%d, 4, v%d\nv_add_u32 v%d, %d, v%d" % (v_ord, T + 1, T + 2, v_ord, v_ord, v_ord, L_O, v_ord))
    A("s_mul_i32 s%d, s%d, 24576\nv_add_u32 v%d, s%d, v%d" % (s_t0, s_w, v_word, s_t0, v_l16))
    A("v_add_u32 v%d, %d, v%d\nv_add_u32 v%d, %d, v%d" % (v_ahi, HI, v_l16, v_af, L_F, v_l8))
    for k in range(2): A("v_mov_b32 v%d, s%d" % (v_sent + k, s_sent))
    A("v_and_b32 v%d, 0xffffe00, v%d\nv_add_u32 v%d, v%d, v%d" % (v_kmr, v_fown, v_kmr, v_kmr, v_l8))
    A("v_mov_b32 v%d, 0x3f80\nv_mov_b32 v%d, 0x3f800000\nv_mov_b32 v%d, 0" % (T + 3, T + 4, T + 5))
    for q in range(4):
        A("v_cmp_eq_u32 vcc, %d, v%d\ns_nop 1\nv_cndmask_b32 v%d, v%d, v%d, vcc" % (2 * q, T + 2, v_sel + q, T + 5, T + 3))
        A("v_cmp_eq_u32 vcc, %d, v%d\ns_nop 1\nv_cndmask_b32 v%d, v%d, v%d, vcc" % (2 * q + 1, T + 2, v_sel + q, v_sel + q, T + 4))
    A("v_lshrrev_b32 v%d, 5, v%d\nv_bfe_u32 v%d, v%d, 3, 1\nv_cmp_eq_u32 vcc, v%d, v%d\ns_nop 1" % (T + 6, v_lane, T + 7, v_lane, T + 6, T + 7))
    for q in range(4): A("v_cndmask_b32 v%d, v%d, v%d, vcc" % (v_sel + q, T + 5, v_sel + q))
    A("s_lshl_b32 s%d, s%d, 5\ns_add_u32 s%d, s%d, s%d" % (s_t0, s_x, s_t0, s_t0, s_i))
    A("s_lshl_b32 s%d, s%d, 2\ns_add_u32 s%d, s%d, s%d\ns_lshl_b32 s%d, s%d, 9" % (s_t1, s_t0, s_t1, s_t1, s_w, s_t1, s_t1))
    A("s_add_u32 s%d, s%d, %d\ns_xor_b32 s%d, s%d, 2048" % (o_qk_own, s_t1, R_QK, o_qk_par, o_qk_own))
    A("s_add_u32 s%d, s%d, %d\ns_xor_b32 s%d, s%d, 2048" % (o_vx_own, s_t1, R_VX, o_vx_par, o_vx_own))
    A("s_lshl_b32 s%d, s%d, 2\ns_add_u32 s%d, s%d, s%d\ns_lshl_b32 s%d, s%d, 6" % (s_t1, s_b, s_t1, s_t1, s_w, s_t1, s_t1))
    A("s_lshr_b32 s%d, s%d, 1\ns_add_u32 s%d, s%d, s%d\ns_lshl_b32 s%d, s%d, 9" % (s_t2, s_i, s_t1, s_t1, s_t2, s_t1, s_t1))
    A("s_lshl_b32 s%d, s%d, 18\ns_add_u32 s%d, s%d, %d" % (s_t2, s_x, s_t2, s_t2, R_I3))
    A("s_add_u32 s%d, s%d, s%d" % (o_i3st, s_t1, s_t2))
    for u in range(1, 4): A("s_add_u32 s%d, s%d, %d" % (o_i3st + u, o_i3st, u * 8192))
    A("s_lshl_b32 s%d, s%d, 13\ns_add_u32 s%d, s%d, s%d" % (s_t1, s_i, o_i3ld, s_t1, s_t2))
    A("s_lshr_b32 s%d, s%d, 1\ns_lshl_b32 s%d, s%d, 14\ns_lshl_b32 s%d, s%d, 12\ns_add_u32 s%d, s%d, s%d\ns_add_u32 s101, s%d, %d" % (s_t1, s_t0, s_t1, s_t1, s_t2, s_b, s_t1, s_t1, s_t2, s_t1, PRB))
    A("s_lshl_b32 s%d, s%d, 14\ns_add_u32 s%d, s%d, %d" % (s_t1, s_x, o_pl, s_t1, R_PL))
    A("s_lshl_b32 s%d, s%d, 12\ns_add_u32 s%d, s%d, s%d" % (s_t1, s_w, o_plf, o_pl, s_t1))
    A("s_add_u32 s%d, s%d, %d\ns_add_u32 s%d, s%d, %d" % (m_pl, s_t1, L_PL, m_kv, s_t1, L_KX))
    A("s_lshl_b32 s%d, s%d, 12\ns_lshl_b32 s%d, s%d, 17\ns_add_u32 s%d, s%d, s%d\ns_add_u32 s%d, s%d, %d" % (s_t0, s_h, s_t2, s_w, s_t2, s_t2, s_t0, s_t2, s_t2, KX))
    A("s_lshl_b32 s%d, s%d, 13\ns_add_u32 s%d, s%d, s%d\ns_add_u32 s%d, s%d, %d" % (s_t3, s_h, s_t3, s_t3, s_t1, s_t3, s_t3, VT - 8192))
    A("s_cmp_lt_u32 s%d, 2\ns_cselect_b32 s%d, s%d, s%d" % (s_w, o_kv, s_t2, s_t3))
    A("s_lshl_b32 s%d, s%d, 2\ns_add_u32 s%d, s%d, s%d\ns_lshl_b32 s%d, s%d, 9\ns_add_u32 s%d, s%d, s%d\ns_add_u32 s%d, s%d, %d" % (
        s_t2, s_b, s_t2, s_t2, s_w, s_t2, s_t2, s_t2, s_t2, s_t0, 100, s_t2, KM))
    A("s_mov_b32 s%d, 0x%x\ns_mov_b32 s%d, 0x%x" % (o_km, OOB, o_kmn, OOB))
    def set_slot(srdname, off):
        d = int(srdname[2:srdname.index(":")])
        return ["s_add_u32 s%d, s8, %s" % (d, off), "s_addc_u32 s%d, s9, 0" % (d + 1)]
    def poisons(srd_):
        out = ["buffer_store_dwordx2 %s, v%d, %s, s%d offen" % (r2(v_sent), v_l8, srd_, o_qk_own),
               "buffer_store_dwordx2 %s, v%d, %s, s%d offen" % (r2(v_sent), v_l8, srd_, o_vx_own)]
        out += ["buffer_store_dwordx2 %s, v%d, %s, s%d offen" % (r2(v_sent), v_i3st, srd_, o_i3st + u) for u in range(4)]
        out += ["buffer_store_dwordx2 %s, v%d, %s, s%d offen" % (r2(v_sent), v_pst, srd_, o_pl)]
        return out
    A("s_mov_b32 s14, %d\ns_mov_b32 s15, 0x00020000" % SLOT)
    for sl in range(2):
        for x in set_slot(CUR, RING + sl * SLOT) + poisons(CUR): A(x)
    A("s_lshr_b32 s%d, s%d, 1\ns_lshl_b32 s%d, s%d, 19\ns_and_b32 s%d, s%d, 1\ns_lshl_b32 s%d, s%d, 13\ns_add_u32 s%d, s%d, s%d\ns_add_u32 s%d, s%d, s101" % (
        s_t0, s_w, s_t0, s_t0, s_t1, s_w, s_t1, s_t1, s_t0, s_t0, s_t1, s_t0, s_t0))
    A("buffer_store_dwordx2 %s, v%d, %s, s%d offen sc1" % (r2(v_sent), v_l8, WS, s_t0))
    A("s_waitcnt vmcnt(0)\ns_barrier")
    A("s_cmp_eq_u32 s%d, 0\ns_cselect_b32 s101, s101, 0x%x" % (s_w, OOB))
    A("s_mov_b32 s%d, 1" % o_prf)
    A("s_cmp_lg_u32 s%d, 0\ns_cbranch_scc1 L_c_nocal" % s_w)
    A("s_mov_b32 s52, -1\ns_mov_b32 s53, -1")
    for it in range(2):
        for hf in ((0, 1) if it == 0 else (1, 0)):
            A("s_add_u32 s%d, s101, %d\ns_memtime s[48:49]\ns_waitcnt lgkmcnt(0)" % (s_t0, 3 * 524288 + hf * 8192 + it * 1024))
            A("buffer_store_dword v%d, v%d, %s, s%d offen sc1\ns_waitcnt vmcnt(0)\ns_memtime s[50:51]\ns_waitcnt lgkmcnt(0)" % (v_sent, v_l8, WS, s_t0))
            A("s_sub_u32 s50, s50, s48\ns_min_u32 s%d, s%d, s50" % (52 + hf, 52 + hf))
    A("s_cmp_lt_u32 s53, s52\ns_cselect_b32 s%d, 0x10001, 1" % o_prf)
    if forcec is not None: A("s_mov_b32 s%d, %d" % (o_prf, 1 + (forcec << 16)))
    A("L_c_nocal:\ns_barrier")
    A("s_waitcnt vmcnt(0)")
    A("s_load_dwordx8 s[48:55], s[0:1], 16")
    vq, vo, vrq, vro = T, T + 1, T + 2, T + 3
    A("v_lshrrev_b32 v%d, 3, v%d\nv_lshlrev_b32 v%d, 13, v%d\nv_and_b32 v%d, 7, v%d\nv_lshl_add_u32 v%d, v%d, 4, v%d" % (T + 4, v_lane, T + 4, T + 4, T + 5, v_lane, vq, T + 5, T + 4))
    A("v_bfe_u32 v%d, v%d, 5, 1\nv_lshlrev_b32 v%d, 3, v%d" % (T + 4, v_lane, T + 4, T + 4))
    A("v_bfe_u32 v%d, v%d, 3, 1\nv_lshl_add_u32 v%d, v%d, 2, v%d" % (T + 5, v_lane, T + 4, T + 5, T + 4))
    A("v_bfe_u32 v%d, v%d, 2, 1\nv_add_u32 v%d, v%d, v%d" % (T + 5, v_lane, T + 4, T + 5, T + 4))
    A("v_bfe_u32 v%d, v%d, 4, 1\nv_lshl_add_u32 v%d, v%d, 4, v%d" % (T + 5, v_lane, T + 4, T + 5, T + 4))
    A("v_and_b32 v%d, 3, v%d\nv_lshlrev_b32 v%d, 3, v%d" % (T + 5, v_lane, T + 5, T + 5))
    A("s_lshl_b32 s%d, s%d, 5\nv_add_u32 v%d, s%d, v%d\nv_lshl_add_u32 v%d, v%d, 7, v%d" % (s_t0, s_w, T + 6, s_t0, T + 5, vrq, T + 4, T + 6))
    A("v_bfe_u32 v%d, v%d, 4, 1\nv_xor_b32 v%d, s%d, v%d\nv_lshlrev_b32 v%d, 4, v%d" % (T + 4, v_lane, T + 4, s_b, T + 4, T + 4, T + 4))
    A("v_bfe_u32 v%d, v%d, 5, 1\nv_lshl_add_u32 v%d, v%d, 2, v%d" % (T + 6, v_lane, T + 4, T + 6, T + 4))
    A("v_bfe_u32 v%d, v%d, 2, 1\nv_add_u32 v%d, v%d, v%d" % (T + 6, v_lane, T + 4, T + 6, T + 4))
    A("v_bfe_u32 v%d, v%d, 3, 1\nv_lshl_add_u32 v%d, v%d, 5, v%d" % (T + 6, v_lane, T + 5, T + 6, T + 5))
    A("s_lshl_b32 s%d, s%d, 8\nv_add_u32 v%d, s%d, v%d\nv_lshl_add_u32 v%d, v%d, 10, v%d" % (s_t0, s_w, T + 6, s_t0, T + 5, vro, T + 4, T + 6))
    A("s_waitcnt lgkmcnt(0)")
    chunks = [("o", q) for q in range(4)] + [(0, c) for c in range(4)] + [(1, c) for c in range(4)] + [(2, c) for c in range(4)]
    bufs = [0, 1, 2, 3, 4, 0, 1, 2, 3, 4, 0, 1, 3, 4, 3, 4]
    def issue(ci):
        kind, c = chunks[ci]; buf = bufs[ci]
        p = 54 if kind == "o" else 48 + 2 * kind
        srd(a, S_W, p, p + 1, 8 * MB)
        A("s_lshl_b32 s%d, s%d, 13\ns_add_u32 s%d, s%d, %d" % (s_t2, s_w, s_t2, s_t2, buf * 32768))
        if kind == "o":
            A("s_lshr_b32 s%d, s%d, 1\ns_lshl_b32 s%d, s%d, 6\ns_and_b32 s%d, s%d, 1\ns_lshl_b32 s%d, s%d, 3\ns_add_u32 s%d, s%d, s%d" % (
                s_t0, s_w, s_t0, s_t0, s_t1, s_w, s_t1, s_t1, s_t0, s_t0, s_t1))
            A("s_lshl_b32 s%d, s%d, 7\ns_add_u32 s%d, s%d, s%d\ns_add_u32 s%d, s%d, %d\ns_lshl_b32 s%d, s%d, 11" % (s_t1, s_h, s_t0, s_t0, s_t1, s_t0, s_t0, 16 * c, s_t0, s_t0))
            A("s_lshl_b32 s%d, s%d, 10\ns_add_u32 s%d, s%d, s%d" % (s_t1, s_b, s_t0, s_t0, s_t1))
            va, stride = v_l16, 2048
        else:
            A("s_lshl_b32 s%d, s%d, 6\ns_add_u32 s%d, s%d, %d\ns_lshl_b32 s%d, s%d, 13" % (s_t0, s_w, s_t0, s_t0, 256 * c, s_t0, s_t0))
            A("s_lshl_b32 s%d, s%d, 8\ns_add_u32 s%d, s%d, s%d\ns_lshl_b32 s%d, s%d, 7\ns_add_u32 s%d, s%d, s%d" % (s_t1, s_h, s_t0, s_t0, s_t1, s_t1, s_b, s_t0, s_t0, s_t1))
            va, stride = vq, 8 * 8192
        for j in range(8):
            A("s_add_u32 m0, s%d, %d\ns_nop 0" % (s_t2, j * 1024))
            A("buffer_load_dwordx4 v%d, s[12:15], s%d offen lds" % (va, s_t0))
            if j < 7: A("s_add_u32 s%d, s%d, %d" % (s_t0, s_t0, stride))
    issued = 0
    def consume(ci):
        kind, c = chunks[ci]; buf = bufs[ci]
        A("s_waitcnt vmcnt(%d)\ns_barrier" % (8 * (issued - ci - 1)))
        A("v_add_u32 v%d, %d, v%d" % (T + 8, buf * 32768, vro if kind == "o" else vrq))
        if kind == "o":
            for u in range(4):
                for rho in range(4):
                    d = V_WV + (u * 4 + c) * 8 + 2 * rho
                    A("ds_read_b64_tr_b16 %s, v%d offset:%d" % (r2(d), T + 8, (8 * (rho >> 1) + 2 * (rho & 1)) * 1024 + u * 64))
        else:
            for fp in range(4):
                for rho in range(4):
                    f = 4 * c + fp
                    base = (8 * f if kind == 0 else 128 + 8 * f if kind == 1 else V_WV + 8 * f) + 2 * rho
                    dst = ("a[%d:%d]" if kind < 2 else "v[%d:%d]") % (base, base + 1)
                    A("ds_read_b64_tr_b16 %s, v%d offset:%d" % (dst, T + 8, (64 * fp + 32 * (rho >> 1) + 2 * (rho & 1)) * 128))
        A("s_waitcnt lgkmcnt(0)\ns_barrier")
    for ci in range(5): issue(ci); issued += 1
    nxt_after = {0: [5], 1: [6], 2: [7], 3: [8], 4: [9], 5: [10], 6: [11], 8: [12], 9: [13], 12: [14], 13: [15]}
    for ci in range(16):
        consume(ci)
        for n in nxt_after.get(ci, []):
            assert n == issued
            issue(n); issued += 1
        if ci == 11:
            for fr in range(12):
                for hf in range(2):
                    A("ds_write_b128 v%d, %s offset:%d" % (v_word, r4(V_WV + fr * 8 + 4 * hf), fr * 2048 + hf * 1024))
            for k in range(32): A("v_mov_b32 v%d, v%d" % (V_WO + k, V_WV + 96 + k))
            A("s_waitcnt lgkmcnt(0)")
    A("""
    s_cmp_lg_u32 s{w}, 0
    s_cbranch_scc1 L_c_ready
    v_mov_b32 v{T}, s{cal}
    v_mov_b32 v{T1}, 64
    s_mov_b64 exec, 1
    buffer_atomic_add v{T}, v{T1}, s[16:19], 0 offen
    s_mov_b32 s{sp}, {SPIN}
    L_c_w:
    buffer_load_dword v{T}, v{T1}, s[16:19], 0 offen sc1
    s_sub_u32 s{sp}, s{sp}, 1
    s_cbranch_scc1 L_c_w2
    s_waitcnt vmcnt(0)
    v_and_b32 v{T2}, 0xffff, v{T}
    v_cmp_gt_u32 vcc, 64, v{T2}
    s_cbranch_vccnz L_c_w
    L_c_w2:
    v_readfirstlane_b32 s{cal}, v{T}
    s_mov_b64 exec, -1
    s_lshr_b32 s{cal}, s{cal}, 16
    s_cmp_ge_u32 s{cal}, 32
    s_cselect_b32 s{cal}, 8192, 0
    s_add_u32 s101, s101, s{cal}
    L_c_ready:
    """.format(w=s_w, T=T, T1=T + 1, T2=T + 2, cal=o_prf, sp=s_spin, SPIN=SPIN))
    RD = 60
    L_KV0, L_KV1 = 114688, 131072
    A("s_load_dwordx2 s[48:49], s[0:1], 8\ns_waitcnt lgkmcnt(0)")
    srd(a, S_W, 48, 49, 16384)
    A("v_and_b32 v%d, 7, v%d\nv_lshlrev_b32 v%d, 11, v%d\nv_lshrrev_b32 v%d, 4, v%d\nv_lshl_add_u32 v%d, v%d, 3, v%d" % (T, v_lane, T, T, T + 1, v_lane, T, T + 1, T))
    A("v_and_b32 v%d, 8, v%d\nv_lshl_add_u32 v%d, v%d, 2, v%d" % (T + 1, v_lane, T, T + 1, T))
    A("s_lshl_b32 s%d, s%d, 6" % (s_t0, s_i))
    A("buffer_load_dwordx2 %s, v%d, s[12:15], s%d offen" % (r2(T + 4), T, s_t0))
    def kv_dma():
        out = ["s_mov_b32 m0, s%d" % m_kv, "s_xor_b32 s%d, s%d, %d" % (m_kv, m_kv, L_KV0 ^ L_KV1)]
        out += ["buffer_load_dwordx4 v%d, %s, s%d offen offset:%d sc1 lds" % (v_l16, WS, o_kv, j * 1024) for j in range(4)]
        return out + ["s_add_u32 s%d, s%d, 0x40000" % (o_kv, o_kv)]
    for x in kv_dma(): A(x)
    A("s_waitcnt vmcnt(0)")
    for k in range(2):
        A("v_lshlrev_b32 v%d, 16, v%d\nv_and_b32 v%d, 0xffff0000, v%d" % (RD + 2 * k, T + 4 + k, RD + 2 * k + 1, T + 4 + k))
    A("s_lshl_b32 s%d, s%d, 2\ns_add_u32 s%d, s%d, s%d\ns_lshl_b32 s%d, s%d, 10" % (m_pl, s_b, m_pl, m_pl, s_w, m_pl, m_pl))
    A("s_add_u32 s%d, s%d, %d\nv_add_u32 v%d, s%d, v%d" % (s_t0, m_pl, L_KV1, v_avx, s_t0, v_l16))
    for d in (12, 52): A("s_mov_b32 s%d, %d\ns_mov_b32 s%d, 0x00020000" % (d + 2, SLOT, d + 3))
    A("s_mov_b32 s%d, 0\ns_mov_b32 s%d, %d" % (s_step, s_spin, SPIN))
    o_xp = 48
    A("s_mov_b32 s50, 0x3f803f80\ns_mov_b32 s51, 0x3f803f80")
    def book():
        A("s_and_b32 s%d, s%d, 3\ns_lshl_b32 s%d, s%d, 19\ns_add_u32 s%d, s%d, s101\ns_xor_b32 s%d, s%d, 262144\ns_xor_b32 s%d, s%d, %d" % (
            s_t0, s_step, s_t1, s_t0, o_pr, s_t1, o_prf, o_pr, o_xp, o_pr, 2 << 19))
        A("s_lshl_b32 s%d, s%d, 20\ns_add_u32 s%d, s%d, %d" % (s_t0, s_t0, s_t0, s_t0, RING))
        for x in set_slot(CUR, "s%d" % s_t0): A(x)
        A("s_xor_b32 s%d, s%d, %d" % (s_t0, s_t0, 2 * SLOT))
        for x in set_slot(P2, "s%d" % s_t0): A(x)
        A("s_lshl_b32 s%d, s%d, 17\ns_add_u32 s%d, s%d, s100\ns_add_u32 s%d, s%d, %d" % (s_t0, s_step, o_km, s_t0, o_kmn, o_km, VM - KM))
    book()
    A("s_barrier")
    if stamps:
        A("s_memtime s[56:57]\ns_memrealtime s[58:59]")
        for k in range(10): A("s_mov_b32 s%d, 0" % (80 + k))
        for k in range(4): A("s_mov_b32 s%d, 0" % (96 + k))
        A("s_waitcnt lgkmcnt(0)\ns_mov_b32 s93, s56\ns_mov_b32 s76, s56\ns_mov_b32 s62, s56")
    AR = 40; NR = 6
    z = lambda r: "v_mov_b64 %s, 0" % r2(r)
    def smf(m, f): A("v_smfmac_f32_16x16x64_bf16 %s, %s, %s, v%d" % (r4((v_aq, v_ak, v_av)[m]), r4(AR + 4 * (f % NR)), wtile(m, f % 16), v_idx))
    def qrd(lq, f): lq.op("ds_read_b128 %s, v%d offset:%d" % (r4(AR + 4 * (f % NR)), v_ahi, L_PL - HI + (f % 16) * 1024), ("A", f))
    PD = 48
    def fetch():
        for j in range(4): A("buffer_load_dwordx4 %s, v%d, %s, s%d offen offset:%d sc1" % (r4(PD + 4 * j), v_l16, CUR, o_plf, j * 1024))
    def prep():
        A("v_subrev_u32 v40, s%d, v%d" % (m_pl, v_avx))
        for k in range(8): A("ds_read_b128 %s, v40 offset:%d" % (r4(64 + 4 * k), k * 1024))
        for k in range(6): A(z(v_aq + 2 * k))
    chk = lambda r: "v_cmp_eq_u32 vcc, s%d, v%d\nv_cmp_eq_u32 %s, s%d, v%d\ns_or_b64 vcc, vcc, %s" % (s_sent, r, MK, s_sent, r + 1, MK)
    prep()
    A("s_cmp_lg_u32 s%d, 0\ns_cbranch_scc1 L_c_b0" % s_w)
    for k in range(2): A("v_cvt_pk_bf16_f32 v%d, v%d, v%d" % (46 + k, RD + 2 * k, RD + 2 * k + 1))
    if align: A("s_branch L_c_xok\n.p2align 6\n" + "s_nop 0\n" * (align - 1))
    A("L_c_xok:")
    A("buffer_store_dwordx2 v[46:47], v%d, %s, s%d offen" % (v_pst, CUR, o_pl))
    stamp(1)
    A("L_c_b0:")
    A("s_barrier")
    stamp(9)
    nop(a, fdelay)
    A("L_c_fetch:")
    fetch()
    stamp("fi")
    for j in range(4):
        A("s_waitcnt vmcnt(%d)" % (3 - j))
        A("ds_write_b128 v%d, %s offset:%d" % (v_flag, r4(PD + 4 * j), j * 1024))
        if j == 0: A("v_max_i32 v41, v%d, v%d" % (PD, PD + 2))
        else: A("v_max3_i32 v41, v%d, v%d, v41" % (PD + 4 * j, PD + 4 * j + 2))
    stamp("fl")
    A("v_cmp_eq_u32 vcc, s%d, v41\ns_cbranch_vccnz L_c_lretry" % s_sent)
    stamp("lok")
    if stamps == 3:
        A("s_waitcnt lgkmcnt(0)")
        A("s_mul_i32 s%d, s%d, 64\ns_add_u32 s%d, s%d, %d\ns_cmp_lg_u32 s%d, %d\ns_cselect_b32 s%d, %d, s%d\nv_mov_b32 v49, s%d" % (
            s_t0, s_step, s_t0, s_t0, L_MISC + 64, s_w, tw, s_t0, L_DUM, s_t0, s_t0))
        for k in range(10): A("v_mov_b32 v%d, s%d" % (50 + k, 60 + 2 * k))
        for k in range(4): A("v_mov_b32 v%d, s%d" % (60 + k, 96 + k))
        for k in range(7): A("ds_write_b64 v49, v[%d:%d] offset:%d" % (50 + 2 * k, 51 + 2 * k, 8 * k))
    A("s_waitcnt lgkmcnt(0)\ns_barrier")
    stamp(0)
    lq = LQ(a)
    for f in range(NR - 1): qrd(lq, f)
    for f in range(11):
        lq.need(("A", f)); smf(0, f); qrd(lq, f + NR - 1); smf(1, f)
    stamp("q5")
    for f in range(11, 16):
        lq.need(("A", f)); smf(0, f)
    smf(1, 11); qrd(lq, 16); nop(a, 1); smf(1, 12); qrd(lq, 17); nop(a, 1); smf(1, 13); qrd(lq, 18)
    A("v_add_f32 v20, v28, v29\nv_add_f32 v21, v30, v31")
    smf(1, 14)
    A("v_cmp_u_f32 vcc, v20, v21")
    smf(1, 15)
    qrd(lq, 19)
    lq.need(("A", 16)); smf(2, 16)
    qrd(lq, 20)
    A("s_cbranch_vccnz L_c_nanq\nL_c_qok:")
    lq.need(("A", 17)); smf(2, 17)
    qrd(lq, 21)
    stamp("qe")
    for r in range(4): A("v_permlane32_swap_b32 v%d, v%d" % (v_aq + r, v_ak + r))
    A("v_pk_add_f32 v[28:29], v[28:29], v[32:33]\nv_pk_add_f32 v[30:31], v[30:31], v[34:35]")
    A("v_cvt_pk_bf16_f32 v32, v28, v29\nv_cvt_pk_bf16_f32 v33, v30, v31")
    A("buffer_store_dwordx2 v[32:33], v%d, %s, s%d offen" % (v_l8, CUR, o_qk_own))
    stamp(3)
    lq.op("ds_write_b64 v%d, v[32:33]" % v_fown)
    PQ = [34, 32, 20, 22]
    PQ0 = PQ[0]
    ldq = lambda r: "buffer_load_dwordx2 %s, v%d, %s, s%d offen sc1" % (r2(r), v_l8, CUR, o_qk_par)
    qrd(lq, 22)
    for f in range(2, 16):
        lq.need(("A", 16 + f)); smf(2, 16 + f)
        if f + NR - 1 < 16: qrd(lq, 16 + f + NR - 1)
        if f in pq: A(ldq(PQ[pq.index(f)]))
        if f >= 12: A("v_mov_b32 v%d, v%d" % (28 + f - 12, v_cinit))
    stamp("ve")
    A("s_waitcnt vmcnt(3)")
    lq.op("ds_write_b64 v%d, %s" % (v_fpar, r2(PQ0)))
    A(chk(PQ0) + "\ns_cbranch_vccnz L_c_qretry")
    A("L_c_qgot:")
    A("s_nop 0\nv_mov_b64 v[60:61], v[36:37]\nv_mov_b64 v[62:63], v[38:39]")
    lq.all()
    A("s_barrier")
    stamp(4)
    lq = LQ(a)
    for kp in range(4):
        for hf in range(2): lq.op("ds_read_b64_tr_b16 %s, v%d offset:%d" % (r2(40 + 4 * kp + 2 * hf), v_af, kp * 1024 + hf * 512), ("F", kp))
    for r in range(4): A("v_permlane32_swap_b32 v%d, v%d" % (v_av + r, 60 + r))
    Tm, T0, T1 = 28, 32, 56
    side = {(0, 0): ["v_add_f32 v60, v36, v60", "s_waitcnt vmcnt(2)"], (0, 1): ["v_add_f32 v61, v37, v61"], (0, 2): ["v_add_f32 v62, v38, v62"],
            (1, 0): ["v_add_f32 v63, v39, v63"], (1, 1): ["v_cvt_pk_bf16_f32 v36, v60, v61"], (1, 2): ["v_cvt_pk_bf16_f32 v37, v62, v63"],
            (2, 0): ["buffer_store_dwordx2 v[36:37], v%d, %s, s%d offen" % (v_l8, CUR, o_vx_own)],
            (2, 1): ["v_xor_b32 v60, 4096, v%d" % v_avx], (2, 2): ["s_cmp_eq_u32 s%d, %d" % (s_step, nsteps - 1)],
            (3, 0): [("ds_read_b128 v[40:43], v%d offset:8192" % v_avx, "vx")], (3, 1): [("ds_read_b128 v[44:47], v60 offset:8192", "vx")]}
    tail_s = "v_mov_b64 v[52:53], 0\nv_xor_b32 v%d, %d, v%d" % (v_avx, L_KV0 ^ L_KV1, v_avx)
    for kp in range(4):
        lq.need(("F", kp))
        F = r4(40 + 4 * kp)
        for j, (D, Aop) in enumerate(((Tm, F), (T0, r4(64 + 4 * kp)), (T1, r4(80 + 4 * kp)))):
            A("v_mfma_f32_16x16x32_bf16 %s, %s, %s, %s" % (r4(D), Aop, F, "0" if (kp == 0 and j) else r4(D)))
            for x in side.get((kp, j), []):
                if isinstance(x, tuple): lq.op(*x)
                else: A(x)
    BUF = [64, 72, 80, 88, 56]
    def word(fr, buf):
        for hf in range(2): lq.op("ds_read_b128 %s, v%d offset:%d" % (r4(BUF[buf] + 4 * hf), v_word, fr * 2048 + hf * 1024), ("W", fr))
    stamp("se")
    A("s_cbranch_scc1 L_c_last")
    A("s_waitcnt vmcnt(1)\nv_mov_b64 v[20:21], s[50:51]\nv_mov_b64 v[22:23], s[50:51]")
    A("v_max3_f32 v61, v28, v29, v30")
    word(0, 0)
    A("v_max3_f32 v62, v31, v32, v33\nv_max3_f32 v61, v34, v35, v61")
    A("v_max3_f32 v62, v56, v57, v62\nv_max3_f32 v61, v58, v59, v61\nv_max_f32 v61, v61, v62")
    A("v_mov_b32 v62, v61")
    word(1, 1)
    A("v_permlane32_swap_b32 v61, v62\nv_max_f32 v61, v61, v62")
    A("v_mov_b32 v62, v61")
    word(2, 2)
    A("v_permlane16_swap_b32 v61, v62\nv_max_f32 v61, v61, v62")
    A("v_mul_f32 v61, s%d, v61" % s_scale)
    stamp("mx")
    ldv = "buffer_load_dwordx2 v[38:39], v%d, %s, s%d offen sc1" % (v_l8, CUR, o_vx_par)
    if vpos == 0: A(ldv)
    regs = [32, 33, 34, 35, 56, 57, 58, 59, 28, 29, 30, 31]
    for r in regs[:8]: A("v_fma_f32 v%d, v%d, s%d, -v61" % (r, r, s_scale))
    if vpos == 1: A(ldv)
    for r in regs[:8]: A("v_exp_f32 v%d, v%d" % (r, r))
    if vpos == 2: A(ldv)
    A("v_fma_f32 v28, v28, s%d, -v61" % s_scale)
    A("v_cvt_pk_bf16_f32 v48, v32, v33\nv_cvt_pk_bf16_f32 v49, v34, v35\nv_cvt_pk_bf16_f32 v50, v56, v57\nv_cvt_pk_bf16_f32 v51, v58, v59")
    for r in regs[9:]: A("v_fma_f32 v%d, v%d, s%d, -v61" % (r, r, s_scale))
    lq.need("vx")
    LS, O0, O1 = 60, 56, 32
    stamp(5)
    A("v_mfma_f32_16x16x32_bf16 %s, v[40:43], v[48:51], 0" % r4(O0))
    A("v_exp_f32 v28, v28")
    A("v_mfma_f32_16x16x32_bf16 %s, v[44:47], v[48:51], 0" % r4(O1))
    A("v_exp_f32 v29, v29")
    A("v_mfma_f32_16x16x32_bf16 %s, %s, v[48:51], 0" % (r4(LS), r4(v_ones)))
    A("v_exp_f32 v30, v30\nv_exp_f32 v31, v31")
    A("v_mov_b64 v[46:47], 0\n" + tail_s)
    A("v_cvt_pk_bf16_f32 v54, v28, v29\nv_cvt_pk_bf16_f32 v55, v30, v31")
    A("v_mov_b64 v[44:45], v[54:55]")
    A("s_waitcnt vmcnt(0)")
    A("v_mfma_f32_16x16x32_bf16 %s, %s, v[52:55], %s" % (r4(LS), r4(v_ones), r4(LS)))
    A("L_c_vl:")
    A(chk(38) + "\ns_cbranch_vccnz L_c_vretry")
    A("v_mfma_f32_16x16x32_bf16 %s, v[36:39], v[44:47], %s" % (r4(O0), r4(O0)))
    A("v_mfma_f32_16x16x32_bf16 %s, v[36:39], v[52:55], %s" % (r4(O1), r4(O1)))
    stamp("pv")
    ACC = [28, 32, 36, 20]
    lq.op("ds_read_b64_tr_b16 v[40:41], v%d" % v_kmr, "km")
    A(z(28))
    A("v_rcp_f32 v48, v%d" % LS)
    word(3, 3)
    A(z(30) + "\n" + z(20))
    A("v_pk_mul_f32 v[56:57], v[56:57], v[48:49] op_sel_hi:[1,0]\nv_pk_mul_f32 v[58:59], v[58:59], v[48:49] op_sel_hi:[1,0]")
    A("v_pk_mul_f32 v[32:33], v[32:33], v[48:49] op_sel_hi:[1,0]\nv_pk_mul_f32 v[34:35], v[34:35], v[48:49] op_sel_hi:[1,0]")
    A("v_cvt_pk_bf16_f32 v52, v56, v57\nv_cvt_pk_bf16_f32 v53, v58, v59\nv_cvt_pk_bf16_f32 v54, v32, v33\nv_cvt_pk_bf16_f32 v55, v34, v35")
    lq.op("ds_write_b128 v%d, v[52:55]" % v_owr, "ow")
    stamp("ow")
    word(4, 4)
    def km_store():
        if nokm: return
        A("buffer_store_dwordx2 v[40:41], v%d, %s, s%d offen sc1" % (v_l8, WS, o_km))
        A("buffer_store_dwordx2 v[36:37], v%d, %s, s%d offen sc1" % (v_l8, WS, o_kmn))
    lq.need("km")
    km_store()
    A("\n".join(z(r) for r in (22, 32, 34, 38, 36)))
    lq.need("ow")
    A("s_barrier")
    stamp(6)
    for k in range(4): lq.op("ds_read_b128 %s, v%d offset:%d" % (r4(40 + 4 * k), v_ord, k * 512), ("o", k))
    if not nokv:
        for x in kv_dma(): A(x)
    A(poisons(P2)[6])
    A("buffer_store_dwordx2 %s, v%d, %s, s%d offen sc1" % (r2(v_sent), v_l8, WS, o_xp))
    A("s_add_u32 s%d, s%d, 1" % (s_step, s_step))
    def post(u):
        t = ACC[u]
        return ["v_cvt_pk_bf16_f32 v%d, v%d, v%d" % (t, t, t + 1), "v_cvt_pk_bf16_f32 v%d, v%d, v%d" % (t + 1, t + 2, t + 3),
                "buffer_store_dwordx2 %s, v%d, %s, s%d offen" % (r2(t), v_i3st, CUR, o_i3st + u)]
    where = {k: k for k in range(5)}
    nxt = [5]
    def wmf(fr):
        u, kp = fr >> 2, fr & 3
        lq.need(("o", kp))
        if fr < 12: lq.need(("W", fr))
        B = r8(V_WO + 8 * (fr - 12)) if fr >= 12 else r8(BUF[where[fr]])
        A("v_smfmac_f32_16x16x64_bf16 %s, %s, %s, v%d" % (r4(ACC[u]), r4(40 + 4 * kp), B, v_idx))
        if fr < 12 and nxt[0] < 12:
            where[nxt[0]] = where[fr]; word(nxt[0], where[fr]); nxt[0] += 1
    for fr in (0, 1, 2, 3, 4, 12, 13, 14, 15): wmf(fr)
    for x in post(0): A(x)
    wmf(5); wmf(6)
    for x in post(3): A(x)
    for fr in (7, 8, 9, 10, 11): wmf(fr)
    A("s_cmp_lg_u32 s%d, 0" % s_w)
    for x in post(1): A(x)
    nop(a, 4)
    for x in post(2): A(x)
    stamp(7)
    if stamps == 2:
        A("s_waitcnt lgkmcnt(0)")
        for k, (hi, lo) in enumerate([(76, 93), (62, 76), (78, 62), (60, 78), (66, 60), (68, 66), (70, 68), (72, 70), (74, 72)]):
            A("s_sub_u32 s%d, s%d, s%d\ns_add_u32 s%d, s%d, s%d" % (s_t0, hi, lo, 80 + k, 80 + k, s_t0))
        A("s_mov_b32 s93, s74\ns_mov_b32 s76, s74\ns_mov_b32 s62, s74\ns_cmp_lg_u32 s%d, 0" % s_w)
    A("s_cbranch_scc1 L_c_idle")
    nop(a, rdelay)
    SETS = [28, 64]
    def rloads(st):
        for k in range(8): A("buffer_load_dwordx4 %s, v%d, %s, s%d offen offset:%d sc1" % (r4(SETS[st] + 4 * k), v_i3l0 if k < 4 else v_i3l1, CUR, o_i3ld, (k & 3) * 1024))
    def rproc(st):
        for k in range(8):
            A("s_waitcnt vmcnt(%d)" % (15 - k))
            A("v_mfma_f32_16x16x32_bf16 %s, %s, %s, %s" % (r4(RD), r4(SETS[st] + 4 * k), r4(v_sel), "0" if k == 0 else r4(RD)))
        nop(a, 8)
        A("v_pk_add_f32 v[20:21], v[60:61], v[62:63]\nv_cvt_pk_bf16_f32 v22, v60, v61\nv_cmp_u_f32 vcc, v20, v21\nv_cvt_pk_bf16_f32 v23, v62, v63")
    rloads(0)
    A("s_mov_b32 s%d, 0" % s_t2)
    stamp("ri")
    nop(a, rgap)
    A("L_c_rB:")
    rloads(1)
    rproc(0)
    A("s_cbranch_vccnz L_c_r1")
    A("L_c_rok:")
    A("buffer_store_dwordx2 v[22:23], v%d, %s, s%d offen sc1" % (v_l8, WS, o_pr))
    stamp(8)
    XP = [48, 50]
    xat = lambda r: "buffer_atomic_add_x2 %s, v%d, %s, s%d offen sc0" % (r2(XP[r]), v_l8, WS, s_t3)
    A("s_mov_b32 s%d, s%d\ns_waitcnt vmcnt(1)\n%s\n%s" % (s_t3, o_prf, z(XP[0]), z(XP[1])))
    nop(a, xd0)
    A(xat(0))
    A("s_barrier")
    book()
    prep()
    nop(a, xd1)
    A(xat(1))
    stamp("xw")
    def xuse(r):
        x = XP[r]
        A("s_waitcnt vmcnt(1)")
        A("v_cmp_eq_u32 vcc, s%d, v%d\nv_cmp_eq_u32 %s, s%d, v%d" % (s_sent, x, MK, s_sent, x + 1))
        A("v_lshlrev_b32 v52, 16, v%d\nv_and_b32 v53, 0xffff0000, v%d\nv_lshlrev_b32 v54, 16, v%d\nv_and_b32 v55, 0xffff0000, v%d" % (x, x, x + 1, x + 1))
        A("s_or_b64 vcc, vcc, %s" % MK)
        A("v_pk_add_f32 v[52:53], v[52:53], v[60:61]\nv_pk_add_f32 v[54:55], v[54:55], v[62:63]")
        A("v_cvt_pk_bf16_f32 v46, v52, v53\nv_cvt_pk_bf16_f32 v47, v54, v55\ns_cbranch_vccz L_c_xok")
    A("L_c_xl:")
    for r in range(2):
        xuse(r)
        cnt(2)
        A(z(XP[r]) + "\n" + xat(r))
    A("s_sub_u32 s%d, s%d, 1\ns_cbranch_scc0 L_c_xl\ns_branch L_c_fail" % (s_spin, s_spin))
    A("L_c_r1:")
    cnt(0)
    rloads(0)
    rproc(1)
    A("s_cbranch_vccz L_c_rok")
    cnt(0)
    A("s_sub_u32 s%d, s%d, 1\ns_cbranch_scc1 L_c_fail" % (s_spin, s_spin))
    A("s_add_u32 s%d, s%d, 1\ns_and_b32 s%d, s%d, 7\ns_cbranch_scc1 L_c_rB" % (s_t2, s_t2, s_t0, s_t2))
    A("s_mov_b64 %s, 0" % MK)
    for k in range(32): A("v_cmp_eq_u32 vcc, s%d, v%d\ns_or_b64 %s, %s, vcc" % (s_sent, 64 + k, MK, MK))
    A("s_cbranch_scc0 L_c_rok\ns_branch L_c_rB")
    pz = poisons(P2)[:6]
    A("L_c_idle:")
    A("s_waitcnt vmcnt(0)\ns_barrier")
    for x in pz: A(x)
    A("s_cmp_lg_u32 s%d, 1\ns_cbranch_scc1 L_c_idle2" % s_w)
    for x, d in zip(pz, (512, 512, 32768, 32768, 32768, 32768)):
        o = x.split(",")[-1].split()[0]
        A("s_sub_u32 s%d, %s, %d" % (s_t0, o, d))
        A(x.replace(", %s offen" % o, ", s%d offen" % s_t0))
    A("L_c_idle2:")
    book()
    prep()
    A("s_branch L_c_b0")
    A("L_c_lretry:")
    cnt(1)
    A("s_waitcnt lgkmcnt(0)\ns_sub_u32 s%d, s%d, 1\ns_cbranch_scc0 L_c_fetch\ns_branch L_c_fail" % (s_spin, s_spin))
    A("L_c_qretry:")
    cnt(3)
    A("s_waitcnt vmcnt(2)\nds_write_b64 v%d, %s\n" % (v_fpar, r2(PQ[1])) + chk(PQ[1]) + "\ns_cbranch_vccz L_c_qgot")
    A("L_c_qr2:")
    for k in (2, 3):
        cnt(3)
        A("s_waitcnt vmcnt(1)\nds_write_b64 v%d, %s\n" % (v_fpar, r2(PQ[k])) + chk(PQ[k]) + "\ns_cbranch_vccz L_c_qgot")
        A(ldq(PQ[k]))
    A("s_sub_u32 s%d, s%d, 1\ns_cbranch_scc0 L_c_qr2\ns_branch L_c_fail" % (s_spin, s_spin))
    A("L_c_vretry:")
    A("buffer_load_dwordx2 v[38:39], v%d, %s, s%d offen sc1" % (v_l8, CUR, o_vx_par))
    cnt(3)
    A("s_sub_u32 s%d, s%d, 1\ns_cbranch_scc1 L_c_fail\ns_waitcnt vmcnt(0)\ns_branch L_c_vl" % (s_spin, s_spin))
    A("L_c_nanq:")
    A("s_mov_b64 %s, 0" % MK)
    for f in range(16):
        A("ds_read_b128 v[20:23], v%d offset:%d\ns_waitcnt lgkmcnt(0)" % (v_ahi, L_PL - HI + f * 1024))
        for k in range(4): A("v_cmp_eq_u32 vcc, s%d, v%d\ns_or_b64 %s, %s, vcc" % (s_sent, 20 + k, MK, MK))
    A("s_cbranch_scc0 L_c_qok")
    A("s_sub_u32 s%d, s%d, 1\ns_cbranch_scc1 L_c_fail" % (s_spin, s_spin))
    for k in range(6): A(z(v_aq + 2 * k))
    A("s_barrier\ns_branch L_c_fetch")
    A("L_c_last:")
    A("s_waitcnt lgkmcnt(0)\nds_read_b64_tr_b16 v[40:41], v%d\ns_waitcnt lgkmcnt(0)" % v_kmr)
    km_store()
    A("s_branch L_c_done")
    A("L_c_fail:")
    A("v_mov_b32 v40, 1\nv_mov_b32 v41, 96\nbuffer_atomic_add v40, v41, s[16:19], 0 offen")
    A("L_c_done:")
    A("s_waitcnt vmcnt(0)")
    if stamps:
        A("s_memtime s[60:61]\ns_memrealtime s[62:63]\ns_waitcnt lgkmcnt(0)\ns_sub_u32 s60, s60, s56\ns_sub_u32 s61, s62, s58")
        A("s_sub_u32 s62, s56, s94")
        A("s_lshl_b32 s%d, s%d, 5\ns_add_u32 s%d, s%d, s%d\ns_lshl_b32 s%d, s%d, 2\ns_add_u32 s%d, s%d, s%d\ns_lshl_b32 s%d, s%d, 7\ns_add_u32 s%d, s%d, %d" % (
            s_t0, s_x, s_t0, s_t0, s_i, s_t0, s_t0, s_t0, s_t0, s_w, s_t0, s_t0, s_t0, s_t0, FLAGS + MB))
        for k, sr in enumerate([60, 61, 62] + list(range(80, 90)) + [96, 97, 98, 99]): A("v_mov_b32 v%d, s%d" % (40 + k, sr))
        if stamps == 3:
            A("s_cmp_lg_u32 s%d, %d\ns_cbranch_scc1 L_c_notr" % (s_w, tw))
            A("s_lshl_b32 s%d, s%d, 5\ns_add_u32 s%d, s%d, s%d\ns_lshl_b32 s%d, s%d, 12\ns_add_u32 s%d, s%d, %d" % (s_t1, s_x, s_t1, s_t1, s_i, s_t1, s_t1, s_t1, s_t1, FLAGS + 2 * MB))
            A("v_add_u32 v64, %d, v%d" % (L_MISC + 64, v_l16))
            for k in range(4):
                A("ds_read_b128 v[68:71], v64 offset:%d\ns_waitcnt lgkmcnt(0)\nbuffer_store_dwordx4 v[68:71], v%d, %s, s%d offen offset:%d\ns_waitcnt vmcnt(0)" % (k * 1024, v_l16, WS, s_t1, k * 1024))
            A("L_c_notr:")
            A("v_mov_b32 v43, s56\nv_mov_b32 v44, s58")
        A("v_mov_b32 v60, 0\ns_mov_b64 exec, 1")
        for k in range(5): A("buffer_store_dwordx4 %s, v60, %s, s%d offen offset:%d" % (r4(40 + 4 * k), WS, s_t0, 16 * k))
        A("s_waitcnt vmcnt(0)")

def emit_role_prologue(a, nwg=256):
    a("""
    s_cmp_ge_u32 s2, {n}
    s_cbranch_scc1 L_end
    s_load_dwordx4 s[4:7], s[0:1], 96
    s_memtime s[94:95]
    s_getreg_b32 s{xcc}, hwreg(HW_REG_XCC_ID)
    s_and_b32 s{xcc}, s{xcc}, 15
    v_and_b32 v1, 63, v0
    v_lshrrev_b32 v2, 6, v0
    s_waitcnt lgkmcnt(0)
    """.format(n=nwg, xcc=s_xcc))
    srd(a, S_WS, 6, 7, WS_BYTES)
    srd(a, S_DBG, 4, 5, 256)
    a("""
    v_readfirstlane_b32 s{w}, v2
    v_mov_b32 v3, 1
    s_lshl_b32 s{i}, s{xcc}, 2
    v_mov_b32 v4, s{i}
    v_mov_b32 v5, {misc}
    v_cmp_eq_u32 vcc, 0, v0
    s_and_saveexec_b64 s[48:49], vcc
    s_cbranch_execz L_skipt
    buffer_atomic_add v3, v4, s[16:19], 0 offen sc0
    s_waitcnt vmcnt(0)
    ds_write_b32 v5, v3
    s_waitcnt lgkmcnt(0)
    L_skipt:
    s_mov_b64 exec, s[48:49]
    s_barrier
    ds_read_b32 v3, v5
    s_waitcnt lgkmcnt(0)
    v_readfirstlane_b32 s{i}, v3
    s_barrier
    """.format(w=s_w, i=s_i, xcc=s_xcc, misc=L_MISC))

def gen(stamps=2, nsteps=64, xa=0, xb=1, name="chain_kernel", header=True, desc=True, **kw):
    a = Asm()
    if header:
        a("; @launch kernel=%s grid=(256,1,1) block=(256,1,1) lds=%d" % (name, LDS_BYTES))
        a('.amdgcn_target "amdgcn-amd-amdhsa--gfx950"')
    kernel_begin(a, name)
    emit_role_prologue(a)
    a("""
    s_cmp_ge_u32 s{i}, 32
    s_cbranch_scc1 L_end
    s_mov_b32 s{x}, 0
    s_cmp_eq_u32 s{xcc}, {xa}
    s_cbranch_scc1 L_chain
    s_mov_b32 s{x}, 1
    s_cmp_eq_u32 s{xcc}, {xb}
    s_cbranch_scc1 L_chain
    s_endpgm
    L_chain:
    """.format(i=s_i, x=s_x, xcc=s_xcc, xa=xa, xb=xb))
    emit_chain(a, stamps, nsteps, **kw)
    a("L_end:\ns_endpgm")
    if desc: kernel_desc(a, name, 512, 102, 256)
    return a.text()

if __name__ == "__main__":
    open(sys.argv[1], "w").write(gen())
```

```python
MB = 1 << 20
WS_BYTES = 256 * MB
XN = 0
QX = 4 * MB
KX = 20 * MB
VT = 36 * MB
KM = 52 * MB
VM = 60 * MB
OA = 68 * MB
HB = 84 * MB
HN = 92 * MB
ACT = 96 * MB
PART = 112 * MB
RING = 192 * MB
SLOT = MB
R_PL = 0
R_PR = 32768
R_QK = 65536
R_VX = 65536 + 131072
R_I3 = 524288
PRB = 196 * MB
FLAGS = 200 * MB
SENT = 0x7F817F81
KA = dict(x=0, mem0=8, Wq=16, Wk=24, Wv=32, Wo=40, seg=48, bx=56, wg=64, wu=72, wd=80, out=88, dbg=96, ws=104)
```

```python
import struct, math
from asmlib import *
from layout import *

def nop(a, n):
    while n > 0:
        k = min(n, 16); a("s_nop %d" % (k - 1)); n -= k
def r4(v, p="v"): return "%s[%d:%d]" % (p, v, v + 3)
def r2(v): return "v[%d:%d]" % (v, v + 1)
def f32(x): return "0x%08x" % struct.unpack("<I", struct.pack("<f", x))[0]
WS = "s[8:11]"; WSRD = "s[12:15]"; XSRD = "s[24:27]"
OOB = 0x80000000
s_w = 21
P_X, P_WQ, P_WK, P_WV, P_WO, P_WG, P_WU, P_WD, P_OUT = 64, 68, 70, 72, 74, 80, 82, 84, 86
s_xoff, s_woff, s_xrs, s_ldw, s_wadv, s_ngrp, s_epi, s_obase, s_ors, s_m0x, s_m0w, s_ohalf = range(30, 42)
t0, t1, t2, t3 = 4, 5, 6, 7
v_lane, v_l16 = 1, 2
SC = " sc1"

def load_ptrs(a):
    a("s_load_dwordx16 s[64:79], s[0:1], 0\ns_load_dwordx8 s[80:87], s[0:1], 64\ns_waitcnt lgkmcnt(0)")
    a("v_lshlrev_b32 v%d, 4, v%d" % (v_l16, v_lane))

def set_srd(a, d, p, nbytes):
    a("s_mov_b32 s%d, s%d\ns_mov_b32 s%d, s%d\ns_mov_b32 s%d, 0x%x\ns_mov_b32 s%d, 0x00020000" % (d, p, d + 1, p + 1, d + 2, nbytes, d + 3))

def set_w(a, pa, pb, nbytes):
    if pa == pb: set_srd(a, 12, pa, nbytes); return
    a("s_cmp_lt_u32 s%d, 2\ns_cselect_b32 s12, s%d, s%d\ns_cselect_b32 s13, s%d, s%d\ns_mov_b32 s14, 0x%x\ns_mov_b32 s15, 0x00020000" % (s_w, pa, pb, pa + 1, pb + 1, nbytes))

class Gemm:
    def __init__(self, name, TM, TN, NST, swap=False):
        self.name = name; self.TM = TM; self.TN = TN; self.NST = NST; self.swap = swap
        self.BM = 32 * TM; self.BN = 32 * TN
        self.xbytes = self.BM * 64; self.wbytes = self.BN * 64; self.stage = self.xbytes + self.wbytes
        self.nx = self.xbytes // 4096; self.nw = self.wbytes // 4096
        self.pitch = self.BN
        v = 8
        self.v_xsrc = v; v += self.nx
        self.v_wsrc = v; v += self.nw
        self.nhi = (self.stage * NST + 65535) // 65536
        self.v_xrd = v; v += self.nhi
        self.v_wrd = v; v += self.nhi * (TN // 2)
        v = (v + 3) // 4 * 4
        self.v_frag = v; v += 8 * (TM + TN)
        self.vend = v
    def wfrag(self, buf, tn): return self.v_frag + buf * 4 * (self.TM + self.TN) + 4 * tn
    def xfrag(self, buf, tm): return self.v_frag + buf * 4 * (self.TM + self.TN) + 4 * self.TN + 4 * tm
    def acc(self, tn, tm): return (tn * self.TM + tm) * 4
    def swz(self, a, dst, k):
        U = self.pitch // 32
        if U >= 8: a("v_and_b32 v%d, 7, v%d" % (dst, k))
        elif U == 4: a("v_bfe_u32 v%d, v%d, 1, 2" % (dst, k))
        else: a("v_bfe_u32 v%d, v%d, 2, 1" % (dst, k))
    def setup(self, a):
        TM, TN = self.TM, self.TN; vt = 4
        a("s_mul_i32 s%d, s%d, %d\ns_mul_i32 s%d, s%d, s%d" % (t0, s_w, self.nx, t0, t0, s_xrs))
        a("s_sub_u32 s%d, s%d, 1024" % (t1, s_xrs))
        for j in range(self.nx):
            a("v_add_u32 v%d, s%d, v%d" % (self.v_xsrc + j, t0, v_l16))
            if j < self.nx - 1: a("s_add_u32 s%d, s%d, s%d" % (t0, t0, t1))
        cpr = self.pitch // 16; rpi = 64 // cpr; sh = cpr.bit_length() - 1
        a("v_lshrrev_b32 v%d, %d, v%d\nv_and_b32 v%d, %d, v%d" % (vt, sh, v_lane, vt + 1, cpr - 1, v_lane))
        a("s_and_b32 s%d, s%d, 1\ns_lshl_b32 s%d, s%d, 4" % (t2, s_w, t0, t2))
        for j in range(self.nw):
            a("s_add_u32 s%d, s%d, %d\nv_add_u32 v%d, s%d, v%d" % (t1, t0, j * rpi, vt + 2, t1, vt))
            self.swz(a, vt + 3, vt + 2)
            a("v_lshlrev_b32 v%d, 1, v%d\nv_xor_b32 v%d, v%d, v%d\nv_lshlrev_b32 v%d, 4, v%d" % (vt + 3, vt + 3, vt + 3, vt + 3, vt + 1, vt + 3, vt + 3))
            a("v_mul_lo_u32 v%d, v%d, s%d\nv_add_u32 v%d, v%d, v%d" % (vt + 2, vt + 2, s_ldw, vt + 2, vt + 2, vt + 3))
            a("v_subrev_u32 v%d, %d, v%d" % (self.v_wsrc + j, j * 1024, vt + 2))
        a("s_lshr_b32 s%d, s%d, 1\ns_mul_i32 s%d, s%d, %d" % (t3, s_w, t0, t3, TM * 1024))
        for h in range(self.nhi):
            a("s_add_u32 s%d, s%d, %d\nv_add_u32 v%d, s%d, v%d" % (t1, t0, h * 65536, self.v_xrd + h, t1, v_l16))
        a("v_lshrrev_b32 v%d, 2, v%d" % (vt + 1, v_lane))
        self.swz(a, vt, vt + 1)
        a("v_mul_u32_u24 v%d, %d, v%d\nv_and_b32 v%d, 3, v%d\nv_lshl_add_u32 v%d, v%d, 3, v%d" % (vt + 1, self.pitch, vt + 1, vt + 2, v_lane, vt + 1, vt + 2, vt + 1))
        for tn in range(TN // 2):
            a("s_mul_i32 s%d, s%d, %d\ns_add_u32 s%d, s%d, %d" % (t0, t2, TN // 2, t0, t0, tn))
            a("v_xor_b32 v%d, s%d, v%d\nv_lshl_add_u32 v%d, v%d, 5, v%d" % (vt + 2, t0, vt, vt + 2, vt + 2, vt + 1))
            for h in range(self.nhi):
                a("v_add_u32 v%d, %d, v%d" % (self.v_wrd + h * (TN // 2) + tn, self.xbytes + h * 65536, vt + 2))
        a("s_mul_i32 s%d, s%d, %d" % (s_m0x, s_w, self.nx * 1024))
        a("s_mul_i32 s%d, s%d, %d\ns_add_u32 s%d, s%d, %d" % (s_m0w, s_w, self.nw * 1024, s_m0w, s_m0w, self.xbytes))
        a("s_lshl_b32 s%d, s%d, 5" % (s_wadv, s_ldw))
    def dma(self, st):
        g = []
        for j in range(self.nx):
            x = ["buffer_load_dwordx4 v%d, %s, s%d offen offset:%d%s lds" % (self.v_xsrc + j, WS, s_xoff, j * 1024, SC)]
            if j == 0: x = ["s_add_u32 m0, s%d, %d" % (s_m0x, st * self.stage), "s_nop 0"] + x
            g.append(x)
        for j in range(self.nw):
            x = ["buffer_load_dwordx4 v%d, %s, s%d offen offset:%d lds" % (self.v_wsrc + j, WSRD, s_woff, j * 1024)]
            if j == 0: x = ["s_add_u32 m0, s%d, %d" % (s_m0w, st * self.stage), "s_add_u32 s%d, s%d, 1024" % (s_xoff, s_xoff)] + x
            g.append(x)
        g[-1] = g[-1] + ["s_add_u32 s%d, s%d, s%d" % (s_woff, s_woff, s_wadv)]
        return g
    def reads(self, st, buf):
        out = []; base = st * self.stage; H = self.TN // 2
        for i in range(max(self.TM, self.TN)):
            if i < self.TN:
                f = self.wfrag(buf, i)
                for hf in range(2):
                    off = base + (i // H) * (self.wbytes // 2) + 16 * hf * self.pitch
                    out.append("ds_read_b64_tr_b16 %s, v%d offset:%d" % (r2(f + 2 * hf), self.v_wrd + (off // 65536) * H + i % H, off % 65536))
            if i < self.TM:
                off = base + i * 1024
                out.append("ds_read_b128 %s, v%d offset:%d" % (r4(self.xfrag(buf, i)), self.v_xrd + off // 65536, off % 65536))
        return out
    def mfmas(self, buf, first):
        out = []
        for tn in range(self.TN):
            for tm in range(self.TM):
                c = r4(self.acc(tn, tm), "a"); w = r4(self.wfrag(buf, tn)); x = r4(self.xfrag(buf, tm))
                if self.swap: w, x = x, w
                out.append("v_mfma_f32_16x16x32_bf16 %s, %s, %s, %s" % (c, w, x, "0" if first else c))
        return out
    def step(self, a, st, first=False):
        nd = self.nx + self.nw; nm = self.TM * self.TN; buf = st % 2
        a("s_waitcnt lgkmcnt(0)")
        mf = self.mfmas(buf, first); rd = self.reads((st + 1) % self.NST, buf ^ 1); dm = self.dma(st)
        gaps = [[] for _ in range(nm)]
        gaps[0].append("s_waitcnt vmcnt(%d)\ns_barrier" % (nd * (self.NST - 2)))
        dpos = [((2 * j + 1) * nm) // (2 * len(dm)) for j in range(len(dm))]
        for j, p in enumerate(dpos): gaps[p] += dm[j]
        free = [i for i in range(nm) if i not in dpos]
        for k, x in enumerate(rd): gaps[free[k] if k < len(free) else k % nm].append(x)
        for i in range(nm):
            a(mf[i])
            for x in gaps[i]: a(x)
    def body(self, a):
        n = self.name; nd = self.nx + self.nw
        self.setup(a)
        for st in range(self.NST):
            for g in self.dma(st):
                for x in g: a(x)
        a("s_waitcnt vmcnt(%d)\ns_barrier" % (nd * (self.NST - 1)))
        for x in self.reads(0, 0): a(x)
        self.step(a, 0, True)
        a("s_branch L_%s_s1" % n)
        a("L_%s_loop:" % n)
        a("s_cmp_eq_u32 s%d, 1\ns_cselect_b32 s%d, 0x%x, s%d\ns_cselect_b32 s%d, 0x%x, s%d" % (s_ngrp, s_xoff, OOB, s_xoff, s_woff, OOB, s_woff))
        self.step(a, 0)
        a("L_%s_s1:" % n)
        for st in range(1, self.NST): self.step(a, st)
        a("s_sub_u32 s%d, s%d, 1\ns_cmp_lg_u32 s%d, 0\ns_cbranch_scc1 L_%s_loop" % (s_ngrp, s_ngrp, s_ngrp, n))
        a("s_waitcnt lgkmcnt(0)")
        nop(a, 8)
    def wave_base(self, a, rows_mul, col_bytes):
        a("s_lshr_b32 s%d, s%d, 1\ns_mul_i32 s%d, s%d, %d\ns_mul_i32 s%d, s%d, s%d\ns_add_u32 s%d, s%d, s%d" % (t0, s_w, t0, t0, rows_mul, t0, t0, s_ors, t0, t0, s_obase))
        a("s_and_b32 s%d, s%d, 1\ns_mul_i32 s%d, s%d, %d\ns_add_u32 s%d, s%d, s%d" % (t1, s_w, t1, t1, col_bytes, t0, t0, t1))
    def pack(self, a, t, accs):
        for r, c in enumerate(accs): a("v_accvgpr_read_b32 v%d, a%d" % (t + 4 + r, c))
        for r in range(4): a("v_cvt_pk_bf16_f32 v%d, v%d, v%d" % (t + r, t + 4 + 2 * r, t + 5 + 2 * r))
    def epi_t16(self, a):
        H = self.TN // 2
        self.wave_base(a, self.TM, (H // 2) * 1024)
        k = 0
        for tm in range(self.TM):
            a("s_add_u32 s%d, s%d, s%d" % (t1, t0, s_ohalf))
            for tp in range(self.TN // 2):
                t = self.v_frag + (k % 4) * 12; k += 1
                self.pack(a, t, [self.acc(2 * tp + r // 4, tm) + r % 4 for r in range(8)])
                half, p = (2 * tp) // H, ((2 * tp) % H) // 2
                a("buffer_store_dwordx4 %s, v%d, %s, s%d offen offset:%d%s" % (r4(t), v_l16, WS, t1 if half else t0, p * 1024, SC))
            a("s_add_u32 s%d, s%d, s%d" % (t0, t0, s_ors))
    def epi_vt(self, a):
        H = self.TN // 2
        self.wave_base(a, self.TM // 2, H * 1024)
        k = 0
        for sp in range(self.TM // 2):
            a("s_add_u32 s%d, s%d, s%d" % (t1, t0, s_ohalf))
            for tn in range(self.TN):
                t = self.v_frag + (k % 4) * 12; k += 1
                self.pack(a, t, [self.acc(tn, 2 * sp + r // 4) + r % 4 for r in range(8)])
                a("buffer_store_dwordx4 %s, v%d, %s, s%d offen offset:%d%s" % (r4(t), v_l16, WS, t1 if tn // H else t0, (tn % H) * 1024, SC))
            a("s_add_u32 s%d, s%d, s%d" % (t0, t0, s_ors))
    def epi_f32(self, a):
        H = self.TN // 2
        self.wave_base(a, self.TM, H * 1024)
        for tm in range(self.TM):
            a("s_add_u32 s%d, s%d, s%d" % (t1, t0, s_ohalf))
            for tn in range(self.TN):
                a("buffer_store_dwordx4 %s, v%d, %s, s%d offen offset:%d%s" % (r4(self.acc(tn, tm), "a"), v_l16, WS, t1 if tn // H else t0, (tn % H) * 1024, SC))
            a("s_add_u32 s%d, s%d, s%d" % (t0, t0, s_ors))
    def epi_gu(self, a):
        H = self.TN // 2
        self.wave_base(a, self.TM, (H // 2) * 1024)
        a("s_mov_b32 s%d, %s" % (t2, f32(-math.log2(math.e))))
        k = 0
        for tm in range(self.TM):
            for p in range(H // 2):
                t = self.v_frag + (k % 2) * 28; k += 1
                G, U, E = t + 4, t + 12, t + 20
                for r in range(8): a("v_accvgpr_read_b32 v%d, a%d" % (G + r, self.acc(2 * p + r // 4, tm) + r % 4))
                for r in range(8): a("v_mul_f32 v%d, s%d, v%d" % (E + r, t2, G + r))
                for r in range(8): a("v_exp_f32 v%d, v%d" % (E + r, E + r))
                for r in range(8): a("v_accvgpr_read_b32 v%d, a%d" % (U + r, self.acc(H + 2 * p + r // 4, tm) + r % 4))
                for r in range(8): a("v_add_f32 v%d, 1.0, v%d" % (E + r, E + r))
                for r in range(8): a("v_rcp_f32 v%d, v%d" % (E + r, E + r))
                for r in range(0, 8, 2): a("v_pk_mul_f32 %s, %s, %s" % (r2(G + r), r2(G + r), r2(U + r)))
                for r in range(0, 8, 2): a("v_pk_mul_f32 %s, %s, %s" % (r2(G + r), r2(G + r), r2(E + r)))
                for r in range(4): a("v_cvt_pk_bf16_f32 v%d, v%d, v%d" % (t + r, G + 2 * r, G + 2 * r + 1))
                a("buffer_store_dwordx4 %s, v%d, %s, s%d offen offset:%d%s" % (r4(t), v_l16, WS, t0, p * 1024, SC))
            a("s_add_u32 s%d, s%d, s%d" % (t0, t0, s_ors))

XT = HB + 4 * MB
L_RED = 0
def row_addr(a, v):
    a("v_and_b32 v%d, 15, v%d\nv_lshlrev_b32 v%d, 11, v%d" % (v, v_lane, v, v))
    a("v_bfe_u32 v4, v%d, 4, 1\nv_lshl_add_u32 v%d, v4, 5, v%d\nv_lshrrev_b32 v4, 5, v%d\nv_lshl_add_u32 v%d, v4, 4, v%d" % (v_lane, v, v, v_lane, v, v))
    a("s_lshl_b32 s%d, s%d, 9\nv_add_u32 v%d, s%d, v%d" % (t0, s_w, v, t0, v))
def swap16(a, d):
    a("v_permlane16_swap_b32 v%d, v%d\nv_permlane16_swap_b32 v%d, v%d" % (d, d + 2, d + 1, d + 3))
def unpack(a, F, d):
    for r in range(4): a("v_lshlrev_b32 v%d, 16, v%d\nv_and_b32 v%d, 0xffff0000, v%d" % (F + 2 * r, d + r, F + 2 * r + 1, d + r))
def rowsum(a, v, tmp, slot):
    for sw in ("v_permlane32_swap_b32", "v_permlane16_swap_b32"):
        a("v_mov_b32 v%d, v%d\ns_nop 1\n%s v%d, v%d\nv_add_f32 v%d, v%d, v%d" % (tmp, v, sw, v, tmp, v, v, tmp))
    a("ds_write_b32 v6, v%d offset:%d\ns_waitcnt lgkmcnt(0)\ns_barrier\nds_read_b128 %s, v7 offset:%d\ns_waitcnt lgkmcnt(0)" % (v, slot * 256, r4(tmp), slot * 256))
    a("v_add_f32 v%d, v%d, v%d\nv_add_f32 v%d, v%d, v%d\nv_add_f32 v%d, v%d, v%d" % (tmp, tmp, tmp + 1, tmp + 2, tmp + 2, tmp + 3, v, tmp, tmp + 2))
def layernorm_store(a, F, D, s_dst):
    a("v_and_b32 v7, 15, v%d\nv_lshlrev_b32 v7, 4, v7\ns_lshl_b32 s%d, s%d, 2\nv_add_u32 v6, s%d, v7" % (v_lane, t0, s_w, t0))
    S, T = 8, 12
    a("v_pk_add_f32 %s, %s, %s" % (r2(S), r2(F), r2(F + 2)))
    for k in range(4, 64, 2): a("v_pk_add_f32 %s, %s, %s" % (r2(S), r2(S), r2(F + k)))
    a("v_add_f32 v%d, v%d, v%d" % (S, S, S + 1))
    rowsum(a, S, T, 0)
    a("v_mul_f32 v%d, %s, v%d" % (S, f32(-1.0 / 1024), S))
    for k in range(0, 64, 2): a("v_pk_add_f32 %s, %s, %s op_sel_hi:[1,0]" % (r2(F + k), r2(F + k), r2(S)))
    a("v_pk_mul_f32 %s, %s, %s" % (r2(S), r2(F), r2(F)))
    for k in range(2, 64, 2): a("v_pk_fma_f32 %s, %s, %s, %s" % (r2(S), r2(F + k), r2(F + k), r2(S)))
    a("v_add_f32 v%d, v%d, v%d" % (S, S, S + 1))
    rowsum(a, S, T, 1)
    a("v_mov_b32 v%d, %s\nv_fmac_f32 v%d, %s, v%d\nv_rsq_f32 v%d, v%d\ns_nop 0" % (T, f32(1e-5), T, f32(1.0 / 1024), S, S, T))
    a("s_lshl_b32 s%d, s%d, 13\ns_add_u32 s%d, s%d, s%d\ns_add_u32 s%d, s%d, 4096" % (t0, s_w, t0, t0, s_dst, t1, t0))
    for p in range(8):
        for k in range(0, 8, 2): a("v_pk_mul_f32 %s, %s, %s op_sel_hi:[1,0]" % (r2(F + 8 * p + k), r2(F + 8 * p + k), r2(S)))
        for r in range(4): a("v_cvt_pk_bf16_f32 v%d, v%d, v%d" % (D + 4 * p + r, F + 8 * p + 2 * r, F + 8 * p + 2 * r + 1))
        a("buffer_store_dwordx4 %s, v%d, %s, s%d offen offset:%d%s" % (r4(D + 4 * p), v_l16, WS, t1 if p >= 4 else t0, (p % 4) * 1024, SC))

def task_ln1(a, s_rg):
    D, F = 16, 48
    set_srd(a, 24, P_X, 4 * MB)
    row_addr(a, 5)
    a("s_lshl_b32 s%d, s%d, 15" % (t2, s_rg))
    for p in range(8): a("buffer_load_dwordx4 %s, v5, %s, s%d offen offset:%d" % (r4(D + 4 * p), XSRD, t2, p * 64))
    a("s_lshl_b32 s%d, s%d, 13\ns_add_u32 s%d, s%d, s%d\ns_add_u32 s%d, s%d, %d\ns_add_u32 s%d, s%d, 4096" % (t0, s_w, t0, t0, t2, t0, t0, XT, t1, t0))
    for p in range(8):
        a("s_waitcnt vmcnt(7)")
        swap16(a, D + 4 * p)
        a("buffer_store_dwordx4 %s, v%d, %s, s%d offen offset:%d%s" % (r4(D + 4 * p), v_l16, WS, t1 if p >= 4 else t0, (p % 4) * 1024, SC))
        unpack(a, F + 8 * p, D + 4 * p)
    a("s_add_u32 s%d, s%d, %d" % (t2, t2, XN))
    layernorm_store(a, F, D, t2)

def sum_partials(a, s_rg, F, D, nsplit, pbase, pstride, res_base):
    P = 112
    a("s_lshl_b32 s%d, s%d, 15\ns_lshl_b32 s%d, s%d, 13\ns_add_u32 s%d, s%d, s%d" % (t2, s_rg, t0, s_w, t3, t0, t2))
    a("s_add_u32 s%d, s%d, %d\ns_add_u32 s%d, s%d, 4096" % (t0, t3, res_base, t1, t0))
    for p in range(8): a("buffer_load_dwordx4 %s, v%d, %s, s%d offen offset:%d%s" % (r4(D + 4 * p), v_l16, WS, t1 if p >= 4 else t0, (p % 4) * 1024, SC))
    def issue(sp):
        if isinstance(pbase, int): a("s_lshl_b32 s%d, s%d, 1\ns_add_u32 s%d, s%d, %d" % (t0, t3, t0, t0, pbase + sp * pstride))
        else: a("s_lshl_b32 s%d, s%d, 1\ns_add_u32 s%d, s%d, %s\ns_add_u32 s%d, s%d, %d" % (t0, t3, t0, t0, pbase, t0, t0, sp * pstride))
        for t in range(16):
            a("buffer_load_dwordx4 %s, v%d, %s, s%d offen offset:%d%s" % (r4(P + 64 * (sp % 2) + 4 * t), v_l16, WS, t0, (t % 4) * 1024, SC))
            if t % 4 == 3 and t < 15: a("s_add_u32 s%d, s%d, 4096" % (t0, t0))
    issue(0)
    if nsplit > 1: issue(1)
    a("s_waitcnt vmcnt(%d)" % (32 if nsplit > 1 else 16))
    for p in range(8): unpack(a, F + 8 * p, D + 4 * p)
    for sp in range(nsplit):
        a("s_waitcnt vmcnt(%d)" % (16 if sp + 1 < nsplit else 0))
        for k in range(0, 64, 2): a("v_pk_add_f32 %s, %s, %s" % (r2(F + k), r2(F + k), r2(P + 64 * (sp % 2) + k)))
        if sp + 2 < nsplit: issue(sp + 2)

def task_ln2(a, s_rg, nsplit, pbase, pstride):
    D, F = 16, 48
    sum_partials(a, s_rg, F, D, nsplit, pbase, pstride, XT)
    a("s_add_u32 s%d, s%d, %d\ns_add_u32 s%d, s%d, 4096" % (t0, t3, HB, t1, t0))
    for p in range(8):
        for r in range(4): a("v_cvt_pk_bf16_f32 v%d, v%d, v%d" % (D + 4 * p + r, F + 8 * p + 2 * r, F + 8 * p + 2 * r + 1))
        a("buffer_store_dwordx4 %s, v%d, %s, s%d offen offset:%d%s" % (r4(D + 4 * p), v_l16, WS, t1 if p >= 4 else t0, (p % 4) * 1024, SC))
        unpack(a, F + 8 * p, D + 4 * p)
    a("s_add_u32 s%d, s%d, %d" % (t2, t2, HN))
    layernorm_store(a, F, D, t2)

def task_fin(a, s_rg, nsplit, pbase, pstride):
    D, F = 16, 48
    sum_partials(a, s_rg, F, D, nsplit, pbase, pstride, HB)
    set_srd(a, 24, P_OUT, 4 * MB)
    row_addr(a, 5)
    for p in range(8):
        for r in range(4): a("v_cvt_pk_bf16_f32 v%d, v%d, v%d" % (D + 4 * p + r, F + 8 * p + 2 * r, F + 8 * p + 2 * r + 1))
        a("s_nop 1")
        swap16(a, D + 4 * p)
        a("buffer_store_dwordx4 %s, v5, %s, s%d offen offset:%d" % (r4(D + 4 * p), XSRD, t2, p * 64))

def att_setup(a):
    a("v_lshlrev_b32 v8, 3, v%d\nv_and_b32 v4, 15, v%d\nv_lshrrev_b32 v5, 4, v%d\nv_lshlrev_b32 v6, 2, v5\nv_mov_b32 v7, 0xff000000\nv_mov_b32 v9, 0" % (v_lane, v_lane, v_lane))
    for r in range(4):
        a("v_add_u32 v10, %d, v6\nv_cmp_gt_u32 vcc, v10, v4\ns_nop 1\nv_cndmask_b32 v%d, v9, v7, vcc" % (r, 12 + r))
    a("v_cmp_gt_u32 vcc, 2, v5\ns_nop 1")
    for r in range(4): a("v_cndmask_b32 v%d, v9, v7, vcc\nv_mov_b32 v%d, 0x3f803f80" % (16 + r, 20 + r))
    a("s_mov_b32 s42, %s" % f32(128 ** -0.5 * math.log2(math.e)))

def task_att(a, s_seg, s_head):
    Q, K, V, KMr, VMr = 24, 56, 88, 120, 136
    a("s_lshl_b32 s%d, s%d, 18\ns_lshl_b32 s%d, s%d, 12\ns_add_u32 s%d, s%d, s%d" % (t2, s_seg, t3, s_head, t2, t2, t3))
    for base, R in ((KX, K), (QX, Q)):
        for tb in range(2):
            a("s_add_u32 s%d, s%d, %d" % (t0, t2, base + tb * 131072))
            for kp in range(4): a("buffer_load_dwordx4 %s, v%d, %s, s%d offen offset:%d%s" % (r4(R + 16 * tb + 4 * kp), v_l16, WS, t0, kp * 1024, SC))
    a("s_lshl_b32 s%d, s%d, 17\ns_add_u32 s%d, s%d, s%d\ns_add_u32 s%d, s%d, %d" % (t1, s_seg, t1, t1, t3, t0, t1, KM))
    for T in range(8): a("buffer_load_dwordx2 %s, v8, %s, s%d offen offset:%d%s" % (r2(KMr + 2 * T), WS, t0, T * 512, SC))
    a("s_add_u32 s%d, s%d, s%d\ns_add_u32 s%d, s%d, %d" % (t0, t2, t3, t0, t0, VT))
    for T in range(8):
        a("buffer_load_dwordx4 %s, v%d, %s, s%d offen offset:%d%s" % (r4(V + 4 * T), v_l16, WS, t0, (T % 4) * 1024, SC))
        if T == 3: a("s_add_u32 s%d, s%d, 4096" % (t0, t0))
    a("s_add_u32 s%d, s%d, %d" % (t0, t1, VM))
    for T in range(8): a("buffer_load_dwordx2 %s, v8, %s, s%d offen offset:%d%s" % (r2(VMr + 2 * T), WS, t0, T * 512, SC))
    S = 152
    tiles = [(S, KMr, 0, "v[16:19]"), (S + 4, K, 0, "v[12:15]"), (S + 12, KMr, 1, "v[16:19]"), (S + 16, K, 1, "0"), (S + 20, K + 16, 1, "v[12:15]")]
    a("s_waitcnt vmcnt(16)")
    for kp in range(4):
        for D, Aop, qt, C in tiles:
            a("v_mfma_f32_16x16x32_bf16 %s, %s, %s, %s" % (r4(D), r4(Aop + 4 * kp), r4(Q + 16 * qt + 4 * kp), C if kp == 0 else r4(D)))
    nop(a, 8)
    PX, PZ = 176, 184
    for qt in range(2):
        b = S + 12 * qt; n = 8 + 4 * qt; M = 200
        a("v_max3_f32 v%d, v%d, v%d, v%d" % (M, b, b + 1, b + 2))
        for k in range(3, n - 1, 2): a("v_max3_f32 v%d, v%d, v%d, v%d" % (M, b + k, b + k + 1, M))
        a("v_max_f32 v%d, v%d, v%d" % (M, b + n - 1, M))
        for sw in ("v_permlane32_swap_b32", "v_permlane16_swap_b32"):
            a("v_mov_b32 v%d, v%d\ns_nop 1\n%s v%d, v%d\nv_max_f32 v%d, v%d, v%d" % (M + 1, M, sw, M, M + 1, M, M, M + 1))
        a("v_mul_f32 v%d, s42, v%d" % (M, M))
        for k in range(n): a("v_fma_f32 v%d, v%d, s42, -v%d" % (b + k, b + k, M))
        for k in range(n): a("v_exp_f32 v%d, v%d" % (b + k, b + k))
        px, pz = PX + 4 * qt, PZ + 6 * qt
        for r in (0, 4): a("v_mov_b64 %s, 0" % r2(pz + r))
        a("v_cvt_pk_bf16_f32 v%d, v%d, v%d\nv_cvt_pk_bf16_f32 v%d, v%d, v%d" % (pz + 2, b, b + 1, pz + 3, b + 2, b + 3))
        a("v_cvt_pk_bf16_f32 v%d, v%d, v%d\nv_cvt_pk_bf16_f32 v%d, v%d, v%d" % (px, b + 4, b + 5, px + 1, b + 6, b + 7))
        if qt: a("v_cvt_pk_bf16_f32 v%d, v%d, v%d\nv_cvt_pk_bf16_f32 v%d, v%d, v%d" % (px + 2, b + 8, b + 9, px + 3, b + 10, b + 11))
        else: a("v_mov_b64 %s, 0" % r2(px + 2))
    a("s_waitcnt vmcnt(0)")
    O, L = 24, 152
    for qt in range(2):
        px, pz = PX + 4 * qt, PZ + 6 * qt
        a("v_mfma_f32_16x16x32_bf16 %s, v[20:23], %s, 0" % (r4(L + 4 * qt), r4(px)))
        a("v_mfma_f32_16x16x32_bf16 %s, v[20:23], %s, %s" % (r4(L + 4 * qt), r4(pz), r4(L + 4 * qt)))
        for T in range(8):
            o = r4(O + 32 * qt + 4 * T)
            a("v_mfma_f32_16x16x32_bf16 %s, %s, %s, 0" % (o, r4(V + 4 * T), r4(px)))
            a("v_mfma_f32_16x16x32_bf16 %s, %s, %s, %s" % (o, r4(VMr + 4 * (T // 2)), r4(pz + (0 if T % 2 else 2)), o))
    a("v_rcp_f32 v200, v%d\nv_rcp_f32 v202, v%d" % (L, L + 4))
    nop(a, 6)
    for qt in range(2):
        a("s_add_u32 s%d, s%d, %d" % (t0, t2, OA + qt * 131072))
        for p in range(4):
            o = O + 32 * qt + 8 * p; d = 160 + 4 * (p % 4)
            for k in range(0, 8, 2): a("v_pk_mul_f32 %s, %s, %s op_sel_hi:[1,0]" % (r2(o + k), r2(o + k), r2(200 + 2 * qt)))
            for r in range(4): a("v_cvt_pk_bf16_f32 v%d, v%d, v%d" % (d + r, o + 2 * r, o + 2 * r + 1))
            a("buffer_store_dwordx4 %s, v%d, %s, s%d offen offset:%d%s" % (r4(d), v_l16, WS, t0, p * 1024, SC))
```

```python
import sys
from asmlib import *
from layout import *
from tasks import *
import chain_gen as CH
HDR = open("sequential_preLN__memory_aug_recurrent_mem_tr__swiglu_ffn__prompt.s.ref").read().split("; Override launch")[0] if __name__ == "__main__" else ""

def prologue(a, name, nwg):
    kernel_begin(a, name)
    a("s_cmp_ge_u32 s2, %d\ns_cbranch_scc1 L_%s_end" % (nwg, name))
    a("s_load_dwordx2 s[6:7], s[0:1], 104\nv_and_b32 v1, 63, v0\nv_lshrrev_b32 v3, 6, v0")
    load_ptrs(a)
    a("v_readfirstlane_b32 s%d, v3" % s_w)
    set_srd(a, 8, 6, WS_BYTES)
def epilogue(a, name):
    a("L_%s_end:\ns_endpgm" % name)
def xswz(a, n):
    a("s_and_b32 s3, s2, 7\ns_mul_i32 s3, s3, %d\ns_lshr_b32 s4, s2, 3\ns_add_u32 s3, s3, s4" % (n // 8))
def half_off(a, g):
    a("s_lshr_b32 s%d, s%d, 1\ns_mul_i32 s%d, s%d, %d\ns_add_u32 s%d, s%d, s%d" % (t0, s_w, t0, t0, g.BN, s_woff, s_woff, t0))

def gen(upto=99, ckw={}):
    a = Asm(); L = []; D = []
    prologue(a, "ln1_kernel", 128); task_ln1(a, 2); epilogue(a, "ln1_kernel"); L.append(("ln1_kernel", 128, 1024))
    gA = Gemm("ga", 8, 8, 4); gV = Gemm("gv", 8, 8, 4, swap=True)
    prologue(a, "qkv_kernel", 384); xswz(a, 384)
    a("s_and_b32 s43, s3, 7\ns_lshr_b32 s44, s3, 3\ns_and_b32 s45, s44, 15\ns_lshr_b32 s44, s44, 4")
    a("s_lshl_b32 s%d, s43, 19\ns_add_u32 s%d, s%d, %d\ns_mov_b32 s%d, 32768\ns_mov_b32 s%d, 8192\ns_mov_b32 s%d, 8\ns_lshl_b32 s%d, s45, 9" % (s_xoff, s_xoff, s_xoff, XN, s_xrs, s_ldw, s_ngrp, s_woff))
    half_off(a, gA)
    a("s_cmp_eq_u32 s44, 2\ns_cbranch_scc1 L_isv")
    a("s_cmp_eq_u32 s44, 0\ns_cselect_b32 s12, s%d, s%d\ns_cselect_b32 s13, s%d, s%d\ns_cselect_b32 s%d, %d, %d\ns_mov_b32 s14, 0x800000\ns_mov_b32 s15, 0x00020000" % (P_WQ, P_WK, P_WQ + 1, P_WK + 1, s_obase, 4, 20))
    a("s_lshl_b32 s%d, s%d, 20\ns_lshl_b32 s4, s43, 21\ns_add_u32 s%d, s%d, s4\ns_lshl_b32 s4, s45, 13\ns_add_u32 s%d, s%d, s4\ns_mov_b32 s%d, 131072\ns_mov_b32 s%d, 4096" % (
        s_obase, s_obase, s_obase, s_obase, s_obase, s_obase, s_ors, s_ohalf))
    gA.body(a); gA.epi_t16(a); a("s_endpgm\nL_isv:")
    set_w(a, P_WV, P_WV, 8 * MB)
    a("s_lshl_b32 s%d, s43, 21\ns_lshl_b32 s4, s45, 14\ns_add_u32 s%d, s%d, s4\ns_add_u32 s%d, s%d, %d\ns_mov_b32 s%d, 262144\ns_mov_b32 s%d, 8192" % (
        s_obase, s_obase, s_obase, s_obase, s_obase, VT, s_ors, s_ohalf))
    gV.body(a); gV.epi_vt(a)
    epilogue(a, "qkv_kernel"); L.append(("qkv_kernel", 384, 131072))
    a(CH.gen(stamps=0, header=False, desc=False, **ckw)); L.append(("chain_kernel", 256, CH.LDS_BYTES))
    prologue(a, "att_kernel", 512); att_setup(a)
    a("s_lshr_b32 s43, s2, 3\ns_and_b32 s44, s2, 7\ns_lshl_b32 s44, s44, 2\ns_add_u32 s44, s44, s%d" % s_w)
    task_att(a, 43, 44); epilogue(a, "att_kernel"); L.append(("att_kernel", 512, 0))
    def proj(name, X, xrs, ksteps, pw, wbytes):
        g = Gemm(name, 8, 4, 4)
        prologue(a, name + "_kernel", 256); xswz(a, 256)
        a("s_and_b32 s43, s3, 7\ns_lshr_b32 s44, s3, 3\ns_and_b32 s45, s44, 7\ns_lshr_b32 s44, s44, 3")
        a("s_mul_i32 s%d, s43, %d\ns_mul_i32 s4, s44, %d\ns_add_u32 s%d, s%d, s4\ns_add_u32 s%d, s%d, %d" % (s_xoff, 16 * xrs, ksteps * 1024, s_xoff, s_xoff, s_xoff, s_xoff, X))
        a("s_mov_b32 s%d, %d\ns_mov_b32 s%d, 2048\ns_mov_b32 s%d, %d" % (s_xrs, xrs, s_ldw, s_ngrp, ksteps // 4))
        a("s_mul_i32 s%d, s44, %d\ns_lshl_b32 s4, s45, 8\ns_add_u32 s%d, s%d, s4" % (s_woff, ksteps * 32 * 2048, s_woff, s_woff))
        half_off(a, g); set_w(a, pw, pw, wbytes)
        a("s_lshl_b32 s%d, s44, 23\ns_lshl_b32 s4, s43, 20\ns_add_u32 s%d, s%d, s4\ns_lshl_b32 s4, s45, 13\ns_add_u32 s%d, s%d, s4\ns_add_u32 s%d, s%d, %d\ns_mov_b32 s%d, 65536\ns_mov_b32 s%d, 4096" % (
            s_obase, s_obase, s_obase, s_obase, s_obase, s_obase, s_obase, PART, s_ors, s_ohalf))
        g.body(a); g.epi_f32(a); epilogue(a, name + "_kernel"); L.append((name + "_kernel", 256, g.stage * 4))
    proj("op", OA, 131072, 32, P_WO, 8 * MB)
    prologue(a, "ln2_kernel", 128); task_ln2(a, 2, 4, PART, 8 * MB); epilogue(a, "ln2_kernel"); L.append(("ln2_kernel", 128, 1024))
    g = Gemm("gu", 8, 8, 4)
    prologue(a, "gu_kernel", 224); xswz(a, 224)
    a("s_and_b32 s43, s3, 7\ns_lshr_b32 s45, s3, 3")
    a("s_lshl_b32 s%d, s43, 19\ns_add_u32 s%d, s%d, %d\ns_mov_b32 s%d, 32768\ns_mov_b32 s%d, 7168\ns_mov_b32 s%d, 8\ns_lshl_b32 s%d, s45, 8" % (s_xoff, s_xoff, s_xoff, HN, s_xrs, s_ldw, s_ngrp, s_woff))
    set_w(a, P_WG, P_WU, 1024 * 7168)
    a("s_mul_i32 s%d, s43, %d\ns_lshl_b32 s4, s45, 12\ns_add_u32 s%d, s%d, s4\ns_add_u32 s%d, s%d, %d\ns_mov_b32 s%d, %d" % (s_obase, 16 * 114688, s_obase, s_obase, s_obase, s_obase, ACT, s_ors, 114688))
    g.body(a); g.epi_gu(a); epilogue(a, "gu_kernel"); L.append(("gu_kernel", 224, 131072))
    proj("dp", ACT, 114688, 28, P_WD, 3584 * 2048)
    prologue(a, "fin_kernel", 128); task_fin(a, 2, 4, PART, 8 * MB); epilogue(a, "fin_kernel"); L.append(("fin_kernel", 128, 1024))
    for n, _, _ in L: kernel_desc(a, n, 512 if n not in ("ln1_kernel", "ln2_kernel", "fin_kernel", "att_kernel") else 256, 102, 256)
    head = "".join("; @launch kernel=%s grid=(%d,1,1) block=(256,1,1) lds=%d\n" % x for x in L[:upto])
    return head + '.amdgcn_target "amdgcn-amd-amdhsa--gfx950"\n' + a.text()
if __name__ == "__main__":
    open(sys.argv[1], "w").write(HDR + gen(ckw=dict(fdelay=32, rdelay=40, rgap=24, xd1=0)))
```

```python
import sys
from asmlib import *
from layout import *

L_WO = 0; L_PL = 98304; L_PR = 114688; L_KX = 131072; L_VX = 139264; L_F = 147456; L_O = 151552; L_VM = 153600
L_DUM = 157696; L_MISC = 158720
LDS_BYTES = 163840
OOB = 0x80000000
SPIN = 100000

def nop(a, n):
    while n > 0:
        k = min(n, 16); a("s_nop %d" % (k - 1)); n -= k

def srd(a, d, lo, hi, nbytes):
    a("s_mov_b32 s%d, s%d\ns_mov_b32 s%d, s%d\ns_mov_b32 s%d, 0x%x\ns_mov_b32 s%d, 0x00020000" % (d, lo, d + 1, hi, d + 2, nbytes, d + 3))

S_WS = 8; S_W = 12; S_DBG = 16
s_xcc, s_w, s_i, s_x, s_h, s_b, s_step, s_spin = 20, 21, 22, 23, 24, 25, 26, 27
s_sent, s_scale = 28, 29
s_t0, s_t1, s_t2, s_t3 = 4, 5, 6, 7
o_qk_own, o_qk_par, o_vx_own, o_vx_par = 30, 31, 32, 33
o_i3st = 34
o_i3ld, o_pl, o_pr, o_plf, o_prf = 38, 39, 40, 41, 42
m_pl, m_kv = 43, 44
o_kv, o_km, o_kmn = 45, 46, 47
CUR, NXT, P2 = "s[12:15]", "s[48:51]", "s[52:55]"
WS = "s[8:11]"
MK = "s[4:5]"
v_af, v_lane, v_l16, v_l8, v_idx, v_cinit, v_pst, v_i3st, v_i3l0, v_i3l1, v_fown, v_fpar, v_owr, v_flag, v_word, v_ahi = range(0, 16)
v_avx = 1
v_sent = 16; v_ord = 18; v_kmr = 19; v_ones = 20; v_sel = 24
v_aq, v_ak, v_av = 28, 32, 36
V_WO = 96; V_WV = 128
HI = 98304

def r4(v): return "v[%d:%d]" % (v, v + 3)
def r2(v): return "v[%d:%d]" % (v, v + 1)
def r8(v): return "v[%d:%d]" % (v, v + 7)

def wtile(m, f):
    if m == 0: return "a[%d:%d]" % (8 * f, 8 * f + 7)
    if m == 1: return "a[%d:%d]" % (128 + 8 * f, 128 + 8 * f + 7)
    return "v[%d:%d]" % (V_WV + 8 * f, V_WV + 8 * f + 7)

class LQ:
    def __init__(self, a): self.a = a; self.q = []
    def op(self, ins, tag=None): self.a(ins); self.q.append(tag)
    def need(self, tag):
        if tag not in self.q: return
        k = len(self.q) - 1 - self.q[::-1].index(tag)
        self.a("s_waitcnt lgkmcnt(%d)" % (len(self.q) - 1 - k)); self.q = self.q[k + 1:]
    def all(self):
        self.a("s_waitcnt lgkmcnt(0)"); self.q = []

def emit_chain(a, stamps=False, nsteps=64, pq=(5, 9, 12, 15), rdelay=0, nokv=0, nokm=0, tw=0, xd0=0, xd1=24, fdelay=0, forcec=None, focus=None, rgap=0, vpos=0, align=0, mega=0):
    A = a
    def stamp(k):
        if focus:
            k = focus.get(k)
            if k is None: return
        elif not isinstance(k, int): return
        if stamps > 1: A("s_memtime s[%d:%d]" % (60 + 2 * k, 61 + 2 * k))
    def cnt(k):
        if stamps: A("s_add_u32 s%d, s%d, 1" % (96 + k, 96 + k))
    A("s_lshr_b32 s%d, s%d, 1\ns_lshl_b32 s%d, s%d, 4\ns_add_u32 s%d, s%d, s%d\ns_and_b32 s%d, s%d, 1" % (s_h, s_i, s_t0, s_x, s_h, s_h, s_t0, s_b, s_i))
    A("s_mov_b32 s%d, 0x%x" % (s_sent, SENT))
    import struct, math
    sc = struct.unpack("<I", struct.pack("<f", 128 ** -0.5 * math.log2(math.e)))[0]
    A("s_mov_b32 s%d, 0x%x" % (s_scale, sc))
    T = 40
    A("v_lshlrev_b32 v%d, 4, v%d\nv_lshlrev_b32 v%d, 3, v%d" % (v_l16, v_lane, v_l8, v_lane))
    A("v_and_b32 v%d, 15, v%d" % (T, v_lane))
    A("v_lshrrev_b32 v%d, 4, v%d" % (T + 1, v_lane))
    A("v_and_b32 v%d, 7, v%d" % (T + 2, v_lane))
    A("v_cmp_gt_u32 vcc, 8, v%d" % T)
    A("v_mov_b32 v%d, 0xeeee\nv_mov_b32 v%d, 0x4444" % (T + 3, T + 4))
    A("v_cndmask_b32 v%d, v%d, v%d, vcc" % (v_idx, T + 3, T + 4))
    A("v_lshl_add_u32 v%d, v%d, 3, v%d\nv_lshlrev_b32 v%d, 4, v%d" % (T + 5, T + 1, T + 2, T + 5, T + 5))
    A("s_lshl_b32 s%d, s%d, 9\ns_cmp_eq_u32 s%d, 0\ns_cselect_b32 s%d, s%d, 0x%x" % (s_t0, s_i, s_w, s_t0, s_t0, OOB))
    A("v_and_b32 v%d, 8, v%d\nv_add3_u32 v%d, s%d, v%d, v%d" % (T + 6, v_lane, v_pst, s_t0, T + 5, T + 6))
    A("s_lshl_b32 s%d, s%d, 9\ns_add_u32 s%d, s%d, %d" % (s_t0, s_w, s_t0, s_t0, L_O))
    A("v_add_u32 v%d, s%d, v%d\nv_add_u32 v%d, %d, v%d" % (T + 6, s_t0, T + 5, T + 7, L_DUM, v_l16))
    A("v_cndmask_b32 v%d, v%d, v%d, vcc" % (v_owr, T + 7, T + 6))
    A("v_cmp_gt_u32 vcc, 2, v%d\nv_mov_b32 v%d, 0\nv_mov_b32 v%d, 0xff000000" % (T + 1, T + 3, T + 4))
    A("v_cndmask_b32 v%d, v%d, v%d, vcc" % (v_cinit, T + 3, T + 4))
    A("v_lshrrev_b32 v%d, 1, v%d\nv_lshl_add_u32 v%d, v%d, 4, v%d\nv_lshlrev_b32 v%d, 4, v%d" % (T + 3, T + 1, T + 3, T + 3, T, T + 3, T + 3))
    A("v_and_b32 v%d, 1, v%d\nv_lshl_add_u32 v%d, v%d, 3, v%d" % (T + 4, T + 1, v_i3st, T + 4, T + 3))
    A("v_lshl_add_u32 v%d, v%d, 9, v%d\nv_add_u32 v%d, 4096, v%d" % (v_i3l0, T + 4, T + 3, v_i3l1, v_i3l0))
    A("v_lshlrev_b32 v%d, 5, v%d\nv_lshl_add_u32 v%d, v%d, 3, v%d" % (T + 3, T, T + 3, T + 1, T + 3))
    A("s_lshl_b32 s%d, s%d, 2\ns_add_u32 s%d, s%d, s%d\ns_lshl_b32 s%d, s%d, 9\ns_add_u32 s%d, s%d, %d" % (s_t0, s_b, s_t0, s_t0, s_w, s_t0, s_t0, s_t0, s_t0, L_F))
    A("v_add_u32 v%d, s%d, v%d\nv_xor_b32 v%d, 2048, v%d" % (v_fown, s_t0, T + 3, v_fpar, v_fown))
    assert L_F % 4096 == 0
    A("s_lshl_b32 s%d, s%d, 12\ns_add_u32 s%d, s%d, %d\nv_add_u32 v%d, s%d, v%d" % (s_t0, s_w, s_t0, s_t0, L_PL, v_flag, s_t0, v_l16))
    A("v_lshl_add_u32 v%d, v%d, 3, v%d\nv_lshlrev_b32 v%d, 4, v%d\nv_add_u32 v%d, %d, v%d" % (v_ord, T + 1, T + 2, v_ord, v_ord, v_ord, L_O, v_ord))
    A("s_mul_i32 s%d, s%d, 24576\nv_add_u32 v%d, s%d, v%d" % (s_t0, s_w, v_word, s_t0, v_l16))
    A("v_add_u32 v%d, %d, v%d\nv_add_u32 v%d, %d, v%d" % (v_ahi, HI, v_l16, v_af, L_F, v_l8))
    for k in range(2): A("v_mov_b32 v%d, s%d" % (v_sent + k, s_sent))
    A("v_and_b32 v%d, 0xffffe00, v%d\nv_add_u32 v%d, v%d, v%d" % (v_kmr, v_fown, v_kmr, v_kmr, v_l8))
    A("v_mov_b32 v%d, 0x3f80\nv_mov_b32 v%d, 0x3f800000\nv_mov_b32 v%d, 0" % (T + 3, T + 4, T + 5))
    for q in range(4):
        A("v_cmp_eq_u32 vcc, %d, v%d\ns_nop 1\nv_cndmask_b32 v%d, v%d, v%d, vcc" % (2 * q, T + 2, v_sel + q, T + 5, T + 3))
        A("v_cmp_eq_u32 vcc, %d, v%d\ns_nop 1\nv_cndmask_b32 v%d, v%d, v%d, vcc" % (2 * q + 1, T + 2, v_sel + q, v_sel + q, T + 4))
    A("v_lshrrev_b32 v%d, 5, v%d\nv_bfe_u32 v%d, v%d, 3, 1\nv_cmp_eq_u32 vcc, v%d, v%d\ns_nop 1" % (T + 6, v_lane, T + 7, v_lane, T + 6, T + 7))
    for q in range(4): A("v_cndmask_b32 v%d, v%d, v%d, vcc" % (v_sel + q, T + 5, v_sel + q))
    A("s_lshl_b32 s%d, s%d, 5\ns_add_u32 s%d, s%d, s%d" % (s_t0, s_x, s_t0, s_t0, s_i))
    A("s_lshl_b32 s%d, s%d, 2\ns_add_u32 s%d, s%d, s%d\ns_lshl_b32 s%d, s%d, 9" % (s_t1, s_t0, s_t1, s_t1, s_w, s_t1, s_t1))
    A("s_add_u32 s%d, s%d, %d\ns_xor_b32 s%d, s%d, 2048" % (o_qk_own, s_t1, R_QK, o_qk_par, o_qk_own))
    A("s_add_u32 s%d, s%d, %d\ns_xor_b32 s%d, s%d, 2048" % (o_vx_own, s_t1, R_VX, o_vx_par, o_vx_own))
    A("s_lshl_b32 s%d, s%d, 2\ns_add_u32 s%d, s%d, s%d\ns_lshl_b32 s%d, s%d, 6" % (s_t1, s_b, s_t1, s_t1, s_w, s_t1, s_t1))
    A("s_lshr_b32 s%d, s%d, 1\ns_add_u32 s%d, s%d, s%d\ns_lshl_b32 s%d, s%d, 9" % (s_t2, s_i, s_t1, s_t1, s_t2, s_t1, s_t1))
    A("s_lshl_b32 s%d, s%d, 18\ns_add_u32 s%d, s%d, %d" % (s_t2, s_x, s_t2, s_t2, R_I3))
    A("s_add_u32 s%d, s%d, s%d" % (o_i3st, s_t1, s_t2))
    for u in range(1, 4): A("s_add_u32 s%d, s%d, %d" % (o_i3st + u, o_i3st, u * 8192))
    A("s_lshl_b32 s%d, s%d, 13\ns_add_u32 s%d, s%d, s%d" % (s_t1, s_i, o_i3ld, s_t1, s_t2))
    A("s_lshr_b32 s%d, s%d, 1\ns_lshl_b32 s%d, s%d, 14\ns_lshl_b32 s%d, s%d, 12\ns_add_u32 s%d, s%d, s%d\ns_add_u32 s101, s%d, %d" % (s_t1, s_t0, s_t1, s_t1, s_t2, s_b, s_t1, s_t1, s_t2, s_t1, PRB))
    A("s_lshl_b32 s%d, s%d, 14\ns_add_u32 s%d, s%d, %d" % (s_t1, s_x, o_pl, s_t1, R_PL))
    A("s_lshl_b32 s%d, s%d, 12\ns_add_u32 s%d, s%d, s%d" % (s_t1, s_w, o_plf, o_pl, s_t1))
    A("s_add_u32 s%d, s%d, %d\ns_add_u32 s%d, s%d, %d" % (m_pl, s_t1, L_PL, m_kv, s_t1, L_KX))
    A("s_lshl_b32 s%d, s%d, 12\ns_lshl_b32 s%d, s%d, 17\ns_add_u32 s%d, s%d, s%d\ns_add_u32 s%d, s%d, %d" % (s_t0, s_h, s_t2, s_w, s_t2, s_t2, s_t0, s_t2, s_t2, KX))
    A("s_lshl_b32 s%d, s%d, 13\ns_add_u32 s%d, s%d, s%d\ns_add_u32 s%d, s%d, %d" % (s_t3, s_h, s_t3, s_t3, s_t1, s_t3, s_t3, VT - 8192))
    A("s_cmp_lt_u32 s%d, 2\ns_cselect_b32 s%d, s%d, s%d" % (s_w, o_kv, s_t2, s_t3))
    A("s_lshl_b32 s%d, s%d, 2\ns_add_u32 s%d, s%d, s%d\ns_lshl_b32 s%d, s%d, 9\ns_add_u32 s%d, s%d, s%d\ns_add_u32 s%d, s%d, %d" % (
        s_t2, s_b, s_t2, s_t2, s_w, s_t2, s_t2, s_t2, s_t2, s_t0, 100, s_t2, KM))
    A("s_mov_b32 s%d, 0x%x\ns_mov_b32 s%d, 0x%x" % (o_km, OOB, o_kmn, OOB))
    def set_slot(srdname, off):
        d = int(srdname[2:srdname.index(":")])
        return ["s_add_u32 s%d, s8, %s" % (d, off), "s_addc_u32 s%d, s9, 0" % (d + 1)]
    def poisons(srd_):
        out = ["buffer_store_dwordx2 %s, v%d, %s, s%d offen" % (r2(v_sent), v_l8, srd_, o_qk_own),
               "buffer_store_dwordx2 %s, v%d, %s, s%d offen" % (r2(v_sent), v_l8, srd_, o_vx_own)]
        out += ["buffer_store_dwordx2 %s, v%d, %s, s%d offen" % (r2(v_sent), v_i3st, srd_, o_i3st + u) for u in range(4)]
        out += ["buffer_store_dwordx2 %s, v%d, %s, s%d offen" % (r2(v_sent), v_pst, srd_, o_pl)]
        return out
    A("s_mov_b32 s14, %d\ns_mov_b32 s15, 0x00020000" % SLOT)
    for sl in range(2):
        for x in set_slot(CUR, RING + sl * SLOT) + poisons(CUR): A(x)
    A("s_lshr_b32 s%d, s%d, 1\ns_lshl_b32 s%d, s%d, 19\ns_and_b32 s%d, s%d, 1\ns_lshl_b32 s%d, s%d, 13\ns_add_u32 s%d, s%d, s%d\ns_add_u32 s%d, s%d, s101" % (
        s_t0, s_w, s_t0, s_t0, s_t1, s_w, s_t1, s_t1, s_t0, s_t0, s_t1, s_t0, s_t0))
    A("buffer_store_dwordx2 %s, v%d, %s, s%d offen sc1" % (r2(v_sent), v_l8, WS, s_t0))
    A("s_waitcnt vmcnt(0)\ns_barrier")
    A("s_cmp_eq_u32 s%d, 0\ns_cselect_b32 s101, s101, 0x%x" % (s_w, OOB))
    A("s_mov_b32 s%d, 1" % o_prf)
    A("s_cmp_lg_u32 s%d, 0\ns_cbranch_scc1 L_c_nocal" % s_w)
    A("s_mov_b32 s52, -1\ns_mov_b32 s53, -1")
    for it in range(2):
        for hf in ((0, 1) if it == 0 else (1, 0)):
            A("s_add_u32 s%d, s101, %d\ns_memtime s[48:49]\ns_waitcnt lgkmcnt(0)" % (s_t0, 3 * 524288 + hf * 8192 + it * 1024))
            A("buffer_store_dword v%d, v%d, %s, s%d offen sc1\ns_waitcnt vmcnt(0)\ns_memtime s[50:51]\ns_waitcnt lgkmcnt(0)" % (v_sent, v_l8, WS, s_t0))
            A("s_sub_u32 s50, s50, s48\ns_min_u32 s%d, s%d, s50" % (52 + hf, 52 + hf))
    A("s_cmp_lt_u32 s53, s52\ns_cselect_b32 s%d, 0x10001, 1" % o_prf)
    if forcec is not None: A("s_mov_b32 s%d, %d" % (o_prf, 1 + (forcec << 16)))
    A("L_c_nocal:\ns_barrier")
    A("s_waitcnt vmcnt(0)")
    A("s_load_dwordx8 s[48:55], s[0:1], 16")
    vq, vo, vrq, vro = T, T + 1, T + 2, T + 3
    A("v_lshrrev_b32 v%d, 3, v%d\nv_lshlrev_b32 v%d, 13, v%d\nv_and_b32 v%d, 7, v%d\nv_lshl_add_u32 v%d, v%d, 4, v%d" % (T + 4, v_lane, T + 4, T + 4, T + 5, v_lane, vq, T + 5, T + 4))
    A("v_bfe_u32 v%d, v%d, 5, 1\nv_lshlrev_b32 v%d, 3, v%d" % (T + 4, v_lane, T + 4, T + 4))
    A("v_bfe_u32 v%d, v%d, 3, 1\nv_lshl_add_u32 v%d, v%d, 2, v%d" % (T + 5, v_lane, T + 4, T + 5, T + 4))
    A("v_bfe_u32 v%d, v%d, 2, 1\nv_add_u32 v%d, v%d, v%d" % (T + 5, v_lane, T + 4, T + 5, T + 4))
    A("v_bfe_u32 v%d, v%d, 4, 1\nv_lshl_add_u32 v%d, v%d, 4, v%d" % (T + 5, v_lane, T + 4, T + 5, T + 4))
    A("v_and_b32 v%d, 3, v%d\nv_lshlrev_b32 v%d, 3, v%d" % (T + 5, v_lane, T + 5, T + 5))
    A("s_lshl_b32 s%d, s%d, 5\nv_add_u32 v%d, s%d, v%d\nv_lshl_add_u32 v%d, v%d, 7, v%d" % (s_t0, s_w, T + 6, s_t0, T + 5, vrq, T + 4, T + 6))
    A("v_bfe_u32 v%d, v%d, 4, 1\nv_xor_b32 v%d, s%d, v%d\nv_lshlrev_b32 v%d, 4, v%d" % (T + 4, v_lane, T + 4, s_b, T + 4, T + 4, T + 4))
    A("v_bfe_u32 v%d, v%d, 5, 1\nv_lshl_add_u32 v%d, v%d, 2, v%d" % (T + 6, v_lane, T + 4, T + 6, T + 4))
    A("v_bfe_u32 v%d, v%d, 2, 1\nv_add_u32 v%d, v%d, v%d" % (T + 6, v_lane, T + 4, T + 6, T + 4))
    A("v_bfe_u32 v%d, v%d, 3, 1\nv_lshl_add_u32 v%d, v%d, 5, v%d" % (T + 6, v_lane, T + 5, T + 6, T + 5))
    A("s_lshl_b32 s%d, s%d, 8\nv_add_u32 v%d, s%d, v%d\nv_lshl_add_u32 v%d, v%d, 10, v%d" % (s_t0, s_w, T + 6, s_t0, T + 5, vro, T + 4, T + 6))
    A("s_waitcnt lgkmcnt(0)")
    chunks = [("o", q) for q in range(4)] + [(0, c) for c in range(4)] + [(1, c) for c in range(4)] + [(2, c) for c in range(4)]
    bufs = [0, 1, 2, 3, 4, 0, 1, 2, 3, 4, 0, 1, 3, 4, 3, 4]
    def issue(ci):
        kind, c = chunks[ci]; buf = bufs[ci]
        p = 54 if kind == "o" else 48 + 2 * kind
        srd(a, S_W, p, p + 1, 8 * MB)
        A("s_lshl_b32 s%d, s%d, 13\ns_add_u32 s%d, s%d, %d" % (s_t2, s_w, s_t2, s_t2, buf * 32768))
        if kind == "o":
            A("s_lshr_b32 s%d, s%d, 1\ns_lshl_b32 s%d, s%d, 6\ns_and_b32 s%d, s%d, 1\ns_lshl_b32 s%d, s%d, 3\ns_add_u32 s%d, s%d, s%d" % (
                s_t0, s_w, s_t0, s_t0, s_t1, s_w, s_t1, s_t1, s_t0, s_t0, s_t1))
            A("s_lshl_b32 s%d, s%d, 7\ns_add_u32 s%d, s%d, s%d\ns_add_u32 s%d, s%d, %d\ns_lshl_b32 s%d, s%d, 11" % (s_t1, s_h, s_t0, s_t0, s_t1, s_t0, s_t0, 16 * c, s_t0, s_t0))
            A("s_lshl_b32 s%d, s%d, 10\ns_add_u32 s%d, s%d, s%d" % (s_t1, s_b, s_t0, s_t0, s_t1))
            va, stride = v_l16, 2048
        else:
            A("s_lshl_b32 s%d, s%d, 6\ns_add_u32 s%d, s%d, %d\ns_lshl_b32 s%d, s%d, 13" % (s_t0, s_w, s_t0, s_t0, 256 * c, s_t0, s_t0))
            A("s_lshl_b32 s%d, s%d, 8\ns_add_u32 s%d, s%d, s%d\ns_lshl_b32 s%d, s%d, 7\ns_add_u32 s%d, s%d, s%d" % (s_t1, s_h, s_t0, s_t0, s_t1, s_t1, s_b, s_t0, s_t0, s_t1))
            va, stride = vq, 8 * 8192
        for j in range(8):
            A("s_add_u32 m0, s%d, %d\ns_nop 0" % (s_t2, j * 1024))
            A("buffer_load_dwordx4 v%d, s[12:15], s%d offen lds" % (va, s_t0))
            if j < 7: A("s_add_u32 s%d, s%d, %d" % (s_t0, s_t0, stride))
    issued = 0
    def consume(ci):
        kind, c = chunks[ci]; buf = bufs[ci]
        A("s_waitcnt vmcnt(%d)\ns_barrier" % (8 * (issued - ci - 1)))
        A("v_add_u32 v%d, %d, v%d" % (T + 8, buf * 32768, vro if kind == "o" else vrq))
        if kind == "o":
            for u in range(4):
                for rho in range(4):
                    d = V_WV + (u * 4 + c) * 8 + 2 * rho
                    A("ds_read_b64_tr_b16 %s, v%d offset:%d" % (r2(d), T + 8, (8 * (rho >> 1) + 2 * (rho & 1)) * 1024 + u * 64))
        else:
            for fp in range(4):
                for rho in range(4):
                    f = 4 * c + fp
                    base = (8 * f if kind == 0 else 128 + 8 * f if kind == 1 else V_WV + 8 * f) + 2 * rho
                    dst = ("a[%d:%d]" if kind < 2 else "v[%d:%d]") % (base, base + 1)
                    A("ds_read_b64_tr_b16 %s, v%d offset:%d" % (dst, T + 8, (64 * fp + 32 * (rho >> 1) + 2 * (rho & 1)) * 128))
        A("s_waitcnt lgkmcnt(0)\ns_barrier")
    for ci in range(5): issue(ci); issued += 1
    nxt_after = {0: [5], 1: [6], 2: [7], 3: [8], 4: [9], 5: [10], 6: [11], 8: [12], 9: [13], 12: [14], 13: [15]}
    for ci in range(16):
        consume(ci)
        for n in nxt_after.get(ci, []):
            assert n == issued
            issue(n); issued += 1
        if ci == 11:
            for fr in range(12):
                for hf in range(2):
                    A("ds_write_b128 v%d, %s offset:%d" % (v_word, r4(V_WV + fr * 8 + 4 * hf), fr * 2048 + hf * 1024))
            for k in range(32): A("v_mov_b32 v%d, v%d" % (V_WO + k, V_WV + 96 + k))
            A("s_waitcnt lgkmcnt(0)")
    A("""
    s_cmp_lg_u32 s{w}, 0
    s_cbranch_scc1 L_c_ready
    v_mov_b32 v{T}, s{cal}
    v_mov_b32 v{T1}, 64
    s_mov_b64 exec, 1
    buffer_atomic_add v{T}, v{T1}, s[16:19], 0 offen
    s_mov_b32 s{sp}, {SPIN}
    L_c_w:
    buffer_load_dword v{T}, v{T1}, s[16:19], 0 offen sc1
    s_sub_u32 s{sp}, s{sp}, 1
    s_cbranch_scc1 L_c_w2
    s_waitcnt vmcnt(0)
    v_and_b32 v{T2}, 0xffff, v{T}
    v_cmp_gt_u32 vcc, {NRDY}, v{T2}
    s_cbranch_vccnz L_c_w
    L_c_w2:
    v_readfirstlane_b32 s{cal}, v{T}
    s_mov_b64 exec, -1
    s_lshr_b32 s{cal}, s{cal}, 16
    s_cmp_ge_u32 s{cal}, 32
    s_cselect_b32 s{cal}, 8192, 0
    s_add_u32 s101, s101, s{cal}
    L_c_ready:
    """.format(w=s_w, T=T, T1=T + 1, T2=T + 2, NRDY=(65 if mega else 64), cal=o_prf, sp=s_spin, SPIN=SPIN))
    RD = 60
    L_KV0, L_KV1 = 114688, 131072
    s_cnt = 49
    def wait_kv(tag, off):
        A("v_mov_b32 v40, 0\nL_c_kw%s:" % tag)
        A("buffer_load_dword v41, v40, %s, s%d offen sc1" % (WS, off))
        A("s_sub_u32 s%d, s%d, 1\ns_cbranch_scc1 L_c_fail\ns_waitcnt vmcnt(0)" % (s_spin, s_spin))
        A("v_and_b32 v41, 15, v41\nv_cmp_ne_u32 vcc, 4, v41\ns_cbranch_vccnz L_c_kw%s" % tag)
    def signal(off):
        A("v_mov_b32 v40, 0\nv_mov_b32 v41, 0x100\ns_mov_b64 exec, 1\nbuffer_atomic_add v41, v40, %s, s%d offen\ns_mov_b64 exec, -1" % (WS, off))
    if mega:
        from sched import C_HP
        A("s_lshr_b32 s%d, s%d, 1\ns_lshl_b32 s%d, s%d, 7\ns_add_u32 s%d, s%d, %d" % (s_t0, s_h, s_t0, s_t0, s_t0, s_t0, FLAGS + 128 * C_HP))
        A("s_cmp_lg_u32 s%d, 0\ns_cbranch_scc1 L_c_kv0\ns_mov_b32 s%d, %d" % (s_w, s_spin, SPIN))
        wait_kv("0", s_t0)
        A("L_c_kv0:\ns_barrier")
    A("s_load_dwordx2 s[48:49], s[0:1], 8\ns_waitcnt lgkmcnt(0)")
    srd(a, S_W, 48, 49, 16384)
    A("v_and_b32 v%d, 7, v%d\nv_lshlrev_b32 v%d, 11, v%d\nv_lshrrev_b32 v%d, 4, v%d\nv_lshl_add_u32 v%d, v%d, 3, v%d" % (T, v_lane, T, T, T + 1, v_lane, T, T + 1, T))
    A("v_and_b32 v%d, 8, v%d\nv_lshl_add_u32 v%d, v%d, 2, v%d" % (T + 1, v_lane, T, T + 1, T))
    A("s_lshl_b32 s%d, s%d, 6" % (s_t0, s_i))
    A("buffer_load_dwordx2 %s, v%d, s[12:15], s%d offen" % (r2(T + 4), T, s_t0))
    def kv_dma():
        out = ["s_mov_b32 m0, s%d" % m_kv, "s_xor_b32 s%d, s%d, %d" % (m_kv, m_kv, L_KV0 ^ L_KV1)]
        out += ["buffer_load_dwordx4 v%d, %s, s%d offen offset:%d sc1 lds" % (v_l16, WS, o_kv, j * 1024) for j in range(4)]
        return out + ["s_add_u32 s%d, s%d, 0x40000" % (o_kv, o_kv)]
    for x in kv_dma(): A(x)
    A("s_waitcnt vmcnt(0)")
    for k in range(2):
        A("v_lshlrev_b32 v%d, 16, v%d\nv_and_b32 v%d, 0xffff0000, v%d" % (RD + 2 * k, T + 4 + k, RD + 2 * k + 1, T + 4 + k))
    A("s_lshl_b32 s%d, s%d, 2\ns_add_u32 s%d, s%d, s%d\ns_lshl_b32 s%d, s%d, 10" % (m_pl, s_b, m_pl, m_pl, s_w, m_pl, m_pl))
    A("s_add_u32 s%d, s%d, %d\nv_add_u32 v%d, s%d, v%d" % (s_t0, m_pl, L_KV1, v_avx, s_t0, v_l16))
    for d in (12, 52): A("s_mov_b32 s%d, %d\ns_mov_b32 s%d, 0x00020000" % (d + 2, SLOT, d + 3))
    A("s_mov_b32 s%d, 0\ns_mov_b32 s%d, %d" % (s_step, s_spin, SPIN))
    o_xp = 48
    if mega: A("s_lshr_b32 s%d, s%d, 1\ns_lshl_b32 s%d, s%d, 7\ns_add_u32 s%d, s%d, %d" % (s_cnt, s_h, s_cnt, s_cnt, s_cnt, s_cnt, FLAGS + 128 * C_HP))
    A("s_mov_b32 s50, 0x3f803f80\ns_mov_b32 s51, 0x3f803f80")
    def book():
        A("s_and_b32 s%d, s%d, 3\ns_lshl_b32 s%d, s%d, 19\ns_add_u32 s%d, s%d, s101\ns_xor_b32 s%d, s%d, 262144\ns_xor_b32 s%d, s%d, %d" % (
            s_t0, s_step, s_t1, s_t0, o_pr, s_t1, o_prf, o_pr, o_xp, o_pr, 2 << 19))
        A("s_lshl_b32 s%d, s%d, 20\ns_add_u32 s%d, s%d, %d" % (s_t0, s_t0, s_t0, s_t0, RING))
        for x in set_slot(CUR, "s%d" % s_t0): A(x)
        A("s_xor_b32 s%d, s%d, %d" % (s_t0, s_t0, 2 * SLOT))
        for x in set_slot(P2, "s%d" % s_t0): A(x)
        A("s_lshl_b32 s%d, s%d, 17\ns_add_u32 s%d, s%d, s100\ns_add_u32 s%d, s%d, %d" % (s_t0, s_step, o_km, s_t0, o_kmn, o_km, VM - KM))
    book()
    A("s_barrier")
    if stamps:
        A("s_memtime s[56:57]\ns_memrealtime s[58:59]")
        for k in range(10): A("s_mov_b32 s%d, 0" % (80 + k))
        for k in range(4): A("s_mov_b32 s%d, 0" % (96 + k))
        A("s_waitcnt lgkmcnt(0)\ns_mov_b32 s93, s56\ns_mov_b32 s76, s56\ns_mov_b32 s62, s56")
    AR = 40; NR = 6
    z = lambda r: "v_mov_b64 %s, 0" % r2(r)
    def smf(m, f): A("v_smfmac_f32_16x16x64_bf16 %s, %s, %s, v%d" % (r4((v_aq, v_ak, v_av)[m]), r4(AR + 4 * (f % NR)), wtile(m, f % 16), v_idx))
    def qrd(lq, f): lq.op("ds_read_b128 %s, v%d offset:%d" % (r4(AR + 4 * (f % NR)), v_ahi, L_PL - HI + (f % 16) * 1024), ("A", f))
    PD = 48
    def fetch():
        for j in range(4): A("buffer_load_dwordx4 %s, v%d, %s, s%d offen offset:%d sc1" % (r4(PD + 4 * j), v_l16, CUR, o_plf, j * 1024))
    def prep():
        A("v_subrev_u32 v40, s%d, v%d" % (m_pl, v_avx))
        for k in range(8): A("ds_read_b128 %s, v40 offset:%d" % (r4(64 + 4 * k), k * 1024))
        for k in range(6): A(z(v_aq + 2 * k))
    chk = lambda r: "v_cmp_eq_u32 vcc, s%d, v%d\nv_cmp_eq_u32 %s, s%d, v%d\ns_or_b64 vcc, vcc, %s" % (s_sent, r, MK, s_sent, r + 1, MK)
    prep()
    A("s_cmp_lg_u32 s%d, 0\ns_cbranch_scc1 L_c_b0" % s_w)
    for k in range(2): A("v_cvt_pk_bf16_f32 v%d, v%d, v%d" % (46 + k, RD + 2 * k, RD + 2 * k + 1))
    if align: A("s_branch L_c_xok\n.p2align 6\n" + "s_nop 0\n" * (align - 1))
    A("L_c_xok:")
    A("buffer_store_dwordx2 v[46:47], v%d, %s, s%d offen" % (v_pst, CUR, o_pl))
    stamp(1)
    A("L_c_b0:")
    A("s_barrier")
    stamp(9)
    nop(a, fdelay)
    A("L_c_fetch:")
    fetch()
    stamp("fi")
    for j in range(4):
        A("s_waitcnt vmcnt(%d)" % (3 - j))
        A("ds_write_b128 v%d, %s offset:%d" % (v_flag, r4(PD + 4 * j), j * 1024))
        if j == 0: A("v_max_i32 v41, v%d, v%d" % (PD, PD + 2))
        else: A("v_max3_i32 v41, v%d, v%d, v41" % (PD + 4 * j, PD + 4 * j + 2))
    stamp("fl")
    A("v_cmp_eq_u32 vcc, s%d, v41\ns_cbranch_vccnz L_c_lretry" % s_sent)
    stamp("lok")
    if stamps == 3:
        A("s_waitcnt lgkmcnt(0)")
        A("s_mul_i32 s%d, s%d, 64\ns_add_u32 s%d, s%d, %d\ns_cmp_lg_u32 s%d, %d\ns_cselect_b32 s%d, %d, s%d\nv_mov_b32 v49, s%d" % (
            s_t0, s_step, s_t0, s_t0, L_MISC + 64, s_w, tw, s_t0, L_DUM, s_t0, s_t0))
        for k in range(10): A("v_mov_b32 v%d, s%d" % (50 + k, 60 + 2 * k))
        for k in range(4): A("v_mov_b32 v%d, s%d" % (60 + k, 96 + k))
        for k in range(7): A("ds_write_b64 v49, v[%d:%d] offset:%d" % (50 + 2 * k, 51 + 2 * k, 8 * k))
    A("s_waitcnt lgkmcnt(0)\ns_barrier")
    stamp(0)
    lq = LQ(a)
    for f in range(NR - 1): qrd(lq, f)
    for f in range(11):
        lq.need(("A", f)); smf(0, f); qrd(lq, f + NR - 1); smf(1, f)
    stamp("q5")
    for f in range(11, 16):
        lq.need(("A", f)); smf(0, f)
    smf(1, 11); qrd(lq, 16); nop(a, 1); smf(1, 12); qrd(lq, 17); nop(a, 1); smf(1, 13); qrd(lq, 18)
    A("v_add_f32 v20, v28, v29\nv_add_f32 v21, v30, v31")
    smf(1, 14)
    A("v_cmp_u_f32 vcc, v20, v21")
    smf(1, 15)
    qrd(lq, 19)
    lq.need(("A", 16)); smf(2, 16)
    qrd(lq, 20)
    A("s_cbranch_vccnz L_c_nanq\nL_c_qok:")
    lq.need(("A", 17)); smf(2, 17)
    qrd(lq, 21)
    stamp("qe")
    for r in range(4): A("v_permlane32_swap_b32 v%d, v%d" % (v_aq + r, v_ak + r))
    A("v_pk_add_f32 v[28:29], v[28:29], v[32:33]\nv_pk_add_f32 v[30:31], v[30:31], v[34:35]")
    A("v_cvt_pk_bf16_f32 v32, v28, v29\nv_cvt_pk_bf16_f32 v33, v30, v31")
    A("buffer_store_dwordx2 v[32:33], v%d, %s, s%d offen" % (v_l8, CUR, o_qk_own))
    stamp(3)
    lq.op("ds_write_b64 v%d, v[32:33]" % v_fown)
    PQ = [34, 32, 20, 22]
    PQ0 = PQ[0]
    ldq = lambda r: "buffer_load_dwordx2 %s, v%d, %s, s%d offen sc1" % (r2(r), v_l8, CUR, o_qk_par)
    qrd(lq, 22)
    for f in range(2, 16):
        lq.need(("A", 16 + f)); smf(2, 16 + f)
        if f + NR - 1 < 16: qrd(lq, 16 + f + NR - 1)
        if f in pq: A(ldq(PQ[pq.index(f)]))
        if f >= 12: A("v_mov_b32 v%d, v%d" % (28 + f - 12, v_cinit))
    stamp("ve")
    A("s_waitcnt vmcnt(3)")
    lq.op("ds_write_b64 v%d, %s" % (v_fpar, r2(PQ0)))
    A(chk(PQ0) + "\ns_cbranch_vccnz L_c_qretry")
    A("L_c_qgot:")
    A("s_nop 0\nv_mov_b64 v[60:61], v[36:37]\nv_mov_b64 v[62:63], v[38:39]")
    lq.all()
    A("s_barrier")
    stamp(4)
    lq = LQ(a)
    for kp in range(4):
        for hf in range(2): lq.op("ds_read_b64_tr_b16 %s, v%d offset:%d" % (r2(40 + 4 * kp + 2 * hf), v_af, kp * 1024 + hf * 512), ("F", kp))
    for r in range(4): A("v_permlane32_swap_b32 v%d, v%d" % (v_av + r, 60 + r))
    Tm, T0, T1 = 28, 32, 56
    side = {(0, 0): ["v_add_f32 v60, v36, v60", "s_waitcnt vmcnt(2)"], (0, 1): ["v_add_f32 v61, v37, v61"], (0, 2): ["v_add_f32 v62, v38, v62"],
            (1, 0): ["v_add_f32 v63, v39, v63"], (1, 1): ["v_cvt_pk_bf16_f32 v36, v60, v61"], (1, 2): ["v_cvt_pk_bf16_f32 v37, v62, v63"],
            (2, 0): ["buffer_store_dwordx2 v[36:37], v%d, %s, s%d offen" % (v_l8, CUR, o_vx_own)],
            (2, 1): ["v_xor_b32 v60, 4096, v%d" % v_avx], (2, 2): ["s_cmp_eq_u32 s%d, %d" % (s_step, nsteps - 1)],
            (3, 0): [("ds_read_b128 v[40:43], v%d offset:8192" % v_avx, "vx")], (3, 1): [("ds_read_b128 v[44:47], v60 offset:8192", "vx")]}
    tail_s = "v_mov_b64 v[52:53], 0\nv_xor_b32 v%d, %d, v%d" % (v_avx, L_KV0 ^ L_KV1, v_avx)
    for kp in range(4):
        lq.need(("F", kp))
        F = r4(40 + 4 * kp)
        for j, (D, Aop) in enumerate(((Tm, F), (T0, r4(64 + 4 * kp)), (T1, r4(80 + 4 * kp)))):
            A("v_mfma_f32_16x16x32_bf16 %s, %s, %s, %s" % (r4(D), Aop, F, "0" if (kp == 0 and j) else r4(D)))
            for x in side.get((kp, j), []):
                if isinstance(x, tuple): lq.op(*x)
                else: A(x)
    BUF = [64, 72, 80, 88, 56]
    def word(fr, buf):
        for hf in range(2): lq.op("ds_read_b128 %s, v%d offset:%d" % (r4(BUF[buf] + 4 * hf), v_word, fr * 2048 + hf * 1024), ("W", fr))
    stamp("se")
    A("s_cbranch_scc1 L_c_last")
    A("s_waitcnt vmcnt(1)\nv_mov_b64 v[20:21], s[50:51]\nv_mov_b64 v[22:23], s[50:51]")
    A("v_max3_f32 v61, v28, v29, v30")
    word(0, 0)
    A("v_max3_f32 v62, v31, v32, v33\nv_max3_f32 v61, v34, v35, v61")
    A("v_max3_f32 v62, v56, v57, v62\nv_max3_f32 v61, v58, v59, v61\nv_max_f32 v61, v61, v62")
    A("v_mov_b32 v62, v61")
    word(1, 1)
    A("v_permlane32_swap_b32 v61, v62\nv_max_f32 v61, v61, v62")
    A("v_mov_b32 v62, v61")
    word(2, 2)
    A("v_permlane16_swap_b32 v61, v62\nv_max_f32 v61, v61, v62")
    A("v_mul_f32 v61, s%d, v61" % s_scale)
    stamp("mx")
    ldv = "buffer_load_dwordx2 v[38:39], v%d, %s, s%d offen sc1" % (v_l8, CUR, o_vx_par)
    if vpos == 0: A(ldv)
    regs = [32, 33, 34, 35, 56, 57, 58, 59, 28, 29, 30, 31]
    for r in regs[:8]: A("v_fma_f32 v%d, v%d, s%d, -v61" % (r, r, s_scale))
    if vpos == 1: A(ldv)
    for r in regs[:8]: A("v_exp_f32 v%d, v%d" % (r, r))
    if vpos == 2: A(ldv)
    A("v_fma_f32 v28, v28, s%d, -v61" % s_scale)
    A("v_cvt_pk_bf16_f32 v48, v32, v33\nv_cvt_pk_bf16_f32 v49, v34, v35\nv_cvt_pk_bf16_f32 v50, v56, v57\nv_cvt_pk_bf16_f32 v51, v58, v59")
    for r in regs[9:]: A("v_fma_f32 v%d, v%d, s%d, -v61" % (r, r, s_scale))
    lq.need("vx")
    LS, O0, O1 = 60, 56, 32
    stamp(5)
    A("v_mfma_f32_16x16x32_bf16 %s, v[40:43], v[48:51], 0" % r4(O0))
    A("v_exp_f32 v28, v28")
    A("v_mfma_f32_16x16x32_bf16 %s, v[44:47], v[48:51], 0" % r4(O1))
    A("v_exp_f32 v29, v29")
    A("v_mfma_f32_16x16x32_bf16 %s, %s, v[48:51], 0" % (r4(LS), r4(v_ones)))
    A("v_exp_f32 v30, v30\nv_exp_f32 v31, v31")
    A("v_mov_b64 v[46:47], 0\n" + tail_s)
    A("v_cvt_pk_bf16_f32 v54, v28, v29\nv_cvt_pk_bf16_f32 v55, v30, v31")
    A("v_mov_b64 v[44:45], v[54:55]")
    A("s_waitcnt vmcnt(0)")
    A("v_mfma_f32_16x16x32_bf16 %s, %s, v[52:55], %s" % (r4(LS), r4(v_ones), r4(LS)))
    A("L_c_vl:")
    A(chk(38) + "\ns_cbranch_vccnz L_c_vretry")
    A("v_mfma_f32_16x16x32_bf16 %s, v[36:39], v[44:47], %s" % (r4(O0), r4(O0)))
    A("v_mfma_f32_16x16x32_bf16 %s, v[36:39], v[52:55], %s" % (r4(O1), r4(O1)))
    stamp("pv")
    ACC = [28, 32, 36, 20]
    lq.op("ds_read_b64_tr_b16 v[40:41], v%d" % v_kmr, "km")
    A(z(28))
    A("v_rcp_f32 v48, v%d" % LS)
    word(3, 3)
    A(z(30) + "\n" + z(20))
    A("v_pk_mul_f32 v[56:57], v[56:57], v[48:49] op_sel_hi:[1,0]\nv_pk_mul_f32 v[58:59], v[58:59], v[48:49] op_sel_hi:[1,0]")
    A("v_pk_mul_f32 v[32:33], v[32:33], v[48:49] op_sel_hi:[1,0]\nv_pk_mul_f32 v[34:35], v[34:35], v[48:49] op_sel_hi:[1,0]")
    A("v_cvt_pk_bf16_f32 v52, v56, v57\nv_cvt_pk_bf16_f32 v53, v58, v59\nv_cvt_pk_bf16_f32 v54, v32, v33\nv_cvt_pk_bf16_f32 v55, v34, v35")
    lq.op("ds_write_b128 v%d, v[52:55]" % v_owr, "ow")
    stamp("ow")
    word(4, 4)
    def km_store():
        if nokm: return
        A("buffer_store_dwordx2 v[40:41], v%d, %s, s%d offen sc1" % (v_l8, WS, o_km))
        A("buffer_store_dwordx2 v[36:37], v%d, %s, s%d offen sc1" % (v_l8, WS, o_kmn))
    lq.need("km")
    km_store()
    A("\n".join(z(r) for r in (22, 32, 34, 38, 36)))
    lq.need("ow")
    A("s_barrier")
    stamp(6)
    for k in range(4): lq.op("ds_read_b128 %s, v%d offset:%d" % (r4(40 + 4 * k), v_ord, k * 512), ("o", k))
    if not nokv:
        for x in kv_dma(): A(x)
    A(poisons(P2)[6])
    A("buffer_store_dwordx2 %s, v%d, %s, s%d offen sc1" % (r2(v_sent), v_l8, WS, o_xp))
    A("s_add_u32 s%d, s%d, 1" % (s_step, s_step))
    def post(u):
        t = ACC[u]
        return ["v_cvt_pk_bf16_f32 v%d, v%d, v%d" % (t, t, t + 1), "v_cvt_pk_bf16_f32 v%d, v%d, v%d" % (t + 1, t + 2, t + 3),
                "buffer_store_dwordx2 %s, v%d, %s, s%d offen" % (r2(t), v_i3st, CUR, o_i3st + u)]
    where = {k: k for k in range(5)}
    nxt = [5]
    def wmf(fr):
        u, kp = fr >> 2, fr & 3
        lq.need(("o", kp))
        if fr < 12: lq.need(("W", fr))
        B = r8(V_WO + 8 * (fr - 12)) if fr >= 12 else r8(BUF[where[fr]])
        A("v_smfmac_f32_16x16x64_bf16 %s, %s, %s, v%d" % (r4(ACC[u]), r4(40 + 4 * kp), B, v_idx))
        if fr < 12 and nxt[0] < 12:
            where[nxt[0]] = where[fr]; word(nxt[0], where[fr]); nxt[0] += 1
    for fr in (0, 1, 2, 3, 4, 12, 13, 14, 15): wmf(fr)
    for x in post(0): A(x)
    wmf(5); wmf(6)
    for x in post(3): A(x)
    for fr in (7, 8, 9, 10, 11): wmf(fr)
    A("s_cmp_lg_u32 s%d, 0" % s_w)
    for x in post(1): A(x)
    nop(a, 4)
    for x in post(2): A(x)
    stamp(7)
    if stamps == 2:
        A("s_waitcnt lgkmcnt(0)")
        for k, (hi, lo) in enumerate([(76, 93), (62, 76), (78, 62), (60, 78), (66, 60), (68, 66), (70, 68), (72, 70), (74, 72)]):
            A("s_sub_u32 s%d, s%d, s%d\ns_add_u32 s%d, s%d, s%d" % (s_t0, hi, lo, 80 + k, 80 + k, s_t0))
        A("s_mov_b32 s93, s74\ns_mov_b32 s76, s74\ns_mov_b32 s62, s74\ns_cmp_lg_u32 s%d, 0" % s_w)
    A("s_cbranch_scc1 L_c_idle")
    nop(a, rdelay)
    SETS = [28, 64]
    def rloads(st):
        for k in range(8): A("buffer_load_dwordx4 %s, v%d, %s, s%d offen offset:%d sc1" % (r4(SETS[st] + 4 * k), v_i3l0 if k < 4 else v_i3l1, CUR, o_i3ld, (k & 3) * 1024))
    def rproc(st):
        for k in range(8):
            A("s_waitcnt vmcnt(%d)" % (15 - k))
            A("v_mfma_f32_16x16x32_bf16 %s, %s, %s, %s" % (r4(RD), r4(SETS[st] + 4 * k), r4(v_sel), "0" if k == 0 else r4(RD)))
        nop(a, 8)
        A("v_pk_add_f32 v[20:21], v[60:61], v[62:63]\nv_cvt_pk_bf16_f32 v22, v60, v61\nv_cmp_u_f32 vcc, v20, v21\nv_cvt_pk_bf16_f32 v23, v62, v63")
    rloads(0)
    A("s_mov_b32 s%d, 0" % s_t2)
    stamp("ri")
    nop(a, rgap)
    A("L_c_rB:")
    rloads(1)
    rproc(0)
    A("s_cbranch_vccnz L_c_r1")
    A("L_c_rok:")
    A("buffer_store_dwordx2 v[22:23], v%d, %s, s%d offen sc1" % (v_l8, WS, o_pr))
    stamp(8)
    XP = [48, 50]
    xat = lambda r: "buffer_atomic_add_x2 %s, v%d, %s, s%d offen sc0" % (r2(XP[r]), v_l8, WS, s_t3)
    A("s_mov_b32 s%d, s%d\ns_waitcnt vmcnt(1)\n%s\n%s" % (s_t3, o_prf, z(XP[0]), z(XP[1])))
    nop(a, xd0)
    A(xat(0))
    A("s_barrier")
    book()
    prep()
    nop(a, xd1)
    A(xat(1))
    stamp("xw")
    def xuse(r):
        x = XP[r]
        A("s_waitcnt vmcnt(1)")
        A("v_cmp_eq_u32 vcc, s%d, v%d\nv_cmp_eq_u32 %s, s%d, v%d" % (s_sent, x, MK, s_sent, x + 1))
        A("v_lshlrev_b32 v52, 16, v%d\nv_and_b32 v53, 0xffff0000, v%d\nv_lshlrev_b32 v54, 16, v%d\nv_and_b32 v55, 0xffff0000, v%d" % (x, x, x + 1, x + 1))
        A("s_or_b64 vcc, vcc, %s" % MK)
        A("v_pk_add_f32 v[52:53], v[52:53], v[60:61]\nv_pk_add_f32 v[54:55], v[54:55], v[62:63]")
        A("v_cvt_pk_bf16_f32 v46, v52, v53\nv_cvt_pk_bf16_f32 v47, v54, v55\ns_cbranch_vccz L_c_xok")
    A("L_c_xl:")
    for r in range(2):
        xuse(r)
        cnt(2)
        A(z(XP[r]) + "\n" + xat(r))
    A("s_sub_u32 s%d, s%d, 1\ns_cbranch_scc0 L_c_xl\ns_branch L_c_fail" % (s_spin, s_spin))
    A("L_c_r1:")
    cnt(0)
    rloads(0)
    rproc(1)
    A("s_cbranch_vccz L_c_rok")
    cnt(0)
    A("s_sub_u32 s%d, s%d, 1\ns_cbranch_scc1 L_c_fail" % (s_spin, s_spin))
    A("s_add_u32 s%d, s%d, 1\ns_and_b32 s%d, s%d, 7\ns_cbranch_scc1 L_c_rB" % (s_t2, s_t2, s_t0, s_t2))
    A("s_mov_b64 %s, 0" % MK)
    for k in range(32): A("v_cmp_eq_u32 vcc, s%d, v%d\ns_or_b64 %s, %s, vcc" % (s_sent, 64 + k, MK, MK))
    A("s_cbranch_scc0 L_c_rok\ns_branch L_c_rB")
    pz = poisons(P2)[:6]
    A("L_c_idle:")
    A("s_waitcnt vmcnt(0)\ns_barrier")
    for x in pz: A(x)
    A("s_cmp_lg_u32 s%d, 1\ns_cbranch_scc1 L_c_idle2" % s_w)
    for x, d in zip(pz, (512, 512, 32768, 32768, 32768, 32768)):
        o = x.split(",")[-1].split()[0]
        A("s_sub_u32 s%d, %s, %d" % (s_t0, o, d))
        A(x.replace(", %s offen" % o, ", s%d offen" % s_t0))
    if mega:
        A("s_and_b32 s%d, s%d, 7\ns_cbranch_scc1 L_c_nosig" % (s_t0, s_step))
        A("s_lshl_b32 s%d, s%d, 8\ns_add_u32 s%d, s%d, s%d\ns_sub_u32 s%d, s%d, 2048" % (s_t0, s_step, s_t0, s_t0, s_cnt, s_t0, s_t0))
        signal(s_t0)
        A("L_c_nosig:")
        A("s_add_u32 s%d, s%d, 1\ns_and_b32 s%d, s%d, 7\ns_cbranch_scc1 L_c_idle2\ns_cmp_ge_u32 s%d, 64\ns_cbranch_scc1 L_c_idle2" % (s_t1, s_step, s_t0, s_t1, s_t1))
        A("s_lshl_b32 s%d, s%d, 8\ns_add_u32 s%d, s%d, s%d" % (s_t0, s_t1, s_t0, s_t0, s_cnt))
        wait_kv("n", s_t0)
    A("L_c_idle2:")
    book()
    prep()
    A("s_branch L_c_b0")
    A("L_c_lretry:")
    cnt(1)
    A("s_waitcnt lgkmcnt(0)\ns_sub_u32 s%d, s%d, 1\ns_cbranch_scc0 L_c_fetch\ns_branch L_c_fail" % (s_spin, s_spin))
    A("L_c_qretry:")
    cnt(3)
    A("s_waitcnt vmcnt(2)\nds_write_b64 v%d, %s\n" % (v_fpar, r2(PQ[1])) + chk(PQ[1]) + "\ns_cbranch_vccz L_c_qgot")
    A("L_c_qr2:")
    for k in (2, 3):
        cnt(3)
        A("s_waitcnt vmcnt(1)\nds_write_b64 v%d, %s\n" % (v_fpar, r2(PQ[k])) + chk(PQ[k]) + "\ns_cbranch_vccz L_c_qgot")
        A(ldq(PQ[k]))
    A("s_sub_u32 s%d, s%d, 1\ns_cbranch_scc0 L_c_qr2\ns_branch L_c_fail" % (s_spin, s_spin))
    A("L_c_vretry:")
    A("buffer_load_dwordx2 v[38:39], v%d, %s, s%d offen sc1" % (v_l8, CUR, o_vx_par))
    cnt(3)
    A("s_sub_u32 s%d, s%d, 1\ns_cbranch_scc1 L_c_fail\ns_waitcnt vmcnt(0)\ns_branch L_c_vl" % (s_spin, s_spin))
    A("L_c_nanq:")
    A("s_mov_b64 %s, 0" % MK)
    for f in range(16):
        A("ds_read_b128 v[20:23], v%d offset:%d\ns_waitcnt lgkmcnt(0)" % (v_ahi, L_PL - HI + f * 1024))
        for k in range(4): A("v_cmp_eq_u32 vcc, s%d, v%d\ns_or_b64 %s, %s, vcc" % (s_sent, 20 + k, MK, MK))
    A("s_cbranch_scc0 L_c_qok")
    A("s_sub_u32 s%d, s%d, 1\ns_cbranch_scc1 L_c_fail" % (s_spin, s_spin))
    for k in range(6): A(z(v_aq + 2 * k))
    A("s_barrier\ns_branch L_c_fetch")
    A("L_c_last:")
    A("s_waitcnt lgkmcnt(0)\nds_read_b64_tr_b16 v[40:41], v%d\ns_waitcnt lgkmcnt(0)" % v_kmr)
    km_store()
    if mega:
        A("s_waitcnt vmcnt(0)\ns_barrier\ns_cmp_lg_u32 s%d, 0\ns_cbranch_scc1 L_c_done\ns_add_u32 s%d, s%d, %d" % (s_w, s_t0, s_cnt, 7 * 2048))
        signal(s_t0)
    A("s_branch L_c_done")
    A("L_c_fail:")
    A("v_mov_b32 v40, 1\nv_mov_b32 v41, 96\nbuffer_atomic_add v40, v41, s[16:19], 0 offen")
    A("L_c_done:")
    A("s_waitcnt vmcnt(0)")
    if stamps:
        A("s_memtime s[60:61]\ns_memrealtime s[62:63]\ns_waitcnt lgkmcnt(0)\ns_sub_u32 s60, s60, s56\ns_sub_u32 s61, s62, s58")
        A("s_sub_u32 s62, s56, s94")
        A("s_lshl_b32 s%d, s%d, 5\ns_add_u32 s%d, s%d, s%d\ns_lshl_b32 s%d, s%d, 2\ns_add_u32 s%d, s%d, s%d\ns_lshl_b32 s%d, s%d, 7\ns_add_u32 s%d, s%d, %d" % (
            s_t0, s_x, s_t0, s_t0, s_i, s_t0, s_t0, s_t0, s_t0, s_w, s_t0, s_t0, s_t0, s_t0, FLAGS + MB))
        for k, sr in enumerate([60, 61, 62] + list(range(80, 90)) + [96, 97, 98, 99]): A("v_mov_b32 v%d, s%d" % (40 + k, sr))
        if stamps == 3:
            A("s_cmp_lg_u32 s%d, %d\ns_cbranch_scc1 L_c_notr" % (s_w, tw))
            A("s_lshl_b32 s%d, s%d, 5\ns_add_u32 s%d, s%d, s%d\ns_lshl_b32 s%d, s%d, 12\ns_add_u32 s%d, s%d, %d" % (s_t1, s_x, s_t1, s_t1, s_i, s_t1, s_t1, s_t1, s_t1, FLAGS + 2 * MB))
            A("v_add_u32 v64, %d, v%d" % (L_MISC + 64, v_l16))
            for k in range(4):
                A("ds_read_b128 v[68:71], v64 offset:%d\ns_waitcnt lgkmcnt(0)\nbuffer_store_dwordx4 v[68:71], v%d, %s, s%d offen offset:%d\ns_waitcnt vmcnt(0)" % (k * 1024, v_l16, WS, s_t1, k * 1024))
            A("L_c_notr:")
            A("v_mov_b32 v43, s56\nv_mov_b32 v44, s58")
        A("v_mov_b32 v60, 0\ns_mov_b64 exec, 1")
        for k in range(5): A("buffer_store_dwordx4 %s, v60, %s, s%d offen offset:%d" % (r4(40 + 4 * k), WS, s_t0, 16 * k))
        A("s_waitcnt vmcnt(0)")

def emit_role_prologue(a, nwg=256, early=None):
    a("""
    s_cmp_ge_u32 s2, {n}
    s_cbranch_scc1 L_end
    s_load_dwordx4 s[4:7], s[0:1], 96
    s_memtime s[94:95]
    s_getreg_b32 s{xcc}, hwreg(HW_REG_XCC_ID)
    s_and_b32 s{xcc}, s{xcc}, 15
    v_and_b32 v1, 63, v0
    v_lshrrev_b32 v2, 6, v0
    s_waitcnt lgkmcnt(0)
    """.format(n=nwg, xcc=s_xcc))
    srd(a, S_WS, 6, 7, WS_BYTES)
    srd(a, S_DBG, 4, 5, 256)
    if early: early()
    a("""
    v_readfirstlane_b32 s{w}, v2
    v_mov_b32 v3, 1
    s_lshl_b32 s{i}, s{xcc}, 2
    v_mov_b32 v4, s{i}
    v_mov_b32 v5, {misc}
    v_cmp_eq_u32 vcc, 0, v0
    s_and_saveexec_b64 s[48:49], vcc
    s_cbranch_execz L_skipt
    buffer_atomic_add v3, v4, s[16:19], 0 offen sc0
    s_waitcnt vmcnt(0)
    ds_write_b32 v5, v3
    s_waitcnt lgkmcnt(0)
    L_skipt:
    s_mov_b64 exec, s[48:49]
    s_barrier
    ds_read_b32 v3, v5
    s_waitcnt lgkmcnt(0)
    v_readfirstlane_b32 s{i}, v3
    s_barrier
    """.format(w=s_w, i=s_i, xcc=s_xcc, misc=L_MISC))

def gen(stamps=2, nsteps=64, xa=0, xb=1, name="chain_kernel", header=True, desc=True, **kw):
    a = Asm()
    if header:
        a("; @launch kernel=%s grid=(256,1,1) block=(256,1,1) lds=%d" % (name, LDS_BYTES))
        a('.amdgcn_target "amdgcn-amd-amdhsa--gfx950"')
    kernel_begin(a, name)
    emit_role_prologue(a)
    a("""
    s_cmp_ge_u32 s{i}, 32
    s_cbranch_scc1 L_end
    s_mov_b32 s{x}, 0
    s_cmp_eq_u32 s{xcc}, {xa}
    s_cbranch_scc1 L_chain
    s_mov_b32 s{x}, 1
    s_cmp_eq_u32 s{xcc}, {xb}
    s_cbranch_scc1 L_chain
    s_endpgm
    L_chain:
    """.format(i=s_i, x=s_x, xcc=s_xcc, xa=xa, xb=xb))
    emit_chain(a, stamps, nsteps, **kw)
    a("L_end:\ns_endpgm")
    if desc: kernel_desc(a, name, 512, 102, 256)
    return a.text()

if __name__ == "__main__":
    open(sys.argv[1], "w").write(gen())
```

```python
import heapq
from layout import *
NX = 6
T_LN1, T_QA, T_KA, T_VA, T_KB, T_VB, T_ATT, T_O, T_LN2, T_GU, T_D, T_FIN = range(12)
C_LN1 = 0
C_HP = 8
C_ATT = 136
C_O = 168; C_LN2 = 176; C_GU = 184; C_D = 216
C_NONE = 224
NCNT = 256
PART_O = PART; PART_D = PART + 32 * MB
class Task:
    def __init__(s, typ, xcd, dur, prio, wait, target, sig, inc, p0=0, p1=0, p2=0, p3=0):
        s.typ, s.xcd, s.dur, s.prio, s.wait, s.target, s.sig, s.inc, s.p = typ, xcd, dur, prio, wait, target, sig, inc, (p0, p1, p2, p3)
def deal(n, rot=0):
    return [((k * NX) // n + rot) % NX for k in range(n)]
def build(tau=2.2, t0=22.0, dA=24.0, dB=13.0):
    T = []
    for rg in range(128):
        T.append(Task(T_LN1, rg % NX, 3.0, (0, rg), C_NONE, 0, C_LN1 + rg // 16, 1, rg))
    kvx = [0] * 5 + [1] * 5 + [2] * 5 + [3] * 5 + [4] * 6 + [5] * 6
    qx = [0] * 3 + [1] * 3 + [2] * 3 + [3] * 3 + [4] * 2 + [5] * 2
    need = lambda b: t0 + 8 * b * tau
    for b in range(8):
        for m in range(2):
            for ct in range(16):
                x = kvx[2 * ct + m]; base = (KX + b * 2 * MB + ct * 8192) if m == 0 else (VT + b * 2 * MB + ct * 16384)
                if b == 0:
                    for hf in range(2):
                        T.append(Task(T_KB + m, x, dB, (need(b) - dB, 0), C_LN1 + b, 16, C_HP + 16 * b + ct, 1, XN + b * 524288, ct * 512 + hf * 256, base + hf * (4096 if m == 0 else 8192)))
                else:
                    T.append(Task(T_KA + m, x, dA, (need(b) - dA - 8, 0), C_LN1 + b, 16, C_HP + 16 * b + ct, 2, XN + b * 524288, ct * 512, base))
        r = need(b + 1)
        for ct in range(16):
            T.append(Task(T_QA, qx[ct], dA, (r - dA, 1), C_LN1 + b, 16, C_HP + 16 * b + ct, 0x10, XN + b * 524288, ct * 512, QX + b * 2 * MB + ct * 8192))
        d32 = deal(32, b)
        for hp in range(16):
            for hf in range(2):
                T.append(Task(T_ATT, d32[2 * hp + hf], 3.5, (r, 2), C_HP + 16 * b + hp, 0x414, C_ATT + 4 * b + hp // 4, 1, 8 * b + 4 * hf, 2 * hp))
        for sp in range(4):
            for ct in range(8):
                T.append(Task(T_O, d32[8 * sp + ct], dB, (r + 4, 3), C_ATT + 4 * b + sp, 8, C_O + b, 1,
                              OA + b * 2 * MB + sp * 32768, sp * 1024 * 2048 + ct * 256, PART_O + sp * 8 * MB + b * MB + ct * 8192))
        for k in range(16):
            T.append(Task(T_LN2, (k + b) % NX, 3.5, (r + 17, 4), C_O + b, 32, C_LN2 + b, 1, 16 * b + k))
        d56 = deal(56, b)
        for ct in range(56):
            T.append(Task(T_GU, d56[ct], dB, (r + 21, 5), C_LN2 + b, 16, C_GU + 4 * b + ct // 14, 1,
                          HN + b * 524288, ct * 128, ACT + b * 16 * 114688 + ct * 2048))
        for sp in range(4):
            for ct in range(8):
                T.append(Task(T_D, d32[8 * sp + ct], dB * 0.9, (r + 34, 6), C_GU + 4 * b + sp, 14, C_D + b, 1,
                              ACT + b * 16 * 114688 + sp * 28 * 1024, sp * 896 * 2048 + ct * 256, PART_D + sp * 8 * MB + b * MB + ct * 8192))
        for k in range(16):
            T.append(Task(T_FIN, (k + b) % NX, 3.5, (r + 46, 7), C_D + b, 32, C_NONE, 0, 16 * b + k))
    return T
def simulate(T, tau=2.2, t0=22.0, verbose=False):
    cnt = [0] * NCNT
    lists = [[] for _ in range(NX)]
    free = [32] * NX
    ev = []
    pend = sorted(range(len(T)), key=lambda i: T[i].prio)
    now = 1.0; chain_b = 0; chain_t = t0; chain_busy = False; seq = 0; end = 0
    while pend or ev:
        if not chain_busy and chain_b < 8 and all((cnt[C_HP + 16 * chain_b + h] & 15) == 4 for h in range(16)):
            chain_t = max(chain_t, now) + 8 * tau - (0.4 * tau if chain_b == 7 else 0)
            seq += 1; heapq.heappush(ev, (chain_t, seq, "c", chain_b)); chain_busy = True
        rest = []
        for i in pend:
            t = T[i]
            if free[t.xcd] and cnt[t.wait] >= t.target:
                free[t.xcd] -= 1; lists[t.xcd].append(i); t.start = now
                seq += 1; heapq.heappush(ev, (now + t.dur + 1.0, seq, "t", i))
            else: rest.append(i)
        pend = rest
        now, _, kind, d = heapq.heappop(ev)
        if kind == "t":
            free[T[d].xcd] += 1; cnt[T[d].sig] += T[d].inc; end = now
        else:
            for h in range(16): cnt[C_HP + 16 * d + h] += 0x400
            chain_b += 1; chain_busy = False
            if verbose: print("chain block", d, "done at %.1f" % now)
    if verbose: print("end %.1f" % end, [len(l) for l in lists])
    return lists
if __name__ == "__main__":
    for tau in (2.0, 2.6):
        T = build(tau); simulate(T, tau, verbose=True)
```

```python
import sys
from asmlib import *
from layout import *
from tasks import *
import chain_gen as CH
import sched as SC_
from sched import *
NAME = "sequential_preLN__memory_aug_recurrent_mem_tr__swiglu_ffn__prompt_kernel"
C_Q = 232
SPINW = 200000
def gen(tau=2.6, t0=22.0, ckw={}, trace=0, nowork=0):
    T = build(tau, t0); lists = simulate(T, tau, t0)
    a = Asm()
    a("; @launch grid=(256,1,1) block=(256,1,1) lds=%d" % CH.LDS_BYTES)
    a('.amdgcn_target "amdgcn-amd-amdhsa--gfx950"')
    kernel_begin(a, NAME)
    def early():
        a("s_cmp_lg_u32 s2, 0\ns_cbranch_scc1 L_noinit")
        a("v_lshlrev_b32 v3, 4, v0\nv_mov_b32 v4, 0\nv_mov_b32 v5, 0\nv_mov_b32 v6, 0\nv_mov_b32 v7, 0\ns_mov_b32 s30, %d" % FLAGS)
        for k in range(NCNT * 128 // 4096):
            a("buffer_store_dwordx4 v[4:7], v3, s[8:11], s30 offen sc1\ns_add_u32 s30, s30, 4096")
        a("s_waitcnt vmcnt(0)\ns_barrier\nv_mov_b32 v4, 1\nv_lshlrev_b32 v5, 6, v0\nv_add_u32 v5, 64, v5")
        a("v_cmp_gt_u32 vcc, 2, v0\ns_and_saveexec_b64 s[48:49], vcc\ns_cbranch_execz L_ini2\nbuffer_atomic_add v4, v5, s[16:19], 0 offen\nL_ini2:\ns_mov_b64 exec, s[48:49]")
        a("L_noinit:")
    CH.emit_role_prologue(a, early=early)
    a("s_cmp_ge_u32 s%d, 32\ns_cbranch_scc1 L_end\ns_cmp_ge_u32 s%d, 8\ns_cbranch_scc1 L_end" % (CH.s_i, CH.s_xcc))
    a("s_cmp_ge_u32 s%d, 2\ns_cbranch_scc1 L_worker\ns_mov_b32 s%d, s%d" % (CH.s_xcc, CH.s_x, CH.s_xcc))
    CH.emit_chain(a, mega=1, **ckw)
    a("s_endpgm")
    a("L_worker:")
    load_ptrs(a)
    a("s_getpc_b64 s[56:57]\ns_add_u32 s56, s56, task_table@rel32@lo+4\ns_addc_u32 s57, s57, task_table@rel32@hi+12")
    a("s_sub_u32 s20, s20, 2\ns_lshl_b32 s4, s20, 3\ns_load_dwordx2 s[58:59], s[56:57], s4")
    a("s_lshl_b32 s60, s20, 7\ns_add_u32 s60, s60, %d" % (FLAGS + 128 * C_Q))
    a("s_mov_b32 s61, s22\ns_mov_b32 s62, %d" % SPINW)
    a("""
    s_cmp_lg_u32 s21, 0
    s_cbranch_scc1 L_w_task
    v_mov_b32 v4, 128
    L_w_ini:
    buffer_load_dword v5, v4, s[16:19], 0 offen sc1
    s_sub_u32 s62, s62, 1
    s_cbranch_scc1 L_w_fail
    s_waitcnt vmcnt(0)
    v_cmp_eq_u32 vcc, 0, v5
    s_cbranch_vccnz L_w_ini
    L_w_task:
    s_waitcnt lgkmcnt(0)
    s_cmp_ge_u32 s61, s59
    s_cbranch_scc1 L_end
    s_lshl_b32 s4, s61, 5
    s_add_u32 s4, s4, s58
    s_load_dwordx8 s[48:55], s[56:57], s4
    """)
    if trace: a("s_memrealtime s[88:89]")
    a("""
    s_waitcnt lgkmcnt(0)
    s_cmp_lg_u32 s21, 0
    s_cbranch_scc1 L_w_go
    s_cmp_eq_u32 s50, 0
    s_cbranch_scc1 L_w_go
    v_mov_b32 v4, 0
    L_w_poll:
    buffer_load_dword v5, v4, s[8:11], s49 offen sc1
    s_sub_u32 s62, s62, 1
    s_cbranch_scc1 L_w_fail
    s_waitcnt vmcnt(0)
    v_cmp_le_u32 vcc, s50, v5
    s_cbranch_vccnz L_w_go
    s_sleep 4
    s_branch L_w_poll
    L_w_go:
    s_barrier
    """)
    if trace: a("s_memrealtime s[90:91]")
    a("s_mov_b32 s%d, s52\ns_mov_b32 s%d, s53\ns_mov_b32 s%d, s54" % (s_xoff, s_woff, s_obase))
    for t in range(12): a("s_cmp_eq_u32 s48, %d\ns_cbranch_scc1 L_t%d" % (t, t))
    a("s_branch L_end")
    gA = Gemm("ga", 8, 8, 4); gAs = Gemm("gas", 8, 8, 4, swap=True); gB = Gemm("gb", 8, 4, 4); gBs = Gemm("gbs", 8, 4, 4, swap=True)
    def stub(t, g, pa, pb, wbytes, xrs, ldw, ngrp, ors, ohalf, epi, half=True):
        a("L_t%d:" % t)
        set_w(a, pa, pb, wbytes)
        a("s_mov_b32 s%d, %d\ns_mov_b32 s%d, %d\ns_mov_b32 s%d, %d\ns_mov_b32 s%d, %d\ns_mov_b32 s%d, %d\ns_mov_b32 s%d, %d" % (
            s_xrs, xrs, s_ldw, ldw, s_ngrp, ngrp, s_ors, ors, s_ohalf, ohalf, s_epi, epi))
        if half: a("s_lshr_b32 s%d, s%d, 1\ns_mul_i32 s%d, s%d, %d\ns_add_u32 s%d, s%d, s%d" % (t0_, s_w, t0_, t0_, g.BN, s_woff, s_woff, t0_))
        a("s_branch L_%s" % g.name)
    t0_ = 4
    stub(T_QA, gA, P_WQ, P_WQ, 8 * MB, 32768, 8192, 8, 131072, 4096, 0)
    stub(T_KA, gA, P_WK, P_WK, 8 * MB, 32768, 8192, 8, 131072, 4096, 0)
    stub(T_VA, gAs, P_WV, P_WV, 8 * MB, 32768, 8192, 8, 262144, 8192, 0)
    stub(T_KB, gB, P_WK, P_WK, 8 * MB, 32768, 8192, 8, 131072, 2048, 0)
    stub(T_VB, gBs, P_WV, P_WV, 8 * MB, 32768, 8192, 8, 262144, 4096, 0)
    stub(T_O, gB, P_WO, P_WO, 8 * MB, 131072, 2048, 8, 65536, 4096, 1)
    stub(T_GU, gB, P_WG, P_WU, 1024 * 7168, 32768, 7168, 8, 114688, 0, 2, half=False)
    stub(T_D, gB, P_WD, P_WD, 3584 * 2048, 114688, 2048, 7, 65536, 4096, 1)
    a("L_ga:"); gA.body(a); gA.epi_t16(a); a("s_branch L_w_done")
    a("L_gas:"); gAs.body(a); gAs.epi_vt(a); a("s_branch L_w_done")
    a("L_gbs:"); gBs.body(a); gBs.epi_vt(a); a("s_branch L_w_done")
    a("L_gb:"); gB.body(a)
    a("s_cmp_eq_u32 s%d, 1\ns_cbranch_scc1 L_gb_f32\ns_cmp_eq_u32 s%d, 2\ns_cbranch_scc1 L_gb_gu" % (s_epi, s_epi))
    gB.epi_t16(a); a("s_branch L_w_done")
    a("L_gb_f32:"); gB.epi_f32(a); a("s_branch L_w_done")
    a("L_gb_gu:"); gB.epi_gu(a); a("s_branch L_w_done")
    a("L_t%d:" % T_LN1); task_ln1(a, 52); a("s_branch L_w_done")
    a("L_t%d:" % T_LN2); task_ln2(a, 52, 4, PART_O, 8 * MB); a("s_branch L_w_done")
    a("L_t%d:" % T_FIN); task_fin(a, 52, 4, PART_D, 8 * MB); a("s_branch L_w_done")
    a("L_t%d:" % T_ATT); att_setup(a)
    a("s_lshr_b32 s43, s21, 1\ns_add_u32 s43, s43, s52\ns_and_b32 s44, s21, 1\ns_add_u32 s44, s44, s53\ns_mov_b32 s45, 2\nL_att:")
    task_att(a, 43, 44)
    a("s_add_u32 s43, s43, 2\ns_sub_u32 s45, s45, 1\ns_cmp_lg_u32 s45, 0\ns_cbranch_scc1 L_att")
    a("L_w_done:")
    a("s_waitcnt vmcnt(0)\ns_barrier")
    a("v_mov_b32 v7, %d" % CH.L_MISC)
    a("s_cmp_lg_u32 s21, 0\ns_cbranch_scc1 L_w_nx")
    a("""
    s_mov_b64 exec, 1
    s_lshr_b32 s4, s51, 16
    s_and_b32 s5, s51, 0xffff
    s_add_u32 s5, s5, %d
    v_mov_b32 v4, 0
    v_mov_b32 v5, s4
    v_mov_b32 v6, 1
    buffer_atomic_add v5, v4, s[8:11], s5 offen
    buffer_atomic_add v6, v4, s[8:11], s60 offen sc0
    """ % FLAGS)
    if trace:
        a("s_memrealtime s[92:93]\ns_lshl_b32 s4, s61, 5\ns_add_u32 s4, s4, s58\ns_add_u32 s4, s4, %d\ns_waitcnt lgkmcnt(0)" % (FLAGS + 4 * MB))
        a("v_mov_b32 v8, s88\nv_mov_b32 v9, s90\nv_mov_b32 v10, s92\nv_mov_b32 v11, s22\nbuffer_store_dwordx4 v[8:11], v4, s[8:11], s4 offen")
    a("""
    s_waitcnt vmcnt(0)
    ds_write_b32 v7, v6
    s_waitcnt lgkmcnt(0)
    s_mov_b64 exec, -1
    L_w_nx:
    s_barrier
    ds_read_b32 v6, v7
    s_waitcnt lgkmcnt(0)
    v_readfirstlane_b32 s61, v6
    s_add_u32 s61, s61, 32
    s_branch L_w_task
    L_w_fail:
    v_mov_b32 v7, %d
    v_mov_b32 v6, 0x7fffff00
    ds_write_b32 v7, v6
    v_mov_b32 v4, 96
    v_mov_b32 v5, 1
    buffer_atomic_add v5, v4, s[16:19], 0 offen
    s_waitcnt vmcnt(0) lgkmcnt(0)
    L_end:
    s_endpgm
    """ % CH.L_MISC)
    kernel_desc(a, NAME, 512, 102, 256)
    a(".p2align 6\ntask_table:")
    off = 64
    hdr = []
    for l in lists: hdr += [off, len(l)]; off += 32 * len(l)
    a(".long " + ", ".join(map(str, hdr + [0] * (16 - len(hdr)))))
    for l in lists:
        for i in l:
            t = T[i]
            a(".long %d,%d,%d,%d,%d,%d,%d,%d" % (t.typ, FLAGS + 128 * t.wait, t.target, 128 * t.sig | (t.inc << 16), *t.p))
    gen.T, gen.lists = T, lists
    return a.text()
if __name__ == "__main__":
    HDR = open("sequential_preLN__memory_aug_recurrent_mem_tr__swiglu_ffn__prompt.s.ref").read().split("; Override launch")[0]
    open(sys.argv[1], "w").write(HDR + gen(tau=3.0, ckw=dict(stamps=0, fdelay=32, rdelay=40, rgap=24, xd1=0)))
```

```python
import sys
from asmlib import *
from layout import *

L_WO = 0; L_PL = 98304; L_PR = 114688; L_KX = 131072; L_VX = 139264; L_F = 147456; L_O = 151552; L_VM = 153600
L_DUM = 157696; L_MISC = 158720
LDS_BYTES = 163840
OOB = 0x80000000
SPIN = 400000

def nop(a, n):
    while n > 0:
        k = min(n, 16); a("s_nop %d" % (k - 1)); n -= k

def srd(a, d, lo, hi, nbytes):
    a("s_mov_b32 s%d, s%d\ns_mov_b32 s%d, s%d\ns_mov_b32 s%d, 0x%x\ns_mov_b32 s%d, 0x00020000" % (d, lo, d + 1, hi, d + 2, nbytes, d + 3))

S_WS = 8; S_W = 12; S_DBG = 16
s_xcc, s_w, s_i, s_x, s_h, s_b, s_step, s_spin = 20, 21, 22, 23, 24, 25, 26, 27
s_sent, s_scale = 28, 29
s_t0, s_t1, s_t2, s_t3 = 4, 5, 6, 7
o_qk_own, o_qk_par, o_vx_own, o_vx_par = 30, 31, 32, 33
o_i3st = 34
o_i3ld, o_pl, o_pr, o_plf, o_prf = 38, 39, 40, 41, 42
m_pl, m_kv = 43, 44
o_kv, o_km, o_kmn = 45, 46, 47
CUR, NXT, P2 = "s[12:15]", "s[48:51]", "s[52:55]"
WS = "s[8:11]"
MK = "s[4:5]"
v_af, v_lane, v_l16, v_l8, v_idx, v_vk, v_pst, v_i3st, v_i3l0, v_xo, v_fown, v_fpar, v_owr, v_flag, v_word, v_ahi = range(0, 16)
v_avx = 1
v_sent = 16; v_ord = 18; v_kmr = 19; v_ones = 20; v_sel = 24
v_aq, v_ak, v_av = 28, 32, 36
V_WO = 96; V_WV = 128
HI = 98304

def r4(v): return "v[%d:%d]" % (v, v + 3)
def r2(v): return "v[%d:%d]" % (v, v + 1)
def r8(v): return "v[%d:%d]" % (v, v + 7)

def wtile(m, f):
    if m == 0: return "a[%d:%d]" % (8 * f, 8 * f + 7)
    if m == 1: return "a[%d:%d]" % (128 + 8 * f, 128 + 8 * f + 7)
    return "v[%d:%d]" % (V_WV + 8 * f, V_WV + 8 * f + 7)

class LQ:
    def __init__(self, a): self.a = a; self.q = []
    def op(self, ins, tag=None): self.a(ins); self.q.append(tag)
    def need(self, tag):
        if tag not in self.q: return
        k = len(self.q) - 1 - self.q[::-1].index(tag)
        self.a("s_waitcnt lgkmcnt(%d)" % (len(self.q) - 1 - k)); self.q = self.q[k + 1:]
    def all(self):
        self.a("s_waitcnt lgkmcnt(0)"); self.q = []

def emit_chain(a, stamps=False, nsteps=64, pq=(5, 9, 12, 15), rdelay=0, nokv=0, nokm=0, tw=0, xd0=0, xd1=24, fdelay=0, forcec=None, focus=None, rgap=0, vpos=0, align=0, mega=0, kvw=(4, 0, 0), fdepth=24, fgap=0, xd2=None, vearly=0, spos=None):
    A = a
    def stamp(k):
        if focus:
            k = focus.get(k)
            if k is None: return
        elif not isinstance(k, int): return
        if stamps > 1: A("s_memtime s[%d:%d]" % (60 + 2 * k, 61 + 2 * k))
    def cnt(k):
        if stamps: A("s_add_u32 s%d, s%d, 1" % (96 + k, 96 + k))
    A("s_lshr_b32 s%d, s%d, 1\ns_lshl_b32 s%d, s%d, 4\ns_add_u32 s%d, s%d, s%d\ns_and_b32 s%d, s%d, 1" % (s_h, s_i, s_t0, s_x, s_h, s_h, s_t0, s_b, s_i))
    A("s_mov_b32 s%d, 0x%x" % (s_sent, SENT))
    import struct, math
    sc = struct.unpack("<I", struct.pack("<f", 128 ** -0.5 * math.log2(math.e)))[0]
    A("s_mov_b32 s%d, 0x%x" % (s_scale, sc))
    T = 40
    A("v_lshlrev_b32 v%d, 4, v%d\nv_lshlrev_b32 v%d, 3, v%d" % (v_l16, v_lane, v_l8, v_lane))
    A("v_and_b32 v%d, 15, v%d" % (T, v_lane))
    A("v_lshrrev_b32 v%d, 4, v%d" % (T + 1, v_lane))
    A("v_and_b32 v%d, 7, v%d" % (T + 2, v_lane))
    A("v_cmp_gt_u32 vcc, 8, v%d" % T)
    A("v_mov_b32 v%d, 0xeeee\nv_mov_b32 v%d, 0x4444" % (T + 3, T + 4))
    A("v_cndmask_b32 v%d, v%d, v%d, vcc" % (v_idx, T + 3, T + 4))
    A("v_lshl_add_u32 v%d, v%d, 3, v%d\nv_lshlrev_b32 v%d, 4, v%d" % (T + 5, T + 1, T + 2, T + 5, T + 5))
    A("s_lshl_b32 s%d, s%d, 8\ns_cmp_lt_u32 s%d, 2\ns_cselect_b32 s%d, s%d, 0x%x\ns_lshl_b32 s%d, s%d, 9\ns_add_u32 s%d, s%d, s%d" % (s_t1, s_w, s_w, s_t1, s_t1, OOB, s_t0, s_i, s_t0, s_t0, s_t1))
    A("v_mov_b32 v%d, 0x%x\nv_lshrrev_b32 v%d, 1, v%d\nv_add_u32 v%d, s%d, v%d\nv_cndmask_b32 v%d, v%d, v%d, vcc" % (T + 7, OOB, T + 6, T + 5, T + 6, s_t1, T + 6, v_xo, T + 7, T + 6))
    A("v_lshrrev_b32 v%d, 5, v%d\nv_lshl_add_u32 v%d, v%d, 3, v%d\nv_lshlrev_b32 v%d, 4, v%d" % (T + 6, v_lane, T + 6, T + 6, T + 2, T + 6, T + 6))
    A("v_bfe_u32 v%d, v%d, 4, 1\nv_lshl_add_u32 v%d, v%d, 3, v%d\nv_add_u32 v%d, s%d, v%d\nv_cndmask_b32 v%d, v%d, v%d, vcc" % (T + 8, v_lane, T + 6, T + 8, T + 6, T + 6, s_t0, T + 6, v_pst, T + 7, T + 6))
    A("s_lshl_b32 s%d, s%d, 9\ns_add_u32 s%d, s%d, %d" % (s_t0, s_w, s_t0, s_t0, L_O))
    A("v_and_b32 v%d, 5, v%d\nv_bfe_u32 v%d, v%d, 3, 1\nv_lshl_add_u32 v%d, v%d, 1, v%d\nv_lshl_add_u32 v%d, v%d, 3, v%d" % (T + 6, v_lane, T + 7, v_lane, T + 6, T + 7, T + 6, T + 6, T + 1, T + 6))
    A("v_lshl_add_u32 v%d, v%d, 4, s%d\nv_add_u32 v%d, %d, v%d\nv_and_b32 v%d, 2, v%d\nv_cmp_ne_u32 vcc, 0, v%d\ns_nop 1" % (T + 6, T + 6, s_t0, T + 7, L_DUM, v_l16, T + 8, v_lane, T + 8))
    A("v_cndmask_b32 v%d, v%d, v%d, vcc\nv_mov_b32 v%d, 0" % (v_owr, T + 7, T + 6, v_vk))
    A("v_lshrrev_b32 v%d, 1, v%d\nv_lshl_add_u32 v%d, v%d, 4, v%d\nv_lshlrev_b32 v%d, 4, v%d" % (T + 3, T + 1, T + 3, T + 3, T, T + 3, T + 3))
    A("v_and_b32 v%d, 1, v%d\nv_lshl_add_u32 v%d, v%d, 3, v%d" % (T + 4, T + 1, v_i3st, T + 4, T + 3))
    A("v_lshlrev_b32 v%d, 4, v%d\nv_lshl_add_u32 v%d, v%d, 9, v%d" % (T + 3, T, v_i3l0, T + 1, T + 3))
    A("v_lshlrev_b32 v%d, 5, v%d\nv_lshl_add_u32 v%d, v%d, 3, v%d" % (T + 3, T, T + 3, T + 1, T + 3))
    A("s_lshl_b32 s%d, s%d, 2\ns_add_u32 s%d, s%d, s%d\ns_lshl_b32 s%d, s%d, 9\ns_add_u32 s%d, s%d, %d" % (s_t0, s_b, s_t0, s_t0, s_w, s_t0, s_t0, s_t0, s_t0, L_F))
    A("v_add_u32 v%d, s%d, v%d\nv_xor_b32 v%d, 2048, v%d" % (v_fown, s_t0, T + 3, v_fpar, v_fown))
    assert L_F % 4096 == 0
    A("s_lshl_b32 s%d, s%d, 1\ns_add_u32 s%d, s%d, s%d\nv_mov_b32 v%d, 0x%x\nv_writelane_b32 v%d, s%d, 0" % (s_t0, s_i, s_t0, s_t0, s_w, v_flag, OOB, v_flag, s_t0))
    A("s_cmp_lt_u32 s%d, 2\ns_cbranch_scc1 L_c_fl01\nv_mov_b32 v%d, v%d\nL_c_fl01:" % (s_w, v_flag, v_lane))
    A("v_lshl_add_u32 v%d, v%d, 3, v%d\nv_lshlrev_b32 v%d, 4, v%d\nv_add_u32 v%d, %d, v%d" % (v_ord, T + 1, T + 2, v_ord, v_ord, v_ord, L_O, v_ord))
    A("s_mul_i32 s%d, s%d, 24576\nv_add_u32 v%d, s%d, v%d" % (s_t0, s_w, v_word, s_t0, v_l16))
    A("v_add_u32 v%d, %d, v%d\nv_add_u32 v%d, %d, v%d" % (v_ahi, HI, v_l16, v_af, L_F, v_l8))
    for k in range(2): A("v_mov_b32 v%d, s%d" % (v_sent + k, s_sent))
    A("v_and_b32 v%d, 0xffffe00, v%d\nv_add_u32 v%d, v%d, v%d" % (v_kmr, v_fown, v_kmr, v_kmr, v_l8))
    A("v_mov_b32 v%d, 0x3f80\nv_mov_b32 v%d, 0x3f800000\nv_mov_b32 v%d, 0" % (T + 3, T + 4, T + 5))
    for q in range(4):
        A("v_cmp_eq_u32 vcc, %d, v%d\ns_nop 1\nv_cndmask_b32 v%d, v%d, v%d, vcc" % (2 * q, T + 2, v_sel + q, T + 5, T + 3))
        A("v_cmp_eq_u32 vcc, %d, v%d\ns_nop 1\nv_cndmask_b32 v%d, v%d, v%d, vcc" % (2 * q + 1, T + 2, v_sel + q, v_sel + q, T + 4))
    A("s_lshl_b32 s%d, s%d, 5\ns_add_u32 s%d, s%d, s%d" % (s_t0, s_x, s_t0, s_t0, s_i))
    A("s_lshl_b32 s%d, s%d, 2\ns_add_u32 s%d, s%d, s%d\ns_lshl_b32 s%d, s%d, 9" % (s_t1, s_t0, s_t1, s_t1, s_w, s_t1, s_t1))
    A("s_add_u32 s%d, s%d, %d\ns_xor_b32 s%d, s%d, 2048" % (o_qk_own, s_t1, R_QK, o_qk_par, o_qk_own))
    A("s_add_u32 s%d, s%d, %d\ns_xor_b32 s%d, s%d, 2048" % (o_vx_own, s_t1, R_VX, o_vx_par, o_vx_own))
    A("s_lshl_b32 s%d, s%d, 2\ns_add_u32 s%d, s%d, s%d\ns_lshl_b32 s%d, s%d, 6" % (s_t1, s_b, s_t1, s_t1, s_w, s_t1, s_t1))
    A("s_lshr_b32 s%d, s%d, 1\ns_add_u32 s%d, s%d, s%d\ns_lshl_b32 s%d, s%d, 9" % (s_t2, s_i, s_t1, s_t1, s_t2, s_t1, s_t1))
    A("s_lshl_b32 s%d, s%d, 18\ns_add_u32 s%d, s%d, %d" % (s_t2, s_x, s_t2, s_t2, R_I3))
    A("s_add_u32 s%d, s%d, s%d" % (o_i3st, s_t1, s_t2))
    for u in range(1, 4): A("s_add_u32 s%d, s%d, %d" % (o_i3st + u, o_i3st, u * 8192))
    A("s_lshl_b32 s%d, s%d, 13\ns_add_u32 s%d, s%d, s%d\ns_lshl_b32 s%d, s%d, 8\ns_add_u32 s%d, s%d, s%d" % (s_t1, s_i, o_i3ld, s_t1, s_t2, s_t1, s_w, o_i3ld, o_i3ld, s_t1))
    A("s_lshr_b32 s%d, s%d, 1\ns_lshl_b32 s%d, s%d, 14\ns_lshl_b32 s%d, s%d, 12\ns_add_u32 s%d, s%d, s%d\ns_add_u32 s101, s%d, %d" % (s_t1, s_t0, s_t1, s_t1, s_t2, s_b, s_t1, s_t1, s_t2, s_t1, PRB))
    A("s_lshl_b32 s%d, s%d, 14\ns_add_u32 s%d, s%d, %d" % (s_t1, s_x, o_pl, s_t1, R_PL))
    A("s_lshl_b32 s%d, s%d, 10\ns_add_u32 s%d, s%d, s%d\ns_lshl_b32 s%d, s%d, 12" % (s_t1, s_w, o_plf, o_pl, s_t1, s_t1, s_w))
    A("s_add_u32 s%d, s%d, %d\ns_add_u32 s%d, s%d, %d" % (m_pl, s_t1, L_PL, m_kv, s_t1, L_KX))
    A("s_lshr_b32 s%d, s%d, 1\ns_lshl_b32 s%d, s%d, 14\ns_and_b32 s%d, s%d, 1\ns_lshl_b32 s%d, s%d, 12\ns_add_u32 s%d, s%d, s%d" % (s_t0, s_h, s_t0, s_t0, s_t2, s_h, s_t2, s_t2, s_t0, s_t0, s_t2))
    A("s_lshl_b32 s%d, s%d, 18\ns_add_u32 s%d, s%d, s%d\ns_add_u32 s%d, s%d, %d" % (s_t2, s_w, s_t2, s_t2, s_t0, s_t2, s_t2, KX))
    A("s_lshl_b32 s%d, s%d, 14\ns_add_u32 s%d, s%d, s%d\ns_add_u32 s%d, s%d, %d" % (s_t0, s_h, s_t3, s_t0, s_t1, s_t3, s_t3, VT - 8192))
    A("s_cmp_lt_u32 s%d, 2\ns_cselect_b32 s%d, s%d, s%d" % (s_w, o_kmn, s_t2, s_t3))
    A("s_sub_u32 s%d, s%d, 0x80000\ns_sub_u32 s%d, s%d, s%d" % (s_xcc, s_t2, s_xcc, o_kmn, s_xcc))
    A("s_lshl_b32 s%d, s%d, 2\ns_add_u32 s%d, s%d, s%d\ns_lshl_b32 s%d, s%d, 10\ns_add_u32 s%d, s%d, s%d\ns_add_u32 s100, s%d, %d" % (
        s_t2, s_b, s_t2, s_t2, s_w, s_t2, s_t2, s_t2, s_t2, s_t0, s_t2, KM))
    def set_slot(srdname, off):
        d = int(srdname[2:srdname.index(":")])
        return ["s_add_u32 s%d, s8, %s" % (d, off), "s_addc_u32 s%d, s9, 0" % (d + 1)]
    def poisons(srd_):
        out = ["buffer_store_dwordx2 %s, v%d, %s, s%d offen" % (r2(v_sent), v_l8, srd_, o_qk_own),
               "buffer_store_dwordx2 %s, v%d, %s, s%d offen" % (r2(v_sent), v_l8, srd_, o_vx_own)]
        out += ["buffer_store_dwordx2 %s, v%d, %s, s%d offen" % (r2(v_sent), v_i3st, srd_, o_i3st + u) for u in range(4)]
        out += ["buffer_store_dwordx2 %s, v%d, %s, s%d offen" % (r2(v_sent), v_pst, srd_, o_pl)]
        return out
    A("s_mov_b32 s14, %d\ns_mov_b32 s15, 0x00020000" % SLOT)
    for sl in range(2):
        for x in set_slot(CUR, RING + sl * SLOT) + poisons(CUR): A(x)
    A("s_lshl_b32 s3, s%d, 12\ns_add_u32 s3, s3, %d\nv_mov_b32 v%d, 0" % (s_x, PFL, T))
    A("s_cmp_ge_u32 s%d, 2\ns_cbranch_scc1 L_c_nt\nbuffer_store_byte v%d, v%d, %s, s3 offen\nL_c_nt:" % (s_w, T, v_flag, WS))
    A("s_lshr_b32 s%d, s%d, 1\ns_lshl_b32 s%d, s%d, 19\ns_and_b32 s%d, s%d, 1\ns_lshl_b32 s%d, s%d, 13\ns_add_u32 s%d, s%d, s%d\ns_add_u32 s%d, s%d, s101" % (
        s_t0, s_w, s_t0, s_t0, s_t1, s_w, s_t1, s_t1, s_t0, s_t0, s_t1, s_t0, s_t0))
    A("buffer_store_dwordx2 %s, v%d, %s, s%d offen sc1" % (r2(v_sent), v_l8, WS, s_t0))
    A("s_waitcnt vmcnt(0)\ns_barrier")
    A("s_mov_b32 s%d, 1" % o_prf)
    A("s_cmp_lg_u32 s%d, 0\ns_cbranch_scc1 L_c_nocal" % s_w)
    A("s_mov_b32 s52, -1\ns_mov_b32 s53, -1")
    for it in range(2):
        for hf in ((0, 1) if it == 0 else (1, 0)):
            A("s_add_u32 s%d, s101, %d\ns_memtime s[48:49]\ns_waitcnt lgkmcnt(0)" % (s_t0, 3 * 524288 + hf * 8192 + it * 1024))
            A("buffer_store_dword v%d, v%d, %s, s%d offen sc1\ns_waitcnt vmcnt(0)\ns_memtime s[50:51]\ns_waitcnt lgkmcnt(0)" % (v_sent, v_l8, WS, s_t0))
            A("s_sub_u32 s50, s50, s48\ns_min_u32 s%d, s%d, s50" % (52 + hf, 52 + hf))
    A("s_cmp_lt_u32 s53, s52\ns_cselect_b32 s%d, 0x10001, 1" % o_prf)
    if forcec is not None: A("s_mov_b32 s%d, %d" % (o_prf, 1 + (forcec << 16)))
    A("v_mov_b32 v%d, s%d\nv_mov_b32 v%d, 192\ns_mov_b64 exec, 1\nbuffer_atomic_add v%d, v%d, s[16:19], 0 offen\ns_mov_b64 exec, -1" % (T, o_prf, T + 1, T, T + 1))
    A("L_c_nocal:\ns_barrier")
    A("s_waitcnt vmcnt(0)")
    A("s_load_dwordx8 s[48:55], s[0:1], 16")
    vq, vo, vrq, vro = T, T + 1, T + 2, T + 3
    A("v_lshrrev_b32 v%d, 3, v%d\nv_lshlrev_b32 v%d, 13, v%d\nv_and_b32 v%d, 7, v%d\nv_lshl_add_u32 v%d, v%d, 4, v%d" % (T + 4, v_lane, T + 4, T + 4, T + 5, v_lane, vq, T + 5, T + 4))
    A("v_bfe_u32 v%d, v%d, 5, 1\nv_lshlrev_b32 v%d, 4, v%d" % (T + 4, v_lane, T + 4, T + 4))
    A("v_bfe_u32 v%d, v%d, 3, 1\nv_lshl_add_u32 v%d, v%d, 3, v%d" % (T + 5, v_lane, T + 4, T + 5, T + 4))
    A("v_bfe_u32 v%d, v%d, 2, 1\nv_add_u32 v%d, v%d, v%d" % (T + 5, v_lane, T + 4, T + 5, T + 4))
    A("v_bfe_u32 v%d, v%d, 4, 1\nv_lshl_add_u32 v%d, v%d, 2, v%d" % (T + 5, v_lane, T + 4, T + 5, T + 4))
    A("v_and_b32 v%d, 3, v%d\nv_lshlrev_b32 v%d, 3, v%d" % (T + 5, v_lane, T + 5, T + 5))
    A("s_lshl_b32 s%d, s%d, 5\nv_add_u32 v%d, s%d, v%d\nv_lshl_add_u32 v%d, v%d, 7, v%d" % (s_t0, s_w, T + 6, s_t0, T + 5, vrq, T + 4, T + 6))
    A("v_bfe_u32 v%d, v%d, 4, 1\nv_xor_b32 v%d, s%d, v%d\nv_lshlrev_b32 v%d, 4, v%d" % (T + 4, v_lane, T + 4, s_b, T + 4, T + 4, T + 4))
    A("v_bfe_u32 v%d, v%d, 5, 1\nv_lshl_add_u32 v%d, v%d, 2, v%d" % (T + 6, v_lane, T + 4, T + 6, T + 4))
    A("v_bfe_u32 v%d, v%d, 2, 1\nv_add_u32 v%d, v%d, v%d" % (T + 6, v_lane, T + 4, T + 6, T + 4))
    A("v_bfe_u32 v%d, v%d, 3, 1\nv_lshl_add_u32 v%d, v%d, 5, v%d" % (T + 6, v_lane, T + 5, T + 6, T + 5))
    A("s_lshl_b32 s%d, s%d, 8\nv_add_u32 v%d, s%d, v%d\nv_lshl_add_u32 v%d, v%d, 10, v%d" % (s_t0, s_w, T + 6, s_t0, T + 5, vro, T + 4, T + 6))
    A("s_waitcnt lgkmcnt(0)")
    chunks = [("o", q) for q in range(4)] + [(0, c) for c in range(4)] + [(1, c) for c in range(4)] + [(2, c) for c in range(4)]
    bufs = [0, 1, 2, 3, 4, 0, 1, 2, 3, 4, 0, 1, 3, 4, 3, 4]
    def issue(ci):
        kind, c = chunks[ci]; buf = bufs[ci]
        p = 54 if kind == "o" else 48 + 2 * kind
        srd(a, S_W, p, p + 1, 8 * MB)
        A("s_lshl_b32 s%d, s%d, 13\ns_add_u32 s%d, s%d, %d" % (s_t2, s_w, s_t2, s_t2, buf * 32768))
        if kind == "o":
            A("s_lshr_b32 s%d, s%d, 1\ns_lshl_b32 s%d, s%d, 6\ns_and_b32 s%d, s%d, 1\ns_lshl_b32 s%d, s%d, 3\ns_add_u32 s%d, s%d, s%d" % (
                s_t0, s_w, s_t0, s_t0, s_t1, s_w, s_t1, s_t1, s_t0, s_t0, s_t1))
            A("s_lshl_b32 s%d, s%d, 7\ns_add_u32 s%d, s%d, s%d\ns_add_u32 s%d, s%d, %d\ns_lshl_b32 s%d, s%d, 11" % (s_t1, s_h, s_t0, s_t0, s_t1, s_t0, s_t0, 16 * c, s_t0, s_t0))
            A("s_lshl_b32 s%d, s%d, 10\ns_add_u32 s%d, s%d, s%d" % (s_t1, s_b, s_t0, s_t0, s_t1))
            va, stride = v_l16, 2048
        else:
            A("s_lshl_b32 s%d, s%d, 6\ns_add_u32 s%d, s%d, %d\ns_lshl_b32 s%d, s%d, 13" % (s_t0, s_w, s_t0, s_t0, 256 * c, s_t0, s_t0))
            A("s_lshl_b32 s%d, s%d, 8\ns_add_u32 s%d, s%d, s%d\ns_lshl_b32 s%d, s%d, 7\ns_add_u32 s%d, s%d, s%d" % (s_t1, s_h, s_t0, s_t0, s_t1, s_t1, s_b, s_t0, s_t0, s_t1))
            va, stride = vq, 8 * 8192
        for j in range(8):
            A("s_add_u32 m0, s%d, %d\ns_nop 0" % (s_t2, j * 1024))
            A("buffer_load_dwordx4 v%d, s[12:15], s%d offen lds" % (va, s_t0))
            if j < 7: A("s_add_u32 s%d, s%d, %d" % (s_t0, s_t0, stride))
    issued = 0
    def consume(ci):
        kind, c = chunks[ci]; buf = bufs[ci]
        A("s_waitcnt vmcnt(%d)\ns_barrier" % (8 * (issued - ci - 1)))
        A("v_add_u32 v%d, %d, v%d" % (T + 8, buf * 32768, vro if kind == "o" else vrq))
        if kind == "o":
            for u in range(4):
                for rho in range(4):
                    d = V_WV + (u * 4 + c) * 8 + 2 * rho
                    A("ds_read_b64_tr_b16 %s, v%d offset:%d" % (r2(d), T + 8, (8 * (rho >> 1) + 2 * (rho & 1)) * 1024 + u * 64))
        else:
            for fp in range(4):
                for rho in range(4):
                    f = 4 * c + fp
                    base = (8 * f if kind == 0 else 128 + 8 * f if kind == 1 else V_WV + 8 * f) + 2 * rho
                    dst = ("a[%d:%d]" if kind < 2 else "v[%d:%d]") % (base, base + 1)
                    A("ds_read_b64_tr_b16 %s, v%d offset:%d" % (dst, T + 8, (64 * fp + 32 * (rho >> 1) + 2 * (rho & 1)) * 128))
        A("s_waitcnt lgkmcnt(0)\ns_barrier")
    for ci in range(5): issue(ci); issued += 1
    nxt_after = {0: [5], 1: [6], 2: [7], 3: [8], 4: [9], 5: [10], 6: [11], 8: [12], 9: [13], 12: [14], 13: [15]}
    for ci in range(16):
        consume(ci)
        for n in nxt_after.get(ci, []):
            assert n == issued
            issue(n); issued += 1
        if ci == 11:
            for fr in range(12):
                for hf in range(2):
                    A("ds_write_b128 v%d, %s offset:%d" % (v_word, r4(V_WV + fr * 8 + 4 * hf), fr * 2048 + hf * 1024))
            for k in range(32): A("v_mov_b32 v%d, v%d" % (V_WO + k, V_WV + 96 + k))
            A("s_waitcnt lgkmcnt(0)")
    A("""
    v_mov_b32 v{T}, s{cal}
    v_mov_b32 v{T1}, 64
    s_mov_b64 exec, 1
    s_cmp_lg_u32 s{w}, 0
    s_cbranch_scc1 L_c_w1
    buffer_atomic_add v{T}, v{T1}, s[16:19], 0 offen
    L_c_w1:
    s_mov_b32 s{sp}, {SPIN}
    L_c_w:
    buffer_load_dword v{T}, v{T1}, s[16:19], 0 offen sc1
    s_sub_u32 s{sp}, s{sp}, 1
    s_cbranch_scc1 L_c_w2
    s_waitcnt vmcnt(0)
    v_and_b32 v{T2}, 0xffff, v{T}
    v_cmp_gt_u32 vcc, {NRDY}, v{T2}
    s_cbranch_vccnz L_c_w
    L_c_w2:
    v_readfirstlane_b32 s{cal}, v{T}
    s_mov_b64 exec, -1
    s_lshr_b32 s{cal}, s{cal}, 16
    s_cmp_ge_u32 s{cal}, 32
    s_cselect_b32 s{cal}, 8192, 0
    s_add_u32 s101, s101, s{cal}
    s_add_u32 s100, s100, s{cal}
    s_add_u32 s{kmn}, s{kmn}, s{cal}
    L_c_ready:
    """.format(w=s_w, T=T, T1=T + 1, T2=T + 2, NRDY=(65 if mega else 64), cal=o_prf, kmn=o_kmn, sp=s_spin, SPIN=SPIN))
    RD = 60
    L_KV0, L_KV1 = 114688, 131072
    s_cnt = 49
    def wait_kv(tag, off):
        A("v_mov_b32 v40, 0\nL_c_kw%s:" % tag)
        A("buffer_load_dword v41, v40, %s, s%d offen sc1" % (WS, off))
        A("s_sub_u32 s%d, s%d, 1\ns_cbranch_scc1 L_c_fail\ns_waitcnt vmcnt(0)" % (s_spin, s_spin))
        A("v_and_b32 v41, 15, v41\nv_cmp_ne_u32 vcc, 4, v41\ns_cbranch_vccnz L_c_kw%s" % tag)
    def signal(val):
        A("v_mov_b32 v40, 0\nv_mov_b32 v41, %s\ns_mov_b64 exec, 1\nbuffer_store_dword v41, v40, %s, s2 offen sc1\ns_mov_b64 exec, -1" % (val, WS))
    if mega:
        from serv import PROG
        A("s_lshl_b32 s2, s%d, 1\ns_add_u32 s2, s2, s%d\ns_lshl_b32 s2, s2, 7\ns_add_u32 s2, s2, %d\ns_add_u32 s2, s2, s%d" % (s_h, s_b, PROG, o_prf))
    if mega:
        from sched import C_HP
        A("s_lshr_b32 s%d, s%d, 1\ns_lshl_b32 s%d, s%d, 7\ns_add_u32 s%d, s%d, %d" % (s_t0, s_h, s_t0, s_t0, s_t0, s_t0, FLAGS + 128 * C_HP))
        A("s_cmp_lg_u32 s%d, 0\ns_cbranch_scc1 L_c_kv0\ns_mov_b32 s%d, %d" % (s_w, s_spin, SPIN))
        wait_kv("0", s_t0)
        A("L_c_kv0:\ns_barrier")
    A("s_load_dwordx2 s[48:49], s[0:1], 8\ns_waitcnt lgkmcnt(0)")
    srd(a, S_W, 48, 49, 16384)
    A("v_and_b32 v%d, 7, v%d\nv_lshlrev_b32 v%d, 11, v%d\nv_lshrrev_b32 v%d, 4, v%d\nv_lshl_add_u32 v%d, v%d, 3, v%d" % (T, v_lane, T, T, T + 1, v_lane, T, T + 1, T))
    A("s_lshl_b32 s%d, s%d, 6\ns_and_b32 s%d, s%d, 1\ns_lshl_b32 s%d, s%d, 5\ns_add_u32 s%d, s%d, s%d" % (s_t0, s_i, s_t1, s_w, s_t1, s_t1, s_t0, s_t0, s_t1))
    A("buffer_load_dwordx2 %s, v%d, s[12:15], s%d offen" % (r2(T + 4), T, s_t0))
    def kv_ld(js, off=o_kv): return ["buffer_load_dwordx4 v%d, %s, s%d offen offset:%d sc1 lds" % (v_l16, WS, off, j * 1024) for j in js]
    kv_adv = ["s_xor_b32 s%d, s%d, %d" % (m_kv, m_kv, L_KV0 ^ L_KV1)]
    def seg_off(dst, base, delta):
        A("s_add_u32 s%d, s%d, %d\ns_lshl_b32 s%d, s%d, 11\ns_and_b32 s%d, s%d, 8192\ns_xor_b32 s%d, s%d, s%d\ns_lshl_b32 s%d, s%d, 19\ns_add_u32 s%d, s%d, s%d" % (
            s_t0, s_step, delta, s_t1, s_t0, s_t1, s_t1, s_t1, s_t1, base, s_t0, s_t0, dst, s_t0, s_t1))
    A("s_mov_b32 s%d, s%d" % (o_kv, o_kmn))
    J1 = list(range(kvw[0])); J2 = list(range(kvw[0], kvw[0] + kvw[1])); J3 = list(range(kvw[0] + kvw[1], 4))
    if nokv: J1 = J2 = J3 = []
    def kv_w3():
        if not J3: return
        A("s_mov_b32 m0, s%d\ns_sub_u32 s%d, s%d, s%d" % (m_kv, s_t0, o_kv, s_xcc))
        for x in kv_ld(J3): A(x)
        A("s_sub_u32 m0, s%d, 8192\ns_nop 0" % m_kv)
        for x in kv_ld(J3, s_t0): A(x)
    for x in ["s_mov_b32 m0, s%d" % m_kv, "s_nop 0"] + kv_ld(range(4)) + kv_adv: A(x)
    A("s_waitcnt vmcnt(0)")
    for k in range(2):
        A("v_lshlrev_b32 v%d, 16, v%d\nv_and_b32 v%d, 0xffff0000, v%d" % (RD + 2 * k, T + 4 + k, RD + 2 * k + 1, T + 4 + k))
    A("s_lshl_b32 s%d, s%d, 2\ns_add_u32 s%d, s%d, s%d\ns_lshl_b32 s%d, s%d, 10" % (m_pl, s_b, m_pl, m_pl, s_w, m_pl, m_pl))
    A("s_add_u32 s%d, s%d, %d\nv_add_u32 v%d, s%d, v%d" % (s_t0, m_pl, L_KV1, v_avx, s_t0, v_l16))
    for d in (12, 52): A("s_mov_b32 s%d, %d\ns_mov_b32 s%d, 0x00020000" % (d + 2, SLOT, d + 3))
    A("s_mov_b32 s%d, 0\ns_mov_b32 s%d, %d" % (s_step, s_spin, SPIN))
    o_xp = 48
    if mega: A("s_lshr_b32 s%d, s%d, 1\ns_lshl_b32 s%d, s%d, 7\ns_add_u32 s%d, s%d, %d" % (s_cnt, s_h, s_cnt, s_cnt, s_cnt, s_cnt, FLAGS + 128 * C_HP))
    A("s_mov_b32 s50, 0x3f803f80\ns_mov_b32 s51, 0x3f803f80")
    def book():
        A("s_and_b32 s%d, s%d, 3\ns_lshl_b32 s%d, s%d, 19\ns_add_u32 s%d, s%d, s101\ns_xor_b32 s%d, s%d, 262144\ns_xor_b32 s%d, s%d, %d" % (
            s_t0, s_step, s_t1, s_t0, o_pr, s_t1, o_prf, o_pr, o_xp, o_pr, 2 << 19))
        A("s_lshl_b32 s%d, s%d, 20\ns_add_u32 s%d, s%d, %d" % (s_t0, s_t0, s_t0, s_t0, RING))
        for x in set_slot(CUR, "s%d" % s_t0): A(x)
        A("s_xor_b32 s%d, s%d, %d" % (s_t0, s_t0, 2 * SLOT))
        for x in set_slot(P2, "s%d" % s_t0): A(x)
        seg_off(o_km, 100, -1); seg_off(o_kv, o_kmn, 1)
    book()
    A("s_mov_b32 s%d, 0x%x" % (o_km, OOB))
    A("s_barrier")
    if stamps:
        A("s_memtime s[56:57]\ns_memrealtime s[58:59]")
        for k in range(10): A("s_mov_b32 s%d, 0" % (80 + k))
        for k in range(4): A("s_mov_b32 s%d, 0" % (96 + k))
        A("s_waitcnt lgkmcnt(0)\ns_mov_b32 s93, s56\ns_mov_b32 s76, s56\ns_mov_b32 s62, s56")
    AR = 40; NR = 6
    z = lambda r: "v_mov_b64 %s, 0" % r2(r)
    def smf(m, f): A("v_smfmac_f32_16x16x64_bf16 %s, %s, %s, v%d" % (r4((v_aq, v_ak, v_av)[m]), r4(AR + 4 * (f % NR)), wtile(m, f % 16), v_idx))
    def qrd(lq, f): lq.op("ds_read_b128 %s, v%d offset:%d" % (r4(AR + 4 * (f % NR)), v_ahi, L_PL - HI + (f % 16) * 1024), ("A", f))
    def fetch():
        A("s_lshl_b32 s%d, s%d, 10\ns_add_u32 m0, s%d, %d\ns_mov_b32 s%d, s%d" % (s_t0, s_w, s_t0, L_PL, s_t1, o_plf))
        for j in range(4):
            A("buffer_load_dwordx4 v%d, %s, s%d offen sc1 lds" % (v_l16, CUR, s_t1))
            if j < 3: A("s_add_u32 m0, m0, 4096\ns_add_u32 s%d, s%d, 4096" % (s_t1, s_t1))
    def prep_lds():
        A("v_subrev_u32 v45, s%d, v%d" % (m_pl, v_avx))
        for k in range(8): A("ds_read_b128 %s, v45 offset:%d" % (r4(64 + 4 * k), k * 1024))
        A("ds_read_b64_tr_b16 v[40:41], v%d\nv_mov_b32 v42, v%d\nv_mov_b32 v43, 0" % (v_kmr, v_vk))
    def prep():
        prep_lds()
        for k in range(6): A(z(v_aq + 2 * k))
    km_store = "buffer_store_dwordx4 v[40:43], v%d, %s, s%d offen sc1" % (v_l16, WS, o_km)
    chk = lambda r: "v_cmp_eq_u32 vcc, s%d, v%d\nv_cmp_eq_u32 %s, s%d, v%d\ns_or_b64 vcc, vcc, %s" % (s_sent, r, MK, s_sent, r + 1, MK)
    A("s_cmp_ge_u32 s%d, 2\ns_cbranch_scc1 L_c_idle3" % s_w)
    prep()
    for k in range(2): A("v_cvt_pk_bf16_f32 v%d, v%d, v%d" % (46 + k, RD + 2 * k, RD + 2 * k + 1))
    A("v_mov_b32 v44, 1")
    if align: A("s_branch L_c_xok\n.p2align 6\n" + "s_nop 0\n" * (align - 1))
    A("L_c_xok:")
    A("buffer_store_dwordx2 v[46:47], v%d, %s, s%d offen" % (v_pst, CUR, o_pl))
    A("buffer_store_byte v44, v%d, %s, s3 offen" % (v_flag, WS))
    stamp(1)
    A("L_c_b0:")
    if stamps == 3:
        A("s_waitcnt lgkmcnt(0)")
        A("s_mul_i32 s%d, s%d, 64\ns_add_u32 s%d, s%d, %d\ns_cmp_lg_u32 s%d, %d\ns_cselect_b32 s%d, %d, s%d\nv_mov_b32 v52, s%d" % (
            s_t0, s_step, s_t0, s_t0, L_MISC + 64, s_w, tw, s_t0, L_DUM, s_t0, s_t0))
        for k in range(14):
            A("v_mov_b32 v53, s%d\nds_write_b32 v52, v53 offset:%d" % (60 + 2 * k if k < 10 else 86 + k, 4 * k))
        A("L_c_b0x:")
    A("s_barrier")
    stamp(9)
    fetch()
    slow = kv_ld(J1) + ([] if nokm else [km_store]) + ["buffer_store_dwordx2 %s, v%d, %s, s%d offen sc1" % (r2(v_sent), v_xo, WS, o_xp), poisons(P2)[6]]
    if spos is None:
        nj = len(slow)
        A("s_mov_b32 m0, s%d\ns_waitcnt lgkmcnt(0)\ns_barrier" % m_kv)
        for x in slow: A(x)
        slow = []
    else:
        nj = 0
        A("s_mov_b32 m0, s%d\ns_waitcnt lgkmcnt(0)" % m_kv)
        if not nokm:
            A("v_mov_b64 v[20:21], v[40:41]\nv_mov_b64 v[22:23], v[42:43]")
            slow = [x.replace("v[40:43]", "v[20:23]") for x in slow]
    A("s_waitcnt vmcnt(%d)" % (3 + nj))
    A("L_c_b1:")
    A("s_barrier")
    stamp(0)
    lq = LQ(a)
    for f in range(4): qrd(lq, f)
    rdn = 4
    for f in range(11):
        lq.need(("A", f)); smf(0, f)
        while rdn <= min(f + NR - 1, 15) and (f > 0 or rdn < 4):
            if rdn % 4 == 0: A("s_waitcnt vmcnt(%d)\ns_barrier" % (3 - rdn // 4 + nj))
            qrd(lq, rdn); rdn += 1
        smf(1, f)
        if slow and f in spos:
            A(slow.pop(0)); nj += 1
    assert not slow
    stamp("q5")
    for f in range(11, 16):
        lq.need(("A", f)); smf(0, f)
    smf(1, 11); qrd(lq, 16); nop(a, 1); smf(1, 12); qrd(lq, 17); nop(a, 1); smf(1, 13); qrd(lq, 18)
    A("v_permlane32_swap_b32 v28, v30")
    smf(1, 14)
    A("v_permlane32_swap_b32 v29, v31")
    smf(1, 15)
    A("v_add_f32 v28, v28, v30\nv_add_f32 v29, v29, v31")
    lq.need(("A", 16)); smf(2, 16)
    A("v_cmp_u_f32 vcc, v28, v29\nv_cvt_pk_bf16_f32 v31, v28, v29")
    qrd(lq, 19); qrd(lq, 20)
    stamp("qe")
    A("v_permlane32_swap_b32 v32, v34\nv_permlane32_swap_b32 v33, v35")
    A("v_pk_add_f32 v[32:33], v[32:33], v[34:35]\nv_cvt_pk_bf16_f32 v30, v32, v33")
    A("s_cbranch_vccnz L_c_nanq\nL_c_qok:")
    A("buffer_store_dwordx2 v[30:31], v%d, %s, s%d offen" % (v_l8, CUR, o_qk_own))
    stamp(3)
    lq.op("ds_write_b64 v%d, v[30:31]" % v_fown)
    PQ = [34, 32, 20, 22]
    PQ0 = PQ[0]
    ldq = lambda r: "buffer_load_dwordx2 %s, v%d, %s, s%d offen sc1" % (r2(r), v_l8, CUR, o_qk_par)
    qrd(lq, 21)
    for f in range(1, 16):
        lq.need(("A", 16 + f)); smf(2, 16 + f)
        if f + NR - 1 < 16: qrd(lq, 16 + f + NR - 1)
        if f in pq: A(ldq(PQ[pq.index(f)]))
    stamp("ve")
    A("s_waitcnt vmcnt(3)")
    lq.op("ds_write_b64 v%d, %s" % (v_fpar, r2(PQ0)))
    A(chk(PQ0) + "\ns_cbranch_vccnz L_c_qretry")
    A("L_c_qgot:")
    lq.all()
    A("s_barrier")
    stamp(4)
    lq = LQ(a)
    for kp in range(4):
        for hf in range(2): lq.op("ds_read_b64_tr_b16 %s, v%d offset:%d" % (r2(40 + 4 * kp + 2 * hf), v_af, kp * 1024 + hf * 512), ("F", kp))
    Tm, T0, T1 = 28, 32, 56
    side = {(0, 0): ["s_waitcnt vmcnt(%d)" % (2 + vearly)], (0, 1): ["v_permlane32_swap_b32 v36, v38"], (0, 2): ["v_permlane32_swap_b32 v37, v39"],
            (1, 0): ["v_add_f32 v36, v36, v38"], (1, 1): ["v_add_f32 v37, v37, v39"], (1, 2): ["v_cvt_pk_bf16_f32 v36, v36, v37"],
            (2, 0): ["buffer_store_dword v36, v%d, %s, s%d offen" % (v_l8, CUR, o_vx_own)],
            (2, 1): ["v_xor_b32 v60, 4096, v%d" % v_avx, "s_cmp_eq_u32 s%d, %d" % (s_step, nsteps - 1)], (2, 2): ["v_mov_b32 v%d, v36" % v_vk],
            (3, 0): [("ds_read_b128 v[40:43], v%d offset:8192" % v_avx, "vx")], (3, 1): [("ds_read_b128 v[44:47], v60 offset:8192", "vx")]}
    if vearly:
        for k in ((0, 1), (0, 2), (1, 0), (1, 1), (1, 2), (2, 0)):
            for x in side.pop(k): A(x)
    for kp in range(4):
        lq.need(("F", kp))
        F = r4(40 + 4 * kp)
        for j, (D, Aop) in enumerate(((Tm, F), (T0, r4(64 + 4 * kp)), (T1, r4(80 + 4 * kp)))):
            A("v_mfma_f32_16x16x32_bf16 %s, %s, %s, %s" % (r4(D), Aop, F, "0" if kp == 0 else r4(D)))
            for x in side.get((kp, j), []):
                if isinstance(x, tuple): lq.op(*x)
                else: A(x)
    BUF = [64, 72, 80, 88, 56]
    def word(fr, buf):
        for hf in range(2): lq.op("ds_read_b128 %s, v%d offset:%d" % (r4(BUF[buf] + 4 * hf), v_word, fr * 2048 + hf * 1024), ("W", fr))
    stamp("se")
    A("s_cbranch_scc1 L_c_last")
    A("s_waitcnt vmcnt(1)\nv_mov_b64 v[20:21], s[50:51]\nv_mov_b64 v[22:23], s[50:51]\nv_mov_b32 v37, 0\nv_mov_b32 v39, 0")
    A("v_max3_f32 v61, v28, v29, v32\nv_max3_f32 v62, v33, v34, v35")
    A("v_max3_f32 v61, v56, v57, v61\nv_max3_f32 v62, v58, v59, v62\nv_max_f32 v61, v61, v62")
    A("v_mov_b32 v62, v61")
    word(0, 0)
    A("v_permlane32_swap_b32 v61, v62\nv_max_f32 v61, v61, v62")
    A("v_mov_b32 v62, v61")
    word(1, 1)
    A("v_permlane16_swap_b32 v61, v62\nv_max_f32 v61, v61, v62")
    A("v_mul_f32 v61, s%d, v61" % s_scale)
    stamp("mx")
    ldv = "buffer_load_dword v38, v%d, %s, s%d offen sc1" % (v_l8, CUR, o_vx_par)
    if vpos == 0: A(ldv)
    regs = [32, 33, 34, 35, 56, 57, 58, 59]
    for r in regs: A("v_fma_f32 v%d, v%d, s%d, -v61" % (r, r, s_scale))
    if vpos == 1: A(ldv)
    for r in regs: A("v_exp_f32 v%d, v%d" % (r, r))
    A("v_fma_f32 v28, v28, s%d, -v61" % s_scale)
    A("v_cvt_pk_bf16_f32 v48, v32, v33\nv_cvt_pk_bf16_f32 v49, v34, v35\nv_cvt_pk_bf16_f32 v50, v56, v57\nv_cvt_pk_bf16_f32 v51, v58, v59")
    A("v_fma_f32 v29, v29, s%d, -v61" % s_scale)
    lq.need("vx")
    LS, O0, O1 = 60, 56, 32
    stamp(5)
    A("v_mfma_f32_16x16x32_bf16 %s, %s, v[48:51], 0" % (r4(LS), r4(v_ones)))
    A("v_exp_f32 v28, v28")
    A("v_mfma_f32_16x16x32_bf16 %s, v[40:43], v[48:51], 0" % r4(O0))
    A("v_exp_f32 v29, v29\nv_mov_b32 v53, 0")
    A("v_mfma_f32_16x16x32_bf16 %s, v[44:47], v[48:51], 0" % r4(O1))
    A("v_mov_b64 v[54:55], 0\nv_cvt_pk_bf16_f32 v52, v28, v29")
    A("s_waitcnt vmcnt(0)\nv_cmp_eq_u32 vcc, s%d, v38" % s_sent)
    A("v_mfma_f32_16x16x32_bf16 %s, %s, v[52:55], %s" % (r4(LS), r4(v_ones), r4(LS)))
    A("s_cbranch_vccnz L_c_vretry\nL_c_vok:")
    A("v_mfma_f32_16x16x32_bf16 %s, v[36:39], v[52:55], %s" % (r4(O0), r4(O0)))
    A("v_mfma_f32_16x16x32_bf16 %s, v[38:41], v[52:55], %s" % (r4(O1), r4(O1)))
    stamp("pv")
    ACC = [28, 32, 36, 20]
    word(2, 2)
    A(z(28) + "\n" + z(30) + "\nv_xor_b32 v%d, %d, v%d" % (v_avx, L_KV0 ^ L_KV1, v_avx))
    A("v_rcp_f32 v48, v%d" % LS)
    A(z(20))
    A("v_pk_mul_f32 v[56:57], v[56:57], v[48:49] op_sel_hi:[1,0]\nv_pk_mul_f32 v[58:59], v[58:59], v[48:49] op_sel_hi:[1,0]")
    A("v_pk_mul_f32 v[32:33], v[32:33], v[48:49] op_sel_hi:[1,0]\nv_pk_mul_f32 v[34:35], v[34:35], v[48:49] op_sel_hi:[1,0]")
    A("v_cvt_pk_bf16_f32 v52, v56, v57\nv_cvt_pk_bf16_f32 v53, v58, v59\nv_cvt_pk_bf16_f32 v54, v32, v33\nv_cvt_pk_bf16_f32 v55, v34, v35")
    lq.op("ds_write_b128 v%d, v[52:55]" % v_owr, "ow")
    stamp("ow")
    word(3, 3)
    word(4, 4)
    A("\n".join(z(r) for r in (22, 32, 34, 38, 36)))
    lq.need("ow")
    A("s_barrier")
    stamp(6)
    for k in range(4): lq.op("ds_read_b128 %s, v%d offset:%d" % (r4(40 + 4 * k), v_ord, k * 512), ("o", k))
    if J2:
        for x in ["s_mov_b32 m0, s%d" % m_kv, "s_nop 0"] + kv_ld(J2): A(x)
    for x in kv_adv: A(x)
    A("s_add_u32 s%d, s%d, 1" % (s_step, s_step))
    def post(u):
        t = ACC[u]
        return ["v_cvt_pk_bf16_f32 v%d, v%d, v%d" % (t, t, t + 1), "v_cvt_pk_bf16_f32 v%d, v%d, v%d" % (t + 1, t + 2, t + 3),
                "buffer_store_dwordx2 %s, v%d, %s, s%d offen" % (r2(t), v_i3st, CUR, o_i3st + u)]
    where = {k: k for k in range(5)}
    nxt = [5]
    def wmf(fr):
        u, kp = fr >> 2, fr & 3
        lq.need(("o", kp))
        if fr < 12: lq.need(("W", fr))
        B = r8(V_WO + 8 * (fr - 12)) if fr >= 12 else r8(BUF[where[fr]])
        A("v_smfmac_f32_16x16x64_bf16 %s, %s, %s, v%d" % (r4(ACC[u]), r4(40 + 4 * kp), B, v_idx))
        if fr < 12 and nxt[0] < 12:
            where[nxt[0]] = where[fr]; word(nxt[0], where[fr]); nxt[0] += 1
    for fr in (0, 1, 2, 3, 4, 12, 13, 14, 15): wmf(fr)
    for x in post(0): A(x)
    wmf(5); wmf(6)
    for x in post(3): A(x)
    for fr in (7, 8, 9, 10, 11): wmf(fr)
    A("s_cmp_ge_u32 s%d, 2" % s_w)
    for x in post(1): A(x)
    nop(a, 4)
    for x in post(2): A(x)
    stamp(7)
    if stamps == 2:
        A("s_waitcnt lgkmcnt(0)")
        for k, (hi, lo) in enumerate([(76, 93), (62, 76), (78, 62), (60, 78), (66, 60), (68, 66), (70, 68), (72, 70), (74, 72)]):
            A("s_sub_u32 s%d, s%d, s%d\ns_add_u32 s%d, s%d, s%d" % (s_t0, hi, lo, 80 + k, 80 + k, s_t0))
        A("s_mov_b32 s93, s74\ns_mov_b32 s76, s74\ns_mov_b32 s62, s74\ns_cmp_ge_u32 s%d, 2" % s_w)
    A("s_cbranch_scc1 L_c_idle")
    A("s_add_u32 s%d, s%d, 4096\ns_mov_b32 s%d, 0" % (s_t3, o_i3ld, s_t2))
    nop(a, rdelay)
    SETS = [64, 80]
    def rloads(st):
        for k in range(4): A("buffer_load_dwordx4 %s, v%d, %s, s%d offen offset:%d sc1" % (r4(SETS[st] + 4 * k), v_i3l0, CUR, o_i3ld if k < 2 else s_t3, (k & 1) * 2048))
    def rproc(st):
        for k in range(4):
            A("s_waitcnt vmcnt(%d)" % (7 - k))
            A("v_mfma_f32_16x16x32_bf16 %s, %s, %s, %s" % (r4(RD), r4(SETS[st] + 4 * k), r4(v_sel), "0" if k == 0 else r4(RD)))
        nop(a, 8)
        A("v_pk_add_f32 v[20:21], v[60:61], v[62:63]\nv_cvt_pk_bf16_f32 v22, v60, v61\nv_cmp_u_f32 vcc, v20, v21\nv_cvt_pk_bf16_f32 v23, v62, v63")
    XP = [56, 58] + ([] if xd2 is None else [54])
    rloads(0)
    stamp("ri")
    for r in XP: A(z(r))
    for k in range(6): A(z(v_aq + 2 * k))
    A("s_add_u32 s%d, s%d, 1\nv_mov_b32 v44, s%d" % (s_t0, s_step, s_t0))
    nop(a, rgap); rloads(1)
    rproc(0)
    A("s_cbranch_vccnz L_c_r1")
    A("L_c_rok:")
    A("buffer_store_dwordx2 v[22:23], v%d, %s, s%d offen sc1" % (v_xo, WS, o_pr))
    xat = lambda r: "buffer_atomic_add_x2 %s, v%d, %s, s%d offen sc0" % (r2(XP[r]), v_xo, WS, s_t3)
    A("s_mov_b32 s%d, s%d" % (s_t3, o_prf))
    nop(a, xd0)
    A(xat(0))
    stamp(8)
    book()
    nop(a, xd1)
    A(xat(1))
    A("s_waitcnt vmcnt(3)\ns_barrier")
    prep_lds()
    if xd2 is not None:
        nop(a, xd2); A(xat(2))
    stamp("xw")
    def xuse(r):
        x = XP[r]
        A("s_waitcnt vmcnt(%d)" % (len(XP) - 1))
        A("v_cmp_eq_u32 vcc, s%d, v%d\nv_cmp_eq_u32 %s, s%d, v%d" % (s_sent, x, MK, s_sent, x + 1))
        A("v_lshlrev_b32 v48, 16, v%d\nv_and_b32 v49, 0xffff0000, v%d\nv_lshlrev_b32 v50, 16, v%d\nv_and_b32 v51, 0xffff0000, v%d" % (x, x, x + 1, x + 1))
        A("s_or_b64 vcc, vcc, %s" % MK)
        A("v_pk_add_f32 v[48:49], v[48:49], v[60:61]\nv_pk_add_f32 v[50:51], v[50:51], v[62:63]")
        A("v_cvt_pk_bf16_f32 v46, v48, v49\nv_cvt_pk_bf16_f32 v47, v50, v51\ns_cbranch_vccz L_c_xok")
    A("L_c_xl:")
    for r in range(len(XP)):
        xuse(r)
        cnt(2)
        A(z(XP[r]) + "\n" + xat(r))
    A("s_sub_u32 s%d, s%d, 1\ns_cbranch_scc0 L_c_xl\ns_branch L_c_fail" % (s_spin, s_spin))
    A("L_c_r1:")
    for st in (0, 1):
        cnt(0)
        rloads(st)
        rproc(st ^ 1)
        A("s_cbranch_vccz L_c_rok")
    A("s_sub_u32 s%d, s%d, 1\ns_cbranch_scc1 L_c_fail" % (s_spin, s_spin))
    A("s_add_u32 s%d, s%d, 1\ns_and_b32 s%d, s%d, 7\ns_cbranch_scc1 L_c_r1" % (s_t2, s_t2, s_t0, s_t2))
    A("s_mov_b64 %s, 0" % MK)
    for k in range(16): A("v_cmp_eq_u32 vcc, s%d, v%d\ns_or_b64 %s, %s, vcc" % (s_sent, SETS[0] + k, MK, MK))
    A("s_cbranch_scc0 L_c_rok\ns_branch L_c_r1")
    pz = poisons(P2)[:6]
    A("L_c_idle:")
    A("s_waitcnt vmcnt(0)\ns_barrier")
    for x in pz: A(x)
    for x, d in zip(pz, (1024, 1024, 65536, 65536, 65536, 65536)):
        o = x.split(",")[-1].split()[0]
        A("s_sub_u32 s%d, %s, %d" % (s_t0, o, d))
        A(x.replace(", %s offen" % o, ", s%d offen" % s_t0))
    if mega:
        A("s_cmp_lg_u32 s%d, 3\ns_cbranch_scc1 L_c_idle2" % s_w)
        A("s_sub_u32 s%d, s%d, 1" % (s_t0, s_step))
        signal("s%d" % s_t0)
        A("L_c_nosig:")
        A("s_add_u32 s%d, s%d, 2\ns_and_b32 s%d, s%d, 7\ns_cbranch_scc1 L_c_idle2\ns_cmp_ge_u32 s%d, 64\ns_cbranch_scc1 L_c_idle2" % (s_t1, s_step, s_t0, s_t1, s_t1))
        A("s_lshl_b32 s%d, s%d, 8\ns_add_u32 s%d, s%d, s%d" % (s_t0, s_t1, s_t0, s_t0, s_cnt))
        wait_kv("n", s_t0)
    A("L_c_idle2:")
    book()
    A("L_c_idle3:")
    kv_w3()
    prep()
    A("s_cmp_lg_u32 s%d, 2\ns_cbranch_scc1 L_c_b0" % s_w)
    A("s_add_u32 s%d, s%d, 1" % (s_t2, s_step))
    lf = lambda k: "buffer_load_ubyte v%d, v%d, %s, s3 offen sc1" % (46 + k, v_flag, WS)
    A("v_mov_b32 v46, 0")
    A("L_c_fp:")
    A(lf(0))
    A("s_waitcnt vmcnt(%d)\nv_cmp_ne_u32 vcc, s%d, v46\ns_cbranch_vccz %s" % (fdepth, s_t2, "L_c_b0x" if stamps == 3 else "L_c_b0"))
    nop(a, fgap)
    cnt(1)
    A("s_sub_u32 s%d, s%d, 1\ns_cbranch_scc0 L_c_fp\ns_branch L_c_fail" % (s_spin, s_spin))
    A("L_c_qretry:")
    cnt(3)
    A("s_waitcnt vmcnt(2)\nds_write_b64 v%d, %s\n" % (v_fpar, r2(PQ[1])) + chk(PQ[1]) + "\ns_cbranch_vccz L_c_qgot")
    A("L_c_qr2:")
    for k in (2, 3):
        cnt(3)
        A("s_waitcnt vmcnt(1)\nds_write_b64 v%d, %s\n" % (v_fpar, r2(PQ[k])) + chk(PQ[k]) + "\ns_cbranch_vccz L_c_qgot")
        A(ldq(PQ[k]))
    A("s_sub_u32 s%d, s%d, 1\ns_cbranch_scc0 L_c_qr2\ns_branch L_c_fail" % (s_spin, s_spin))
    A("L_c_vretry:")
    A(ldv)
    cnt(3)
    A("s_sub_u32 s%d, s%d, 1\ns_cbranch_scc1 L_c_fail\ns_waitcnt vmcnt(0)\nv_cmp_eq_u32 vcc, s%d, v38\ns_cbranch_vccnz L_c_vretry\ns_branch L_c_vok" % (s_spin, s_spin, s_sent))
    A("L_c_nanq:")
    if stamps: A("s_add_u32 s97, s97, 0x10000")
    A("v_mov_b32 v34, -1")
    for f in range(16):
        A("ds_read_b128 v[20:23], v%d offset:%d\ns_waitcnt lgkmcnt(0)" % (v_ahi, L_PL - HI + f * 1024))
        for k in range(4): A("v_xor_b32 v%d, s%d, v%d" % (20 + k, s_sent, 20 + k))
        A("v_min3_u32 v34, v20, v21, v34\nv_min3_u32 v34, v22, v23, v34")
    A("v_cmp_eq_u32 vcc, 0, v34\ns_cbranch_vccz L_c_qok")
    A("s_sub_u32 s%d, s%d, 1\ns_cbranch_scc1 L_c_fail" % (s_spin, s_spin))
    for k in range(6): A(z(v_aq + 2 * k))
    A("s_barrier")
    fetch()
    if spos is not None: A("s_or_b32 s%d, s%d, 0x%x\ns_mov_b32 m0, s%d" % (o_km, o_km, OOB, m_kv))
    A("s_waitcnt vmcnt(0)\ns_branch L_c_b1")
    A("L_c_last:")
    A("s_waitcnt lgkmcnt(0)\nds_read_b64_tr_b16 v[40:41], v%d\nv_mov_b32 v42, v%d\nv_mov_b32 v43, 0" % (v_kmr, v_vk))
    seg_off(o_km, 100, 0)
    A("s_waitcnt lgkmcnt(0)")
    A(km_store)
    if mega:
        A("s_waitcnt vmcnt(0)\ns_barrier\ns_cmp_lg_u32 s%d, 0\ns_cbranch_scc1 L_c_done" % s_w)
        signal("64")
    A("s_branch L_c_done")
    A("L_c_fail:")
    A("v_mov_b32 v40, 1\nv_mov_b32 v41, 96\nbuffer_atomic_add v40, v41, s[16:19], 0 offen")
    A("L_c_done:")
    A("s_waitcnt vmcnt(0)")
    if stamps:
        A("s_memtime s[60:61]\ns_memrealtime s[62:63]\ns_waitcnt lgkmcnt(0)\ns_sub_u32 s60, s60, s56\ns_sub_u32 s61, s62, s58")
        A("s_sub_u32 s62, s56, s94")
        A("s_lshl_b32 s%d, s%d, 5\ns_add_u32 s%d, s%d, s%d\ns_lshl_b32 s%d, s%d, 2\ns_add_u32 s%d, s%d, s%d\ns_lshl_b32 s%d, s%d, 7\ns_add_u32 s%d, s%d, %d" % (
            s_t0, s_x, s_t0, s_t0, s_i, s_t0, s_t0, s_t0, s_t0, s_w, s_t0, s_t0, s_t0, s_t0, FLAGS + MB))
        for k, sr in enumerate([60, 61, 62] + list(range(80, 90)) + [96, 97, 98, 99]): A("v_mov_b32 v%d, s%d" % (40 + k, sr))
        if stamps == 3:
            A("s_cmp_lg_u32 s%d, %d\ns_cbranch_scc1 L_c_notr" % (s_w, tw))
            A("s_lshl_b32 s%d, s%d, 5\ns_add_u32 s%d, s%d, s%d\ns_lshl_b32 s%d, s%d, 12\ns_add_u32 s%d, s%d, %d" % (s_t1, s_x, s_t1, s_t1, s_i, s_t1, s_t1, s_t1, s_t1, FLAGS + 2 * MB))
            A("v_add_u32 v64, %d, v%d" % (L_MISC + 64, v_l16))
            for k in range(4):
                A("ds_read_b128 v[68:71], v64 offset:%d\ns_waitcnt lgkmcnt(0)\nbuffer_store_dwordx4 v[68:71], v%d, %s, s%d offen offset:%d\ns_waitcnt vmcnt(0)" % (k * 1024, v_l16, WS, s_t1, k * 1024))
            A("L_c_notr:")
            A("v_mov_b32 v43, s56\nv_mov_b32 v44, s58")
        A("v_mov_b32 v60, 0\ns_mov_b64 exec, 1")
        for k in range(5): A("buffer_store_dwordx4 %s, v60, %s, s%d offen offset:%d" % (r4(40 + 4 * k), WS, s_t0, 16 * k))
        A("s_waitcnt vmcnt(0)")

def emit_role_prologue(a, nwg=256, early=None):
    a("""
    s_cmp_ge_u32 s2, {n}
    s_cbranch_scc1 L_end
    s_load_dwordx4 s[4:7], s[0:1], 96
    s_memtime s[94:95]
    s_getreg_b32 s{xcc}, hwreg(HW_REG_XCC_ID)
    s_and_b32 s{xcc}, s{xcc}, 15
    v_and_b32 v1, 63, v0
    v_lshrrev_b32 v2, 6, v0
    s_waitcnt lgkmcnt(0)
    """.format(n=nwg, xcc=s_xcc))
    srd(a, S_WS, 6, 7, WS_BYTES)
    srd(a, S_DBG, 4, 5, 256)
    if early: early()
    a("""
    v_readfirstlane_b32 s{w}, v2
    v_mov_b32 v3, 1
    s_lshl_b32 s{i}, s{xcc}, 2
    v_mov_b32 v4, s{i}
    v_mov_b32 v5, {misc}
    v_cmp_eq_u32 vcc, 0, v0
    s_and_saveexec_b64 s[48:49], vcc
    s_cbranch_execz L_skipt
    buffer_atomic_add v3, v4, s[16:19], 0 offen sc0
    s_waitcnt vmcnt(0)
    ds_write_b32 v5, v3
    s_waitcnt lgkmcnt(0)
    L_skipt:
    s_mov_b64 exec, s[48:49]
    s_barrier
    ds_read_b32 v3, v5
    s_waitcnt lgkmcnt(0)
    v_readfirstlane_b32 s{i}, v3
    s_barrier
    """.format(w=s_w, i=s_i, xcc=s_xcc, misc=L_MISC))

def gen(stamps=2, nsteps=64, xa=0, xb=1, name="chain_kernel", header=True, desc=True, **kw):
    a = Asm()
    if header:
        a("; @launch kernel=%s grid=(256,1,1) block=(256,1,1) lds=%d" % (name, LDS_BYTES))
        a('.amdgcn_target "amdgcn-amd-amdhsa--gfx950"')
    kernel_begin(a, name)
    emit_role_prologue(a)
    a("""
    s_cmp_ge_u32 s{i}, 32
    s_cbranch_scc1 L_end
    s_mov_b32 s{x}, 0
    s_cmp_eq_u32 s{xcc}, {xa}
    s_cbranch_scc1 L_chain
    s_mov_b32 s{x}, 1
    s_cmp_eq_u32 s{xcc}, {xb}
    s_cbranch_scc1 L_chain
    s_endpgm
    L_chain:
    """.format(i=s_i, x=s_x, xcc=s_xcc, xa=xa, xb=xb))
    emit_chain(a, stamps, nsteps, **kw)
    a("L_end:\ns_endpgm")
    if desc: kernel_desc(a, name, 512, 102, 256)
    return a.text()

if __name__ == "__main__":
    open(sys.argv[1], "w").write(gen())
```

```python
MB = 1 << 20
WS_BYTES = 256 * MB
XN = 0
QX = 4 * MB
KX = 20 * MB
VT = 52 * MB
KM = 84 * MB
OA = 116 * MB
HB = 132 * MB
HN = 140 * MB
ACT = 144 * MB
PART = 160 * MB
RING = 224 * MB
SLOT = MB
R_PL = 0
R_PR = 32768
R_QK = 65536
R_VX = 65536 + 131072
R_I3 = 524288
PRB = 228 * MB
PFL = 231 * MB
FLAGS = 232 * MB
SENT = 0x7F817F81
KA = dict(x=0, mem0=8, Wq=16, Wk=24, Wv=32, Wo=40, seg=48, bx=56, wg=64, wu=72, wd=80, out=88, dbg=96, ws=104)
```

```python
import heapq
from layout import *
NX = 6
T_LN1, T_QA, T_KA, T_VA, T_KB, T_VB, T_SATT, T_SO, T_SLN, T_SGU, T_SD, T_SFIN = range(12)
NAMES = "LN1 QA KA VA KB VB SATT SO SLN SGU SD SFIN".split()
C_LN1 = 0
C_Q = 8
C_NONE = 15
C_HP = 16
ZERO_BYTES = 65536 + 16384
PSLAB = 4 * MB
PART_O = PART; PART_D = PART + 4 * PSLAB
class Task:
    def __init__(s, typ, xcd, dur, prio, wait, target, sig, inc, p0=0, p1=0, p2=0, p3=0, tag=0):
        s.typ, s.xcd, s.dur, s.prio, s.wait, s.target, s.sig, s.inc, s.p, s.tag = typ, xcd, dur, prio, wait, target, sig, inc, (p0, p1, p2, p3), tag
def build(tau=2.2, t0=22.0, dA=24.0, dB=12.0, lead=8.0, natt=4, nrow=8, qlate=30.0):
    T = []
    for rg in range(128):
        T.append(Task(T_LN1, rg % NX, 3.0, (0, rg), C_NONE, 0, C_LN1 + rg // 16, 1, rg))
    kvx = [0] * 5 + [1] * 5 + [2] * 5 + [3] * 5 + [4] * 6 + [5] * 6
    qx = [0] * 3 + [1] * 3 + [2] * 3 + [3] * 3 + [4] * 2 + [5] * 2
    need = lambda seg: t0 + seg * tau
    for b in range(8):
        for m in range(2):
            for ct in range(16):
                x = kvx[2 * ct + m]; base = (KX + b * 4 * MB + ct * 16384) if m == 0 else (VT + b * 4 * MB + ct * 32768)
                if b == 0:
                    for hf in range(2):
                        T.append(Task(T_KB + m, x, dB, (need(0) - dB, 0), C_LN1 + b, 16, C_HP + 16 * b + ct, 1, XN + b * 524288, ct * 512 + hf * 256, base + hf * (4096 if m == 0 else 16384), tag=b))
                else:
                    T.append(Task(T_KA + m, x, dA, (need(8 * b) - dA - lead, 0), C_LN1 + b, 16, C_HP + 16 * b + ct, 2, XN + b * 524288, ct * 512, base, tag=b))
        for ct in range(16):
            T.append(Task(T_QA, qx[ct], dA, (max(need(8 * b) - dA, qlate), 1), C_LN1 + b, 16, C_HP + 16 * b + ct, 0x4000, XN + b * 524288, ct * 512, QX + b * 2 * MB + ct * 8192, tag=b))
    S = []
    p3 = lambda w, sg, tg: w | (sg << 10) | (tg << 20)
    for sp in range(4):
        for ct in range(8): S.append((T_SO, OA + sp * 32768, sp * 1024 * 2048 + ct * 256, PART_O + sp * PSLAB + ct * 4096, p3(4 * sp, 128, 2)))
    for ct in range(56): S.append((T_SGU, HN, ct * 128, ACT + ct * 2048, p3(132, 256 + 4 * (ct // 14), 2)))
    for sp in range(4):
        for ct in range(8): S.append((T_SD, ACT + sp * 28 * 1024, sp * 896 * 2048 + ct * 256, PART_D + sp * PSLAB + ct * 4096, p3(256 + 4 * sp, 384, 14)))
    L = []
    for r in range(natt):
        for q in range(8): L.append((T_SATT, r, natt, q, p3(0, 4 * (q // 2), 0)))
    for r in range(nrow): L.append((T_SLN, r, nrow, 0, p3(128, 132, 32)))
    for r in range(nrow): L.append((T_SFIN, r, nrow, 0, p3(384, 388, 32)))
    serv = [[] for _ in range(NX)]
    for k, x in enumerate(S): serv[k * NX // len(S)].append(x)
    for k, x in enumerate(L): serv[k % NX].append(x)
    assert max(len(x) for x in serv) <= 32
    for x in range(NX):
        for k, (typ, *p) in enumerate(serv[x]):
            T.append(Task(typ, x, 1e6, (1e5, k), C_NONE, 0, C_NONE, 0, *p))
    return T
def simulate(T, tau=2.2, t0=22.0, verbose=False):
    cnt = [0] * 256
    lists = [[] for _ in range(NX)]
    free = [32] * NX
    ev = []
    pend = sorted([i for i in range(len(T)) if T[i].dur < 1e5], key=lambda i: T[i].prio)
    now = 1.0; seq = 0; end = 0
    while pend or ev:
        rest = []
        for i in pend:
            t = T[i]
            if free[t.xcd] and cnt[t.wait] >= t.target:
                free[t.xcd] -= 1; lists[t.xcd].append(i); t.start = now
                seq += 1; heapq.heappush(ev, (now + t.dur + 1.0, seq, i))
            else: rest.append(i)
        pend = rest
        now, _, d = heapq.heappop(ev)
        free[T[d].xcd] += 1; cnt[T[d].sig] += T[d].inc; end = now
    for i in range(len(T)):
        if T[i].dur >= 1e5: lists[T[i].xcd].append(i)
    if verbose: print("end %.1f" % end, [len(l) for l in lists])
    return lists
if __name__ == "__main__":
    T = build(); simulate(T, verbose=True)
```

```python
from tasks import *
SEGC = FLAGS + 32768
PROG = FLAGS + 65536
L_BC = 158720 + 16
s_n, s_pre, s_wait, s_tgt, s_sig, s_xseg, s_oseg, s_xcur, s_m0, s_spin = 43, 44, 41, 36, 35, 45, 46, 47, 40, 62

def poll(a, tag, off, tgt, sleep=2, vaddr=None):
    if vaddr is None: a("v_mov_b32 v4, 0"); vaddr = 4
    a("L_%s:\nbuffer_load_dword v5, v%d, %s, s%d offen sc1\ns_sub_u32 s%d, s%d, 1\ns_cbranch_scc1 L_w_fail\ns_waitcnt vmcnt(0)" % (tag, vaddr, WS, off, s_spin, s_spin))
    a("v_cmp_gt_u32 vcc, s%d, v5\ns_cbranch_vccz L_%s_ok\ns_sleep %d\ns_branch L_%s\nL_%s_ok:" % (tgt, tag, sleep, tag, tag))
def signal(a, off):
    a("s_mov_b64 exec, 1\nv_mov_b32 v4, 0\nv_mov_b32 v5, 1\nbuffer_atomic_add v5, v4, %s, s%d offen\ns_mov_b64 exec, -1" % (WS, off))

def unpack_p3(a):
    a("s_and_b32 s%d, s55, 1023\ns_add_u32 s%d, s%d, %d\ns_bfe_u32 s%d, s55, 0xa000a\ns_add_u32 s%d, s%d, %d\ns_lshr_b32 s%d, s55, 20" % (
        s_wait, s_wait, s_wait, SEGC, s_sig, s_sig, s_sig, SEGC, s_tgt))
def stampseg(a, slot, trace):
    if not trace: return
    L = a.label("L_tr")
    a("s_cmp_lg_u32 s%d, 0\ns_cbranch_scc1 %s\ns_memrealtime s[92:93]\ns_lshl_b32 s96, s20, 5\ns_add_u32 s96, s96, s22\ns_lshl_b32 s96, s96, 10\ns_lshl_b32 s97, s%d, 4\ns_add_u32 s96, s96, s97" % (s_w, L, s_n))
    a("s_add_u32 s96, s96, %d\ns_waitcnt lgkmcnt(0)\nv_mov_b32 v4, 0\nv_mov_b32 v5, s92\nbuffer_store_dword v5, v4, %s, s96 offen\n%s:" % (FLAGS + 6 * MB + 4 * slot, WS, L))

def serv_rows(a, name, body, trace=0):
    a("L_%s:" % name)
    unpack_p3(a)
    a("s_mov_b32 s37, 4")
    a("L_%s_l:" % name)
    a("s_lshr_b32 s%d, s52, 1\ns_lshl_b32 s38, s%d, 9\ns_add_u32 s39, s38, s%d" % (s_n, s_n, s_wait))
    a("s_cmp_lg_u32 s%d, 0\ns_cbranch_scc1 L_%s_w" % (s_w, name))
    poll(a, name + "_p", 39, s_tgt)
    a("L_%s_w:\ns_barrier" % name)
    stampseg(a, 0, trace)
    body(a, 52, 37)
    a("s_waitcnt vmcnt(0)\ns_barrier\ns_add_u32 s39, s38, s%d\ns_cmp_lg_u32 s%d, 0\ns_cbranch_scc1 L_%s_s" % (s_sig, s_w, name))
    signal(a, 39)
    a("L_%s_s:" % name)
    stampseg(a, 1, trace)
    a("s_add_u32 s52, s52, s53\ns_cmp_lt_u32 s52, 128\ns_cbranch_scc1 L_%s_l\ns_branch L_w_done" % name)

def serv_att(a, c_hp, trace=0):
    a("L_satt:")
    unpack_p3(a)
    att_setup(a)
    a("s_lshl_b32 s44, s54, 2\ns_add_u32 s44, s44, s%d\ns_mov_b32 s%d, s52" % (s_w, s_n))
    a("v_and_b32 v16, 1, v%d\nv_lshlrev_b32 v16, 7, v16\ns_lshl_b32 s45, s44, 8\ns_add_u32 s45, s45, %d\ns_add_u32 s45, s45, s%d\ns_mov_b32 s37, 0x4004" % (v_lane, PROG, s_near))
    a("L_satt_l:")
    a("s_lshr_b32 s38, s%d, 3\ns_lshl_b32 s38, s38, 4\ns_lshr_b32 s39, s44, 1\ns_add_u32 s38, s38, s39\ns_lshl_b32 s38, s38, 7\ns_add_u32 s38, s38, %d" % (s_n, FLAGS + 128 * c_hp))
    poll(a, "satt_q", 38, 37, sleep=8)
    def mid():
        a("s_add_u32 s39, s%d, 1" % s_n)
        poll(a, "satt_c", 45, 39, sleep=2, vaddr=16)
        stampseg(a, 0, trace)
    task_att(a, s_n, 44, mid)
    a("s_waitcnt vmcnt(0)\ns_barrier\ns_lshl_b32 s38, s%d, 9\ns_add_u32 s39, s38, s%d\ns_cmp_lg_u32 s%d, 0\ns_cbranch_scc1 L_satt_s" % (s_n, s_sig, s_w))
    signal(a, 39)
    a("L_satt_s:")
    stampseg(a, 1, trace)
    a("s_add_u32 s%d, s%d, s53\ns_cmp_lt_u32 s%d, 64\ns_cbranch_scc1 L_satt_l\ns_branch L_w_done" % (s_n, s_n, s_n))

class WS_:
    def __init__(s, name, nk, x64, gu):
        s.name, s.nk, s.x64, s.gu = name, nk, x64, gu
        s.nc = nk // 4
    def emit(s, a, trace=0):
        n, nk, nc = s.name, s.nk, s.nc
        v_ws, v_r0, v_r1, v_xs, v_xr, v_fl, v_l8 = 8, 9, 10, 11, 12, 13, 14
        XF, AC, TM_ = 16, 64, 80
        a("L_%s:" % n)
        unpack_p3(a)
        a("v_lshrrev_b32 v4, 3, v%d\nv_mul_lo_u32 v4, v4, s%d\nv_and_b32 v5, 7, v%d\nv_lshl_add_u32 v%d, v5, 4, v4" % (v_lane, s_ldw, v_lane, v_ws))
        a("s_and_b32 s%d, s%d, 1\ns_lshl_b32 s%d, s%d, 6\ns_mul_i32 s%d, s%d, s%d\ns_add_u32 s%d, s%d, s%d" % (t2, s_w, t0, t2, t0, t0, s_ldw, s_woff, s_woff, t0))
        a("v_lshrrev_b32 v4, 2, v%d\nv_lshlrev_b32 v4, 7, v4\nv_and_b32 v5, 3, v%d\nv_lshl_add_u32 v4, v5, 3, v4" % (v_lane, v_lane))
        if s.gu: a("s_lshl_b32 s%d, s%d, 5\ns_add_u32 s%d, s%d, 16384" % (t0, s_w, t1, t0))
        else: a("s_lshr_b32 s%d, s%d, 1\ns_lshl_b32 s%d, s%d, 14\ns_lshl_b32 s%d, s%d, 6\ns_add_u32 s%d, s%d, s%d\ns_add_u32 s%d, s%d, 32" % (t0, s_w, t0, t0, t1, t2, t0, t0, t1, t1, t0))
        a("v_add_u32 v%d, s%d, v4\nv_add_u32 v%d, s%d, v4" % (v_r0, t0, v_r1, t1))
        a("s_lshl_b32 s%d, s%d, 13\ns_lshl_b32 s%d, s%d, 3\ns_mul_i32 s%d, s%d, 72" % (s_m0, s_w, s_wadv, s_ldw, t3, s_ldw))
        nch = nk // 4
        def wissue(c):
            for j in range(8):
                a("s_add_u32 m0, s%d, %d\ns_nop 0\nbuffer_load_dwordx4 v%d, %s, s%d offen lds" % (s_m0, (c % 4) * 32768 + j * 1024, v_ws, WSRD, s_woff))
                a("s_add_u32 s%d, s%d, s%d" % (s_woff, s_woff, s_wadv if j < 7 else t3))
        for c in range(4): wissue(c)
        for c in range(nch):
            a("s_waitcnt vmcnt(%d)\ns_barrier" % (8 * (min(c + 4, nch) - c - 1)))
            a("v_add_u32 v4, %d, v%d\nv_add_u32 v5, %d, v%d" % ((c % 4) * 32768, v_r0, (c % 4) * 32768, v_r1))
            for kk in range(4):
                for t in range(2):
                    for hf in range(2):
                        d = ((4 * c + kk) * 2 + t) * 4 + 2 * hf
                        a("ds_read_b64_tr_b16 a[%d:%d], v%d offset:%d" % (d, d + 1, 4 + t, (32 * kk + 16 * hf) * 128))
            a("s_waitcnt lgkmcnt(0)\ns_barrier")
            if c + 4 < nch: wissue(c + 4)
        a("s_mul_i32 s%d, s%d, s%d\ns_lshr_b32 s%d, s%d, 1\ns_lshl_b32 s%d, s%d, 10\ns_add_u32 s%d, s%d, s%d\nv_add_u32 v%d, s%d, v%d" % (t0, t2, s_xrs, t1, s_w, t1, t1, t0, t0, t1, v_xs, t0, v_l16))
        a("s_lshl_b32 s%d, s%d, 10" % (s_m0, s_w))
        a("v_lshlrev_b32 v%d, 3, v%d\nv_mov_b32 v%d, v%d\nv_mov_b32 v%d, %d" % (v_l8, v_lane, v_xr, v_l8 if s.x64 else v_l16, v_fl, L_BC))
        a("s_lshl_b32 s%d, s%d, 1\ns_lshl_b32 s%d, s%d, 1" % (s_xseg, s_xrs, s_oseg, s_ors))
        a("s_lshl_b32 s%d, s%d, %d\ns_add_u32 s%d, s%d, s%d" % (t0, s_w, 9 if s.gu else 10, s_obase, s_obase, t0))
        a("s_mov_b32 s%d, 0" % s_n)
        nd = nk // 2
        def dma():
            g = []
            for j in range(nd):
                g.append(["s_add_u32 m0, s%d, %d" % (s_m0, j * 4096), "s_add_u32 s%d, s%d, %d" % (s_xcur, s_xoff, j * 2048),
                          "buffer_load_dwordx4 v%d, %s, s%d offen%s lds" % (v_xs, WS, s_xcur, SC)])
            g[-1] += ["s_xor_b32 s%d, s%d, 65536" % (s_m0, s_m0), "s_add_u32 s%d, s%d, s%d" % (s_xoff, s_xoff, s_xseg)]
            return g
        NRING = 12
        def rd(i):
            d = XF + 4 * (i % NRING)
            if s.x64: return ["ds_read_b64 %s, v%d offset:%d" % (r2(d), v_xr, i * 1024), "ds_read_b64 %s, v%d offset:%d" % (r2(d + 2), v_xr, i * 1024 + 512)]
            return ["ds_read_b128 %s, v%d offset:%d" % (r4(d), v_xr, i * 1024)]
        per = 2 if s.x64 else 1
        def compute(sync, fill):
            ahead = 6
            nb = 2 * nk; issued = 0
            def issue_to(m):
                nonlocal issued
                while issued < min(m, nb):
                    if issued % (2 * nc) == 0: sync(issued // (2 * nc))
                    for x in rd(issued): a(x)
                    issued += 1
            issue_to(ahead)
            for i in range(nb):
                kb, rt = i >> 1, i & 1
                a("s_waitcnt lgkmcnt(%d)" % (per * (issued - i - 1)))
                for t in range(2):
                    c = r4(AC + 4 * (2 * rt + t)); w = (kb * 2 + t) * 4
                    a("v_mfma_f32_16x16x32_bf16 %s, a[%d:%d], %s, %s" % (c, w, w + 3, r4(XF + 4 * (i % NRING)), "0" if kb == 0 else c))
                    if t == 0: issue_to(i + 1 + ahead)
                for x in fill.get(i, []): a(x)
        def flag_load():
            a("s_add_u32 s%d, s%d, 512\nv_mov_b32 v4, 0\nbuffer_load_dword v6, v4, %s, s%d offen sc1" % (t0, s_wait, WS, t0))
        def bcast_put():
            L = a.label("L_bp")
            a("s_cmp_lg_u32 s%d, 0\ns_cbranch_scc1 %s\nds_write_b32 v%d, v6\ns_waitcnt lgkmcnt(0)\n%s:" % (s_w, L, v_fl, L))
        def bcast_get():
            a("ds_read_b32 v7, v%d\nv_xor_b32 v13, 4, v13\ns_waitcnt lgkmcnt(0)\nv_readfirstlane_b32 s%d, v7\ns_cmp_ge_u32 s%d, s%d\ns_cselect_b32 s%d, 1, 0\ns_cmp_ge_u32 s%d, 63\ns_cselect_b32 s%d, 0, s%d" % (
                v_fl, t0, t0, s_tgt, s_pre, s_n, s_pre, s_pre))
        nst = 2
        def epilogue():
            a("v_xor_b32 v%d, 65536, v%d" % (v_xr, v_xr))
            nop(a, 7)
            for rt in range(2):
                c = AC + 8 * rt; t = TM_ + 16 * rt
                if rt: a("s_add_u32 s%d, s%d, s%d" % (t1, s_obase, s_ors))
                so = t1 if rt else s_obase
                if s.gu:
                    for r in range(4): a("v_mul_f32 v%d, %s, v%d" % (t + r, f32(-math.log2(math.e)), c + r))
                    for r in range(4): a("v_exp_f32 v%d, v%d" % (t + r, t + r))
                    a("v_pk_mul_f32 %s, %s, %s\nv_pk_mul_f32 %s, %s, %s" % (r2(c), r2(c), r2(c + 4), r2(c + 2), r2(c + 2), r2(c + 6)))
                    for r in range(4): a("v_add_f32 v%d, 1.0, v%d" % (t + r, t + r))
                    for r in range(4): a("v_rcp_f32 v%d, v%d" % (t + r, t + r))
                    a("s_nop 0\nv_pk_mul_f32 %s, %s, %s\nv_pk_mul_f32 %s, %s, %s" % (r2(c), r2(c), r2(t), r2(c + 2), r2(c + 2), r2(t + 2)))
                    a("v_cvt_pk_bf16_f32 v%d, v%d, v%d\nv_cvt_pk_bf16_f32 v%d, v%d, v%d" % (t + 4, c, c + 1, t + 5, c + 2, c + 3))
                    a("buffer_store_dwordx2 %s, v%d, %s, s%d offen%s" % (r2(t + 4), v_l8, WS, so, SC))
                else:
                    for r in range(4): a("v_cvt_pk_bf16_f32 v%d, v%d, v%d" % (t + r, c + 2 * r, c + 2 * r + 1))
                    a("buffer_store_dwordx4 %s, v%d, %s, s%d offen%s" % (r4(t), v_l16, WS, so, SC))
            a("s_add_u32 s%d, s%d, s%d" % (s_obase, s_obase, s_oseg))
        def sig(tag):
            a("s_cmp_lg_u32 s%d, 0\ns_cbranch_scc1 L_%s_%s" % (s_w, n, tag)); signal(a, s_sig); a("L_%s_%s:\ns_add_u32 s%d, s%d, 512" % (n, tag, s_sig, s_sig))
        a("L_%s_L:" % n)
        a("s_cmp_lg_u32 s%d, 0\ns_cbranch_scc1 L_%s_Lw" % (s_w, n))
        poll(a, n + "_p", s_wait, s_tgt)
        a("L_%s_Lw:\ns_barrier" % n)
        stampseg(a, 0, trace)
        for g in dma():
            for x in g: a(x)
        flag_load()
        def syncL(c):
            done = -(-(c + 1) * nc // 2)
            if c < 3: a("s_waitcnt vmcnt(%d)\ns_barrier" % (nd - done + 1))
            else:
                a("s_waitcnt vmcnt(0)"); bcast_put(); a("s_barrier")
        compute(syncL, {})
        bcast_get()
        a("s_cmp_eq_u32 s%d, 0\ns_cbranch_scc1 L_%s_E" % (s_pre, n))
        for g in dma():
            for x in g: a(x)
        a("L_%s_E:" % n)
        a("s_add_u32 s%d, s%d, 1\ns_add_u32 s%d, s%d, 512" % (s_n, s_n, s_wait, s_wait))
        flag_load()
        epilogue()
        a("s_cmp_lg_u32 s%d, 0\ns_cbranch_scc1 L_%s_B" % (s_pre, n))
        a("s_waitcnt vmcnt(0)\ns_barrier")
        sig("s1")
        stampseg(a, 2, trace)
        a("s_cmp_lt_u32 s%d, 64\ns_cbranch_scc1 L_%s_L\ns_branch L_w_done" % (s_n, n))
        a("L_%s_B:" % n)
        a("s_waitcnt vmcnt(%d)" % nst); bcast_put(); a("s_barrier"); bcast_get()
        a("s_cmp_eq_u32 s%d, 0\ns_cbranch_scc1 L_%s_B0" % (s_pre, n))
        fill = {}
        for j, g in enumerate(dma()): fill[2 * j] = g
        class Cap:
            def __init__(q): q.l = []
            def __call__(q, x): q.l.append(x)
        def late(tag, cnt):
            nonlocal a
            keep = a; a = Cap(); a("s_waitcnt vmcnt(%d)\ns_barrier" % cnt); sig(tag); out = a.l; a = keep
            return out
        fill[2 * nd + 1] = late("s2", nd)
        compute(lambda c: None, fill)
        a("s_branch L_%s_E" % n)
        a("L_%s_B0:" % n)
        compute(lambda c: None, {nk // 2: late("s3", 0)})
        a("s_branch L_%s_E" % n)
```

```python
import struct, math
from asmlib import *
from layout import *

def nop(a, n):
    while n > 0:
        k = min(n, 16); a("s_nop %d" % (k - 1)); n -= k
def r4(v, p="v"): return "%s[%d:%d]" % (p, v, v + 3)
def r2(v): return "v[%d:%d]" % (v, v + 1)
def f32(x): return "0x%08x" % struct.unpack("<I", struct.pack("<f", x))[0]
WS = "s[8:11]"; WSRD = "s[12:15]"; XSRD = "s[24:27]"
OOB = 0x80000000
s_w = 21
P_X, P_WQ, P_WK, P_WV, P_WO, P_WG, P_WU, P_WD, P_OUT = 64, 68, 70, 72, 74, 80, 82, 84, 86
s_xoff, s_woff, s_xrs, s_ldw, s_wadv, s_ngrp, s_epi, s_obase, s_ors, s_m0x, s_m0w, s_ohalf = range(30, 42)
t0, t1, t2, t3 = 4, 5, 6, 7
s_near = 63
v_lane, v_l16 = 1, 2
SC = " sc1"

def load_ptrs(a):
    a("s_load_dwordx16 s[64:79], s[0:1], 0\ns_load_dwordx8 s[80:87], s[0:1], 64\ns_waitcnt lgkmcnt(0)")
    a("v_lshlrev_b32 v%d, 4, v%d" % (v_l16, v_lane))

def set_srd(a, d, p, nbytes):
    a("s_mov_b32 s%d, s%d\ns_mov_b32 s%d, s%d\ns_mov_b32 s%d, 0x%x\ns_mov_b32 s%d, 0x00020000" % (d, p, d + 1, p + 1, d + 2, nbytes, d + 3))

def set_w(a, pa, pb, nbytes):
    if pa == pb: set_srd(a, 12, pa, nbytes); return
    a("s_cmp_lt_u32 s%d, 2\ns_cselect_b32 s12, s%d, s%d\ns_cselect_b32 s13, s%d, s%d\ns_mov_b32 s14, 0x%x\ns_mov_b32 s15, 0x00020000" % (s_w, pa, pb, pa + 1, pb + 1, nbytes))

class Gemm:
    def __init__(self, name, TM, TN, NST, swap=False):
        self.name = name; self.TM = TM; self.TN = TN; self.NST = NST; self.swap = swap
        self.BM = 32 * TM; self.BN = 32 * TN
        self.xbytes = self.BM * 64; self.wbytes = self.BN * 64; self.stage = self.xbytes + self.wbytes
        self.nx = self.xbytes // 4096; self.nw = self.wbytes // 4096
        self.pitch = self.BN
        v = 8
        self.v_xsrc = v; v += self.nx
        self.v_wsrc = v; v += self.nw
        self.nhi = (self.stage * NST + 65535) // 65536
        self.v_xrd = v; v += self.nhi
        self.v_wrd = v; v += self.nhi * (TN // 2)
        v = (v + 3) // 4 * 4
        self.v_frag = v; v += 8 * (TM + TN)
        self.vend = v
    def wfrag(self, buf, tn): return self.v_frag + buf * 4 * (self.TM + self.TN) + 4 * tn
    def xfrag(self, buf, tm): return self.v_frag + buf * 4 * (self.TM + self.TN) + 4 * self.TN + 4 * tm
    def acc(self, tn, tm): return (tn * self.TM + tm) * 4
    def swz(self, a, dst, k):
        U = self.pitch // 32
        if U >= 8: a("v_and_b32 v%d, 7, v%d" % (dst, k))
        elif U == 4: a("v_bfe_u32 v%d, v%d, 1, 2" % (dst, k))
        else: a("v_bfe_u32 v%d, v%d, 2, 1" % (dst, k))
    def setup(self, a):
        TM, TN = self.TM, self.TN; vt = 4
        a("s_mul_i32 s%d, s%d, %d\ns_mul_i32 s%d, s%d, s%d" % (t0, s_w, self.nx, t0, t0, s_xrs))
        a("s_sub_u32 s%d, s%d, 1024" % (t1, s_xrs))
        for j in range(self.nx):
            a("v_add_u32 v%d, s%d, v%d" % (self.v_xsrc + j, t0, v_l16))
            if j < self.nx - 1: a("s_add_u32 s%d, s%d, s%d" % (t0, t0, t1))
        cpr = self.pitch // 16; rpi = 64 // cpr; sh = cpr.bit_length() - 1
        a("v_lshrrev_b32 v%d, %d, v%d\nv_and_b32 v%d, %d, v%d" % (vt, sh, v_lane, vt + 1, cpr - 1, v_lane))
        a("s_and_b32 s%d, s%d, 1\ns_lshl_b32 s%d, s%d, 4" % (t2, s_w, t0, t2))
        for j in range(self.nw):
            a("s_add_u32 s%d, s%d, %d\nv_add_u32 v%d, s%d, v%d" % (t1, t0, j * rpi, vt + 2, t1, vt))
            self.swz(a, vt + 3, vt + 2)
            a("v_lshlrev_b32 v%d, 1, v%d\nv_xor_b32 v%d, v%d, v%d\nv_lshlrev_b32 v%d, 4, v%d" % (vt + 3, vt + 3, vt + 3, vt + 3, vt + 1, vt + 3, vt + 3))
            a("v_mul_lo_u32 v%d, v%d, s%d\nv_add_u32 v%d, v%d, v%d" % (vt + 2, vt + 2, s_ldw, vt + 2, vt + 2, vt + 3))
            a("v_subrev_u32 v%d, %d, v%d" % (self.v_wsrc + j, j * 1024, vt + 2))
        a("s_lshr_b32 s%d, s%d, 1\ns_mul_i32 s%d, s%d, %d" % (t3, s_w, t0, t3, TM * 1024))
        for h in range(self.nhi):
            a("s_add_u32 s%d, s%d, %d\nv_add_u32 v%d, s%d, v%d" % (t1, t0, h * 65536, self.v_xrd + h, t1, v_l16))
        a("v_lshrrev_b32 v%d, 2, v%d" % (vt + 1, v_lane))
        self.swz(a, vt, vt + 1)
        a("v_mul_u32_u24 v%d, %d, v%d\nv_and_b32 v%d, 3, v%d\nv_lshl_add_u32 v%d, v%d, 3, v%d" % (vt + 1, self.pitch, vt + 1, vt + 2, v_lane, vt + 1, vt + 2, vt + 1))
        for tn in range(TN // 2):
            a("s_mul_i32 s%d, s%d, %d\ns_add_u32 s%d, s%d, %d" % (t0, t2, TN // 2, t0, t0, tn))
            a("v_xor_b32 v%d, s%d, v%d\nv_lshl_add_u32 v%d, v%d, 5, v%d" % (vt + 2, t0, vt, vt + 2, vt + 2, vt + 1))
            for h in range(self.nhi):
                a("v_add_u32 v%d, %d, v%d" % (self.v_wrd + h * (TN // 2) + tn, self.xbytes + h * 65536, vt + 2))
        a("s_mul_i32 s%d, s%d, %d" % (s_m0x, s_w, self.nx * 1024))
        a("s_mul_i32 s%d, s%d, %d\ns_add_u32 s%d, s%d, %d" % (s_m0w, s_w, self.nw * 1024, s_m0w, s_m0w, self.xbytes))
        a("s_lshl_b32 s%d, s%d, 5" % (s_wadv, s_ldw))
    def dma(self, st):
        g = []
        for j in range(self.nx):
            x = ["buffer_load_dwordx4 v%d, %s, s%d offen offset:%d%s lds" % (self.v_xsrc + j, WS, s_xoff, j * 1024, SC)]
            if j == 0: x = ["s_add_u32 m0, s%d, %d" % (s_m0x, st * self.stage), "s_nop 0"] + x
            g.append(x)
        for j in range(self.nw):
            x = ["buffer_load_dwordx4 v%d, %s, s%d offen offset:%d lds" % (self.v_wsrc + j, WSRD, s_woff, j * 1024)]
            if j == 0: x = ["s_add_u32 m0, s%d, %d" % (s_m0w, st * self.stage), "s_add_u32 s%d, s%d, 1024" % (s_xoff, s_xoff)] + x
            g.append(x)
        g[-1] = g[-1] + ["s_add_u32 s%d, s%d, s%d" % (s_woff, s_woff, s_wadv)]
        return g
    def reads(self, st, buf):
        out = []; base = st * self.stage; H = self.TN // 2
        for i in range(max(self.TM, self.TN)):
            if i < self.TN:
                f = self.wfrag(buf, i)
                for hf in range(2):
                    off = base + (i // H) * (self.wbytes // 2) + 16 * hf * self.pitch
                    out.append("ds_read_b64_tr_b16 %s, v%d offset:%d" % (r2(f + 2 * hf), self.v_wrd + (off // 65536) * H + i % H, off % 65536))
            if i < self.TM:
                off = base + i * 1024
                out.append("ds_read_b128 %s, v%d offset:%d" % (r4(self.xfrag(buf, i)), self.v_xrd + off // 65536, off % 65536))
        return out
    def mfmas(self, buf, first):
        out = []
        for tn in range(self.TN):
            for tm in range(self.TM):
                c = r4(self.acc(tn, tm), "a"); w = r4(self.wfrag(buf, tn)); x = r4(self.xfrag(buf, tm))
                if self.swap: w, x = x, w
                out.append("v_mfma_f32_16x16x32_bf16 %s, %s, %s, %s" % (c, w, x, "0" if first else c))
        return out
    def step(self, a, st, first=False):
        nd = self.nx + self.nw; nm = self.TM * self.TN; buf = st % 2
        a("s_waitcnt lgkmcnt(0)")
        mf = self.mfmas(buf, first); rd = self.reads((st + 1) % self.NST, buf ^ 1); dm = self.dma(st)
        gaps = [[] for _ in range(nm)]
        gaps[0].append("s_waitcnt vmcnt(%d)\ns_barrier" % (nd * (self.NST - 2)))
        dpos = [((2 * j + 1) * nm) // (2 * len(dm)) for j in range(len(dm))]
        for j, p in enumerate(dpos): gaps[p] += dm[j]
        free = [i for i in range(nm) if i not in dpos]
        for k, x in enumerate(rd): gaps[free[k] if k < len(free) else k % nm].append(x)
        for i in range(nm):
            a(mf[i])
            for x in gaps[i]: a(x)
    def body(self, a):
        n = self.name; nd = self.nx + self.nw
        self.setup(a)
        for st in range(self.NST):
            for g in self.dma(st):
                for x in g: a(x)
        a("s_waitcnt vmcnt(%d)\ns_barrier" % (nd * (self.NST - 1)))
        for x in self.reads(0, 0): a(x)
        self.step(a, 0, True)
        a("s_branch L_%s_s1" % n)
        a("L_%s_loop:" % n)
        a("s_cmp_eq_u32 s%d, 1\ns_cselect_b32 s%d, 0x%x, s%d\ns_cselect_b32 s%d, 0x%x, s%d" % (s_ngrp, s_xoff, OOB, s_xoff, s_woff, OOB, s_woff))
        self.step(a, 0)
        a("L_%s_s1:" % n)
        for st in range(1, self.NST): self.step(a, st)
        a("s_sub_u32 s%d, s%d, 1\ns_cmp_lg_u32 s%d, 0\ns_cbranch_scc1 L_%s_loop" % (s_ngrp, s_ngrp, s_ngrp, n))
        a("s_waitcnt lgkmcnt(0)")
        nop(a, 8)
    def wave_base(self, a, rows_mul, col_bytes):
        a("s_lshr_b32 s%d, s%d, 1\ns_mul_i32 s%d, s%d, %d\ns_mul_i32 s%d, s%d, s%d\ns_add_u32 s%d, s%d, s%d" % (t0, s_w, t0, t0, rows_mul, t0, t0, s_ors, t0, t0, s_obase))
        a("s_and_b32 s%d, s%d, 1\ns_mul_i32 s%d, s%d, %d\ns_add_u32 s%d, s%d, s%d" % (t1, s_w, t1, t1, col_bytes, t0, t0, t1))
    def pack(self, a, t, accs):
        for r, c in enumerate(accs): a("v_accvgpr_read_b32 v%d, a%d" % (t + 4 + r, c))
        for r in range(4): a("v_cvt_pk_bf16_f32 v%d, v%d, v%d" % (t + r, t + 4 + 2 * r, t + 5 + 2 * r))
    def epi_t16(self, a):
        H = self.TN // 2
        self.wave_base(a, self.TM, (H // 2) * 1024)
        k = 0
        for tm in range(self.TM):
            a("s_add_u32 s%d, s%d, s%d" % (t1, t0, s_ohalf))
            for tp in range(self.TN // 2):
                t = self.v_frag + (k % 4) * 12; k += 1
                self.pack(a, t, [self.acc(2 * tp + r // 4, tm) + r % 4 for r in range(8)])
                half, p = (2 * tp) // H, ((2 * tp) % H) // 2
                a("buffer_store_dwordx4 %s, v%d, %s, s%d offen offset:%d%s" % (r4(t), v_l16, WS, t1 if half else t0, p * 1024, SC))
            a("s_add_u32 s%d, s%d, s%d" % (t0, t0, s_ors))
    def epi_vt(self, a):
        H = self.TN // 2
        self.wave_base(a, self.TM // 2, H * 1024)
        k = 0
        for sp in range(self.TM // 2):
            a("s_add_u32 s%d, s%d, s%d" % (t1, t0, s_ohalf))
            for tn in range(self.TN):
                t = self.v_frag + (k % 4) * 12; k += 1
                self.pack(a, t, [self.acc(tn, 2 * sp + r // 4) + r % 4 for r in range(8)])
                a("buffer_store_dwordx4 %s, v%d, %s, s%d offen offset:%d%s" % (r4(t), v_l16, WS, t1 if tn // H else t0, (tn % H) * 1024, SC))
            a("s_add_u32 s%d, s%d, s%d" % (t0, t0, s_ors))
    def epi_f32(self, a):
        H = self.TN // 2
        self.wave_base(a, self.TM, H * 1024)
        for tm in range(self.TM):
            a("s_add_u32 s%d, s%d, s%d" % (t1, t0, s_ohalf))
            for tn in range(self.TN):
                a("buffer_store_dwordx4 %s, v%d, %s, s%d offen offset:%d%s" % (r4(self.acc(tn, tm), "a"), v_l16, WS, t1 if tn // H else t0, (tn % H) * 1024, SC))
            a("s_add_u32 s%d, s%d, s%d" % (t0, t0, s_ors))
    def epi_gu(self, a):
        H = self.TN // 2
        self.wave_base(a, self.TM, (H // 2) * 1024)
        a("s_mov_b32 s%d, %s" % (t2, f32(-math.log2(math.e))))
        k = 0
        for tm in range(self.TM):
            for p in range(H // 2):
                t = self.v_frag + (k % 2) * 28; k += 1
                G, U, E = t + 4, t + 12, t + 20
                for r in range(8): a("v_accvgpr_read_b32 v%d, a%d" % (G + r, self.acc(2 * p + r // 4, tm) + r % 4))
                for r in range(8): a("v_mul_f32 v%d, s%d, v%d" % (E + r, t2, G + r))
                for r in range(8): a("v_exp_f32 v%d, v%d" % (E + r, E + r))
                for r in range(8): a("v_accvgpr_read_b32 v%d, a%d" % (U + r, self.acc(H + 2 * p + r // 4, tm) + r % 4))
                for r in range(8): a("v_add_f32 v%d, 1.0, v%d" % (E + r, E + r))
                for r in range(8): a("v_rcp_f32 v%d, v%d" % (E + r, E + r))
                for r in range(0, 8, 2): a("v_pk_mul_f32 %s, %s, %s" % (r2(G + r), r2(G + r), r2(U + r)))
                for r in range(0, 8, 2): a("v_pk_mul_f32 %s, %s, %s" % (r2(G + r), r2(G + r), r2(E + r)))
                for r in range(4): a("v_cvt_pk_bf16_f32 v%d, v%d, v%d" % (t + r, G + 2 * r, G + 2 * r + 1))
                a("buffer_store_dwordx4 %s, v%d, %s, s%d offen offset:%d%s" % (r4(t), v_l16, WS, t0, p * 1024, SC))
            a("s_add_u32 s%d, s%d, s%d" % (t0, t0, s_ors))

XT = HB + 4 * MB
L_RED = 0
def row_addr(a, v):
    a("v_and_b32 v%d, 15, v%d\nv_lshlrev_b32 v%d, 11, v%d" % (v, v_lane, v, v))
    a("v_bfe_u32 v4, v%d, 4, 1\nv_lshl_add_u32 v%d, v4, 5, v%d\nv_lshrrev_b32 v4, 5, v%d\nv_lshl_add_u32 v%d, v4, 4, v%d" % (v_lane, v, v, v_lane, v, v))
    a("s_lshl_b32 s%d, s%d, 9\nv_add_u32 v%d, s%d, v%d" % (t0, s_w, v, t0, v))
def swap16(a, d):
    a("v_permlane16_swap_b32 v%d, v%d\nv_permlane16_swap_b32 v%d, v%d" % (d, d + 2, d + 1, d + 3))
def unpack(a, F, d):
    for r in range(4): a("v_lshlrev_b32 v%d, 16, v%d\nv_and_b32 v%d, 0xffff0000, v%d" % (F + 2 * r, d + r, F + 2 * r + 1, d + r))
def rowsum(a, v, tmp, slot):
    for sw in ("v_permlane32_swap_b32", "v_permlane16_swap_b32"):
        a("v_mov_b32 v%d, v%d\ns_nop 1\n%s v%d, v%d\nv_add_f32 v%d, v%d, v%d" % (tmp, v, sw, v, tmp, v, v, tmp))
    a("ds_write_b32 v6, v%d offset:%d\ns_waitcnt lgkmcnt(0)\ns_barrier\nds_read_b128 %s, v7 offset:%d\ns_waitcnt lgkmcnt(0)" % (v, slot * 256, r4(tmp), slot * 256))
    a("v_add_f32 v%d, v%d, v%d\nv_add_f32 v%d, v%d, v%d\nv_add_f32 v%d, v%d, v%d" % (tmp, tmp, tmp + 1, tmp + 2, tmp + 2, tmp + 3, v, tmp, tmp + 2))
def layernorm_store(a, F, D, s_dst):
    a("v_and_b32 v7, 15, v%d\nv_lshlrev_b32 v7, 4, v7\ns_lshl_b32 s%d, s%d, 2\nv_add_u32 v6, s%d, v7" % (v_lane, t0, s_w, t0))
    S, T = 8, 12
    a("v_pk_add_f32 %s, %s, %s" % (r2(S), r2(F), r2(F + 2)))
    for k in range(4, 64, 2): a("v_pk_add_f32 %s, %s, %s" % (r2(S), r2(S), r2(F + k)))
    a("v_add_f32 v%d, v%d, v%d" % (S, S, S + 1))
    rowsum(a, S, T, 0)
    a("v_mul_f32 v%d, %s, v%d" % (S, f32(-1.0 / 1024), S))
    for k in range(0, 64, 2): a("v_pk_add_f32 %s, %s, %s op_sel_hi:[1,0]" % (r2(F + k), r2(F + k), r2(S)))
    a("v_pk_mul_f32 %s, %s, %s" % (r2(S), r2(F), r2(F)))
    for k in range(2, 64, 2): a("v_pk_fma_f32 %s, %s, %s, %s" % (r2(S), r2(F + k), r2(F + k), r2(S)))
    a("v_add_f32 v%d, v%d, v%d" % (S, S, S + 1))
    rowsum(a, S, T, 1)
    a("v_mov_b32 v%d, %s\nv_fmac_f32 v%d, %s, v%d\nv_rsq_f32 v%d, v%d\ns_nop 0" % (T, f32(1e-5), T, f32(1.0 / 1024), S, S, T))
    a("s_lshl_b32 s%d, s%d, 13\ns_add_u32 s%d, s%d, s%d\ns_add_u32 s%d, s%d, 4096" % (t0, s_w, t0, t0, s_dst, t1, t0))
    for p in range(8):
        for k in range(0, 8, 2): a("v_pk_mul_f32 %s, %s, %s op_sel_hi:[1,0]" % (r2(F + 8 * p + k), r2(F + 8 * p + k), r2(S)))
        for r in range(4): a("v_cvt_pk_bf16_f32 v%d, v%d, v%d" % (D + 4 * p + r, F + 8 * p + 2 * r, F + 8 * p + 2 * r + 1))
        a("buffer_store_dwordx4 %s, v%d, %s, s%d offen offset:%d%s" % (r4(D + 4 * p), v_l16, WS, t1 if p >= 4 else t0, (p % 4) * 1024, SC))

def task_ln1(a, s_rg):
    D, F = 16, 48
    set_srd(a, 24, P_X, 4 * MB)
    row_addr(a, 5)
    a("s_lshl_b32 s%d, s%d, 15" % (t2, s_rg))
    for p in range(8): a("buffer_load_dwordx4 %s, v5, %s, s%d offen offset:%d" % (r4(D + 4 * p), XSRD, t2, p * 64))
    a("s_lshl_b32 s%d, s%d, 13\ns_add_u32 s%d, s%d, s%d\ns_add_u32 s%d, s%d, %d\ns_add_u32 s%d, s%d, 4096" % (t0, s_w, t0, t0, t2, t0, t0, XT, t1, t0))
    for p in range(8):
        a("s_waitcnt vmcnt(7)")
        swap16(a, D + 4 * p)
        a("buffer_store_dwordx4 %s, v%d, %s, s%d offen offset:%d%s" % (r4(D + 4 * p), v_l16, WS, t1 if p >= 4 else t0, (p % 4) * 1024, SC))
        unpack(a, F + 8 * p, D + 4 * p)
    a("s_add_u32 s%d, s%d, %d" % (t2, t2, XN))
    layernorm_store(a, F, D, t2)

def sum_partials(a, tag, s_rg, s_n, F, D, pbase, pstride, res_base):
    P, U = 112, 240
    a("s_lshl_b32 s%d, s%d, 15\ns_lshl_b32 s%d, s%d, 13\ns_add_u32 s%d, s%d, s%d" % (t2, s_rg, t0, s_w, t3, t0, t2))
    def issue(R, base, sp=None):
        a("s_add_u32 s%d, s%d, %d" % (t0, t3, base))
        if sp is not None: a("s_cmp_gt_u32 s%d, %d\ns_cselect_b32 s%d, s%d, 0x%x" % (s_n, sp, t0, t0, OOB))
        a("s_add_u32 s%d, s%d, 4096" % (t1, t0))
        for p in range(8): a("buffer_load_dwordx4 %s, v%d, %s, s%d offen offset:%d%s" % (r4(R + 4 * p), v_l16, WS, t1 if p >= 4 else t0, (p % 4) * 1024, SC))
    issue(D, res_base)
    for sp in range(4): issue(P + 32 * sp, pbase + sp * pstride)
    a("s_waitcnt vmcnt(32)")
    for p in range(8): unpack(a, F + 8 * p, D + 4 * p)
    for sp in range(8):
        if sp == 4: a("s_cmp_eq_u32 s%d, 4\ns_cbranch_scc1 L_%s_sum" % (s_n, tag))
        a("s_waitcnt vmcnt(%d)" % (24 if sp < 4 else 8 * (7 - sp)))
        for p in range(8):
            u = U + 8 * (p % 2)
            unpack(a, u, P + 32 * (sp % 4) + 4 * p)
            for k in range(0, 8, 2): a("v_pk_add_f32 %s, %s, %s" % (r2(F + 8 * p + k), r2(F + 8 * p + k), r2(u + k)))
        if sp < 4: issue(P + 32 * sp, pbase + (sp + 4) * pstride, sp + 4)
    a("L_%s_sum:" % tag)

def task_ln2(a, s_rg, s_n, pbase, pstride):
    D, F = 16, 48
    sum_partials(a, "ln2", s_rg, s_n, F, D, pbase, pstride, XT)
    a("s_add_u32 s%d, s%d, %d\ns_add_u32 s%d, s%d, 4096" % (t0, t3, HB, t1, t0))
    for p in range(8):
        for r in range(4): a("v_cvt_pk_bf16_f32 v%d, v%d, v%d" % (D + 4 * p + r, F + 8 * p + 2 * r, F + 8 * p + 2 * r + 1))
        a("buffer_store_dwordx4 %s, v%d, %s, s%d offen offset:%d%s" % (r4(D + 4 * p), v_l16, WS, t1 if p >= 4 else t0, (p % 4) * 1024, SC))
        unpack(a, F + 8 * p, D + 4 * p)
    a("s_add_u32 s%d, s%d, %d" % (t2, t2, HN))
    layernorm_store(a, F, D, t2)

def task_fin(a, s_rg, s_n, pbase, pstride):
    D, F = 16, 48
    sum_partials(a, "fin", s_rg, s_n, F, D, pbase, pstride, HB)
    set_srd(a, 24, P_OUT, 4 * MB)
    row_addr(a, 5)
    for p in range(8):
        for r in range(4): a("v_cvt_pk_bf16_f32 v%d, v%d, v%d" % (D + 4 * p + r, F + 8 * p + 2 * r, F + 8 * p + 2 * r + 1))
        a("s_nop 1")
        swap16(a, D + 4 * p)
        a("buffer_store_dwordx4 %s, v5, %s, s%d offen offset:%d" % (r4(D + 4 * p), XSRD, t2, p * 64))

def att_setup(a):
    a("v_and_b32 v4, 15, v%d\nv_lshrrev_b32 v5, 4, v%d\nv_lshlrev_b32 v6, 2, v5\nv_mov_b32 v7, 0xff000000\nv_mov_b32 v9, 0" % (v_lane, v_lane))
    for r in range(4):
        a("v_add_u32 v10, %d, v6\nv_cmp_gt_u32 vcc, v10, v4\ns_nop 1\nv_cndmask_b32 v%d, v9, v7, vcc\nv_mov_b32 v%d, 0x3f803f80" % (r, 12 + r, 20 + r))
    for r in range(1, 18, 2): a("v_mov_b32 v%d, 0" % (136 + r))
    a("v_mov_b32 v152, 0")
    a("s_mov_b32 s42, %s" % f32(128 ** -0.5 * math.log2(math.e)))

def task_att(a, s_seg, s_head, mid=None):
    Q, K, V, KMr, VMr = 24, 56, 88, 120, 136
    a("s_lshl_b32 s%d, s%d, 18\ns_lshl_b32 s%d, s%d, 12\ns_add_u32 s%d, s%d, s%d" % (t2, s_seg, t3, s_head, t2, t2, t3))
    a("s_lshl_b32 s%d, s%d, 11\ns_xor_b32 s%d, s%d, s%d\ns_and_b32 s%d, s%d, 8192\ns_lshl_b32 s%d, s%d, 19\ns_add_u32 s%d, s%d, s%d" % (t1, s_seg, t1, t1, s_near, t1, t1, t0, s_seg, t1, t1, t0))
    a("s_lshr_b32 s%d, s%d, 1\ns_lshl_b32 s%d, s%d, 14\ns_and_b32 s%d, s%d, 4096\ns_add_u32 s%d, s%d, s%d\ns_add_u32 s%d, s%d, s%d" % (t0, s_head, t0, t0, t3, t3, t3, t3, t0, t3, t3, t1))
    for base, R, src, st in ((KX, K, t3, 262144), (QX, Q, t2, 131072)):
        for tb in range(2):
            a("s_add_u32 s%d, s%d, %d" % (t0, src, base + tb * st))
            for kp in range(4): a("buffer_load_dwordx4 %s, v%d, %s, s%d offen offset:%d%s" % (r4(R + 16 * tb + 4 * kp), v_l16, WS, t0, kp * 1024, SC))
    a("s_lshl_b32 s%d, s%d, 14\ns_add_u32 s%d, s%d, s%d" % (t0, s_head, t1, t1, t0))
    for base, n, R, off in ((VT, 4, V, 0), (KM, 2, KMr, 0), (KM, 1, VMr, 8)):
        if n == 2 and mid: mid()
        a("s_add_u32 s%d, s%d, %d" % (t0, t1, base))
        for T in range(8):
            d = R + max(n, 2) * T
            a("buffer_load_dword%s %s, v%d, %s, s%d offen offset:%d%s" % ("" if n == 1 else "x%d" % n, "v%d" % d if n == 1 else "v[%d:%d]" % (d, d + n - 1), v_l16, WS, t0, (T % 4) * 1024 + off, SC))
            if T == 3: a("s_add_u32 s%d, s%d, 4096" % (t0, t0))
    S = 156
    tiles = [(S, KMr, 0, "0"), (S + 4, K, 0, "v[12:15]"), (S + 12, KMr, 1, "0"), (S + 16, K, 1, "0"), (S + 20, K + 16, 1, "v[12:15]")]
    a("s_waitcnt vmcnt(8)")
    for kp in range(4):
        for D, Aop, qt, C in tiles:
            a("v_mfma_f32_16x16x32_bf16 %s, %s, %s, %s" % (r4(D), r4(Aop + 4 * kp), r4(Q + 16 * qt + 4 * kp), C if kp == 0 else r4(D)))
    nop(a, 8)
    PX, PZ = 180, 188
    for qt in range(2):
        b = S + 12 * qt; M = 200
        val = [b, b + 1] + list(range(b + 4, b + 8 + 4 * qt))
        a("v_max_f32 v%d, v%d, v%d" % (M, val[0], val[1]))
        for k in range(2, len(val), 2): a("v_max3_f32 v%d, v%d, v%d, v%d" % (M, val[k], val[k + 1], M))
        for sw in ("v_permlane32_swap_b32", "v_permlane16_swap_b32"):
            a("v_mov_b32 v%d, v%d\ns_nop 1\n%s v%d, v%d\nv_max_f32 v%d, v%d, v%d" % (M + 1, M, sw, M, M + 1, M, M, M + 1))
        a("v_mul_f32 v%d, s42, v%d" % (M, M))
        for r in val: a("v_fma_f32 v%d, v%d, s42, -v%d" % (r, r, M))
        for r in val: a("v_exp_f32 v%d, v%d" % (r, r))
        px, pz = PX + 4 * qt, PZ + 4 * qt
        a("v_mov_b32 v%d, 0\nv_mov_b64 %s, 0" % (pz + 1, r2(pz + 2)))
        a("v_cvt_pk_bf16_f32 v%d, v%d, v%d" % (pz, b, b + 1))
        a("v_cvt_pk_bf16_f32 v%d, v%d, v%d\nv_cvt_pk_bf16_f32 v%d, v%d, v%d" % (px, b + 4, b + 5, px + 1, b + 6, b + 7))
        if qt: a("v_cvt_pk_bf16_f32 v%d, v%d, v%d\nv_cvt_pk_bf16_f32 v%d, v%d, v%d" % (px + 2, b + 8, b + 9, px + 3, b + 10, b + 11))
        else: a("v_mov_b64 %s, 0" % r2(px + 2))
    a("s_waitcnt vmcnt(0)")
    O, L = 24, 156
    for qt in range(2):
        px, pz = PX + 4 * qt, PZ + 4 * qt
        a("v_mfma_f32_16x16x32_bf16 %s, v[20:23], %s, 0" % (r4(L + 4 * qt), r4(px)))
        a("v_mfma_f32_16x16x32_bf16 %s, v[20:23], %s, %s" % (r4(L + 4 * qt), r4(pz), r4(L + 4 * qt)))
        for T in range(8):
            o = r4(O + 32 * qt + 4 * T)
            a("v_mfma_f32_16x16x32_bf16 %s, %s, %s, 0" % (o, r4(V + 4 * T), r4(px)))
            a("v_mfma_f32_16x16x32_bf16 %s, %s, %s, %s" % (o, r4(VMr + 2 * T), r4(pz), o))
    a("v_rcp_f32 v200, v%d\nv_rcp_f32 v202, v%d" % (L, L + 4))
    nop(a, 6)
    for qt in range(2):
        a("s_add_u32 s%d, s%d, %d" % (t0, t2, OA + qt * 131072))
        for p in range(4):
            o = O + 32 * qt + 8 * p; d = 164 + 4 * (p % 4)
            for k in range(0, 8, 2): a("v_pk_mul_f32 %s, %s, %s op_sel_hi:[1,0]" % (r2(o + k), r2(o + k), r2(200 + 2 * qt)))
            for r in range(4): a("v_cvt_pk_bf16_f32 v%d, v%d, v%d" % (d + r, o + 2 * r, o + 2 * r + 1))
            a("buffer_store_dwordx4 %s, v%d, %s, s%d offen offset:%d%s" % (r4(d), v_l16, WS, t0, p * 1024, SC))
```

```python
import sys
from asmlib import *
from layout import *
from tasks import *
import chain_gen as CH
import sched as SC_
from sched import *
from serv import *
NAME = "sequential_preLN__memory_aug_recurrent_mem_tr__swiglu_ffn__prompt_kernel"
SPINW = 200000
def gen(tau=2.6, t0=22.0, ckw={}, trace=0, skw={}, nstb=4):
    T = build(tau, t0, **skw); lists = simulate(T, tau, t0)
    a = Asm()
    a("; @launch grid=(256,1,1) block=(256,1,1) lds=%d" % CH.LDS_BYTES)
    a('.amdgcn_target "amdgcn-amd-amdhsa--gfx950"')
    kernel_begin(a, NAME)
    def early():
        a("s_cmp_lg_u32 s2, 0\ns_cbranch_scc1 L_noinit")
        a("v_lshlrev_b32 v3, 4, v0\nv_mov_b32 v4, 0\nv_mov_b32 v5, 0\nv_mov_b32 v6, 0\nv_mov_b32 v7, 0\ns_mov_b32 s30, %d" % FLAGS)
        for k in range(ZERO_BYTES // 4096):
            a("buffer_store_dwordx4 v[4:7], v3, s[8:11], s30 offen sc1\ns_add_u32 s30, s30, 4096")
        a("s_waitcnt vmcnt(0)\ns_barrier\nv_mov_b32 v4, 1\nv_lshlrev_b32 v5, 6, v0\nv_add_u32 v5, 64, v5")
        a("v_cmp_gt_u32 vcc, 2, v0\ns_and_saveexec_b64 s[48:49], vcc\ns_cbranch_execz L_ini2\nbuffer_atomic_add v4, v5, s[16:19], 0 offen\nL_ini2:\ns_mov_b64 exec, s[48:49]")
        a("L_noinit:")
    CH.emit_role_prologue(a, early=early)
    a("s_cmp_ge_u32 s%d, 32\ns_cbranch_scc1 L_end\ns_cmp_ge_u32 s%d, 8\ns_cbranch_scc1 L_end" % (CH.s_i, CH.s_xcc))
    a("s_cmp_ge_u32 s%d, 2\ns_cbranch_scc1 L_worker\ns_mov_b32 s%d, s%d" % (CH.s_xcc, CH.s_x, CH.s_xcc))
    CH.emit_chain(a, mega=1, **ckw)
    a("s_endpgm")
    a("L_worker:")
    load_ptrs(a)
    a("s_getpc_b64 s[56:57]\ns_add_u32 s56, s56, task_table@rel32@lo+4\ns_addc_u32 s57, s57, task_table@rel32@hi+12")
    a("s_sub_u32 s20, s20, 2\ns_lshl_b32 s4, s20, 3\ns_load_dwordx2 s[58:59], s[56:57], s4")
    a("s_lshl_b32 s60, s20, 7\ns_add_u32 s60, s60, %d" % (FLAGS + 128 * C_Q))
    a("s_mov_b32 s61, s22\ns_mov_b32 s62, %d\ns_mov_b32 s63, -1" % SPINW)
    a("""
    s_cmp_lg_u32 s21, 0
    s_cbranch_scc1 L_w_task
    v_mov_b32 v4, 128
    L_w_ini:
    buffer_load_dword v5, v4, s[16:19], 0 offen sc1
    s_sub_u32 s62, s62, 1
    s_cbranch_scc1 L_w_fail
    s_waitcnt vmcnt(0)
    v_cmp_eq_u32 vcc, 0, v5
    s_cbranch_vccnz L_w_ini
    L_w_task:
    s_waitcnt lgkmcnt(0)
    s_cmp_ge_u32 s61, s59
    s_cbranch_scc1 L_end
    s_lshl_b32 s4, s61, 5
    s_add_u32 s4, s4, s58
    s_load_dwordx8 s[48:55], s[56:57], s4
    """)
    if trace: a("s_memrealtime s[88:89]")
    a("""
    s_waitcnt lgkmcnt(0)
    s_cmp_eq_u32 s48, 0
    s_cbranch_scc1 L_w_hasc
    s_cmp_lg_u32 s63, -1
    s_cbranch_scc1 L_w_hasc
    v_mov_b32 v4, 192
    L_w_cal:
    buffer_load_dword v5, v4, s[16:19], 0 offen sc1
    s_sub_u32 s62, s62, 1
    s_cbranch_scc1 L_w_fail
    s_waitcnt vmcnt(0)
    v_readfirstlane_b32 s4, v5
    s_and_b32 s5, s4, 0xffff
    s_cmp_lt_u32 s5, 64
    s_cbranch_scc1 L_w_cal
    s_lshr_b32 s4, s4, 16
    s_cmp_ge_u32 s4, 32
    s_cselect_b32 s63, 8192, 0
    L_w_hasc:
    s_cmp_lg_u32 s21, 0
    s_cbranch_scc1 L_w_go
    s_cmp_eq_u32 s50, 0
    s_cbranch_scc1 L_w_go
    v_mov_b32 v4, 0
    L_w_poll:
    buffer_load_dword v5, v4, s[8:11], s49 offen sc1
    s_sub_u32 s62, s62, 1
    s_cbranch_scc1 L_w_fail
    s_waitcnt vmcnt(0)
    v_cmp_le_u32 vcc, s50, v5
    s_cbranch_vccnz L_w_go
    s_sleep 4
    s_branch L_w_poll
    L_w_go:
    s_barrier
    """)
    if trace: a("s_memrealtime s[90:91]")
    a("s_mov_b32 s%d, s52\ns_mov_b32 s%d, s53\ns_mov_b32 s%d, s54" % (s_xoff, s_woff, s_obase))
    for t in range(12): a("s_cmp_eq_u32 s48, %d\ns_cbranch_scc1 L_t%d" % (t, t))
    a("s_branch L_end")
    gA = Gemm("ga", 8, 8, 4); gAs = Gemm("gas", 8, 8, 4, swap=True); gB = Gemm("gb", 8, 4, 4); gBs = Gemm("gbs", 8, 4, 4, swap=True)
    def stub(t, g, pa, pb, wbytes, xrs, ldw, ngrp, ors, ohalf, epi, half=True, near=False):
        a("L_t%d:" % t)
        set_w(a, pa, pb, wbytes)
        a("s_mov_b32 s%d, %d\ns_mov_b32 s%d, %d\ns_mov_b32 s%d, %d\ns_mov_b32 s%d, %d\ns_mov_b32 s%d, %d\ns_mov_b32 s%d, %d" % (
            s_xrs, xrs, s_ldw, ldw, s_ngrp, ngrp, s_ors, ors, s_ohalf, ohalf, s_epi, epi))
        if half: a("s_lshr_b32 s%d, s%d, 1\ns_mul_i32 s%d, s%d, %d\ns_add_u32 s%d, s%d, s%d" % (t0_, s_w, t0_, t0_, g.BN, s_woff, s_woff, t0_))
        if near: a("s_lshl_b32 s4, s%d, 12\ns_xor_b32 s4, s4, s%d\ns_and_b32 s4, s4, 8192\ns_add_u32 s%d, s%d, s4" % (s_w, s_near, s_obase, s_obase))
        a("s_branch L_%s" % g.name)
    t0_ = 4
    stub(T_QA, gA, P_WQ, P_WQ, 8 * MB, 32768, 8192, 8, 131072, 4096, 0)
    stub(T_KA, gA, P_WK, P_WK, 8 * MB, 32768, 8192, 8, 262144, 4096, 0, near=True)
    stub(T_VA, gAs, P_WV, P_WV, 8 * MB, 32768, 8192, 8, 524288, 16384, 0, near=True)
    stub(T_KB, gB, P_WK, P_WK, 8 * MB, 32768, 8192, 8, 262144, 2048, 0, near=True)
    stub(T_VB, gBs, P_WV, P_WV, 8 * MB, 32768, 8192, 8, 524288, 4096, 0, near=True)
    class N:
        def __init__(q, n): q.name = n; q.BN = 128
    stub(T_SO, N("so"), P_WO, P_WO, 8 * MB, 131072, 2048, 0, 32768, 0, 0)
    stub(T_SGU, N("sgu"), P_WG, P_WU, 1024 * 7168, 32768, 7168, 0, 114688, 0, 0, half=False)
    stub(T_SD, N("sd"), P_WD, P_WD, 3584 * 2048, 114688, 2048, 0, 32768, 0, 0)
    a("L_ga:"); gA.body(a); gA.epi_t16(a); a("s_branch L_w_done")
    a("L_gas:"); gAs.body(a); gAs.epi_vt(a); a("s_branch L_w_done")
    a("L_gbs:"); gBs.body(a); gBs.epi_vt(a); a("s_branch L_w_done")
    a("L_gb:"); gB.body(a); gB.epi_t16(a); a("s_branch L_w_done")
    a("L_t%d:" % T_LN1); task_ln1(a, 52); a("s_branch L_w_done")
    WS_("so", 32, False, False).emit(a, trace); WS_("sgu", 32, False, True).emit(a, trace); WS_("sd", 28, True, False).emit(a, trace)
    a("L_t%d:" % T_SLN); serv_rows(a, "sln", lambda a, r, n: task_ln2(a, r, n, PART_O, PSLAB), trace)
    a("L_t%d:" % T_SFIN); serv_rows(a, "sfin", lambda a, r, n: task_fin(a, r, n, PART_D, PSLAB), trace)
    a("L_t%d:" % T_SATT); serv_att(a, C_HP, trace)
    a("L_w_done:")
    a("s_waitcnt vmcnt(0)\ns_barrier")
    a("v_mov_b32 v7, %d" % CH.L_MISC)
    a("s_cmp_lg_u32 s21, 0\ns_cbranch_scc1 L_w_nx")
    a("""
    s_mov_b64 exec, 1
    s_lshr_b32 s4, s51, 16
    s_and_b32 s5, s51, 0xffff
    s_add_u32 s5, s5, %d
    v_mov_b32 v4, 0
    v_mov_b32 v5, s4
    v_mov_b32 v6, 1
    buffer_atomic_add v5, v4, s[8:11], s5 offen
    buffer_atomic_add v6, v4, s[8:11], s60 offen sc0
    """ % FLAGS)
    if trace:
        a("s_memrealtime s[92:93]\ns_lshl_b32 s4, s61, 5\ns_add_u32 s4, s4, s58\ns_add_u32 s4, s4, %d\ns_waitcnt lgkmcnt(0)" % (FLAGS + 4 * MB))
        a("v_mov_b32 v8, s88\nv_mov_b32 v9, s90\nv_mov_b32 v10, s92\nv_mov_b32 v11, s22\nbuffer_store_dwordx4 v[8:11], v4, s[8:11], s4 offen")
    a("""
    s_waitcnt vmcnt(0)
    ds_write_b32 v7, v6
    s_waitcnt lgkmcnt(0)
    s_mov_b64 exec, -1
    L_w_nx:
    s_barrier
    ds_read_b32 v6, v7
    s_waitcnt lgkmcnt(0)
    v_readfirstlane_b32 s61, v6
    s_add_u32 s61, s61, 32
    s_branch L_w_task
    L_w_fail:
    v_mov_b32 v7, %d
    v_mov_b32 v6, 0x7fffff00
    ds_write_b32 v7, v6
    v_mov_b32 v4, 96
    v_mov_b32 v5, 1
    buffer_atomic_add v5, v4, s[16:19], 0 offen
    s_waitcnt vmcnt(0) lgkmcnt(0)
    L_end:
    s_endpgm
    """ % CH.L_MISC)
    kernel_desc(a, NAME, 512, 102, 256)
    a(".p2align 6\ntask_table:")
    off = 64
    hdr = []
    for l in lists: hdr += [off, len(l)]; off += 32 * len(l)
    a(".long " + ", ".join(map(str, hdr + [0] * (16 - len(hdr)))))
    for l in lists:
        for i in l:
            t = T[i]
            a(".long %d,%d,%d,%d,%d,%d,%d,%d" % (t.typ, FLAGS + 128 * t.wait, t.target, 128 * t.sig | (t.inc << 16), *t.p))
    gen.T, gen.lists = T, lists
    return a.text()
if __name__ == "__main__":
    HDR = open("sequential_preLN__memory_aug_recurrent_mem_tr__swiglu_ffn__prompt.s.ref").read().split("; Override launch")[0]
    BEST = dict(tau=2.6, t0=27, ckw=dict(stamps=0, rdelay=48, rgap=37, xd0=24, xd1=0, xd2=10, pq=(6, 9, 12, 15), spos=(0, 2, 4, 5, 6, 8, 9)))
    open(sys.argv[1], "w").write(HDR + gen(**BEST))
```

```python
import sys
from asmlib import *
from layout import *

L_PL = 0; L_KV0 = 16384; L_KV1 = 32768; L_F = 49152; L_O = 53248; L_DUM = 55296; L_TR = 57344; L_WO = 65536
L_KX = L_KV1
L_MISC = 158720
LDS_BYTES = 163840
OOB = 0x80000000
SPIN = 400000
NVOTE = 16

def nop(a, n):
    while n > 0:
        k = min(n, 16); a("s_nop %d" % (k - 1)); n -= k

def srd(a, d, lo, hi, nbytes):
    a("s_mov_b32 s%d, s%d\ns_mov_b32 s%d, s%d\ns_mov_b32 s%d, 0x%x\ns_mov_b32 s%d, 0x00020000" % (d, lo, d + 1, hi, d + 2, nbytes, d + 3))

S_WS = 8; S_W = 12; S_DBG = 16
s_prog, s_tagl = 2, 3
s_xcc, s_w, s_i, s_x, s_h, s_b, s_step, s_spin = 20, 21, 22, 23, 24, 25, 26, 27
s_sent, s_scale = 28, 30
s_t0, s_t1, s_t2, s_t3 = 4, 5, 6, 7
o_qk_own, o_qk_par, s_e = 31, 32, 33
o_i3st = 34
o_i3ld, o_i3ld2, o_xs, o_xr, o_pl, o_plf, o_pp = 38, 39, 40, 41, 42, 43, 44
o_kv, o_km, b_kv, s_tag, s_cnt = 45, 46, 47, 48, 49
s_vt, m_kv, b_p, s_en = 52, 53, 54, 55
b_km, b_x = 100, 101
CUR = "s[12:15]"; WS = "s[8:11]"
R_QK2, R_I32 = 0, 524288
PBUF = RING + 2 * MB
o_qs, o_qr = 20, 24
v_ord, v_lane, v_l16, v_l8, v_idx, v_word, v_pst, v_i3st, v_i3l, v_xo, v_fown, v_fpar, v_owr, v_flag = range(14)
v_avx = 1
KMP = 14; M = 16; v_ones = 20; v_sel = 24
v_aq, v_ak, v_av = 28, 32, 36
V_WO = 96; V_WV = 128

def r4(v): return "v[%d:%d]" % (v, v + 3)
def r2(v): return "v[%d:%d]" % (v, v + 1)
def r8(v): return "v[%d:%d]" % (v, v + 7)

def wtile(m, f):
    if m == 0: return "a[%d:%d]" % (8 * f, 8 * f + 7)
    if m == 1: return "a[%d:%d]" % (128 + 8 * f, 128 + 8 * f + 7)
    return "v[%d:%d]" % (V_WV + 8 * f, V_WV + 8 * f + 7)

class LQ:
    def __init__(self, a): self.a = a; self.q = []
    def op(self, ins, tag=None): self.a(ins); self.q.append(tag)
    def need(self, tag):
        if tag not in self.q: return
        k = len(self.q) - 1 - self.q[::-1].index(tag)
        self.a("s_waitcnt lgkmcnt(%d)" % (len(self.q) - 1 - k)); self.q = self.q[k + 1:]
    def all(self):
        self.a("s_waitcnt lgkmcnt(0)"); self.q = []

def emit_chain(a, stamps=0, nsteps=64, pq=(6, 9, 12, 15), nokv=0, nokm=0, tw=0, focus=None, kvw=(3, 1), spos=(0, 1, 2, 3), rg=(40, 37), xl=(30, 16),
               v2=1, vpos=0, fdepth=24, xg=(24, 40), xre=0, xb=1, x16=1, pbar=1, f16=1):
    A = a
    from serv import PROG
    from sched import C_HP
    import struct, math
    def stamp(k):
        if focus:
            k = focus.get(k)
            if k is None: return
        elif not isinstance(k, int): return
        if stamps > 1: A("s_memtime s[%d:%d]" % (60 + 2 * k, 61 + 2 * k))
    def cnt(k):
        if stamps: A("s_add_u32 s%d, s%d, 1" % (96 + k, 96 + k))
    z = lambda r: "v_mov_b64 %s, 0" % r2(r)
    T = 40
    A("s_load_dwordx8 s[48:55], s[0:1], 16")
    A("s_lshr_b32 s%d, s%d, 1\ns_lshl_b32 s%d, s%d, 4\ns_add_u32 s%d, s%d, s%d\ns_and_b32 s%d, s%d, 1" % (s_h, s_i, s_t0, s_x, s_h, s_h, s_t0, s_b, s_i))
    A("v_lshlrev_b32 v%d, 4, v%d\nv_lshlrev_b32 v%d, 3, v%d" % (v_l16, v_lane, v_l8, v_lane))
    vq, vo, vrq, vro = T, T + 1, T + 2, T + 3
    A("v_lshrrev_b32 v%d, 3, v%d\nv_lshlrev_b32 v%d, 13, v%d\nv_and_b32 v%d, 7, v%d\nv_lshl_add_u32 v%d, v%d, 4, v%d" % (T + 4, v_lane, T + 4, T + 4, T + 5, v_lane, vq, T + 5, T + 4))
    A("v_bfe_u32 v%d, v%d, 5, 1\nv_lshlrev_b32 v%d, 4, v%d" % (T + 4, v_lane, T + 4, T + 4))
    A("v_bfe_u32 v%d, v%d, 3, 1\nv_lshl_add_u32 v%d, v%d, 3, v%d" % (T + 5, v_lane, T + 4, T + 5, T + 4))
    A("v_bfe_u32 v%d, v%d, 2, 1\nv_add_u32 v%d, v%d, v%d" % (T + 5, v_lane, T + 4, T + 5, T + 4))
    A("v_bfe_u32 v%d, v%d, 4, 1\nv_lshl_add_u32 v%d, v%d, 2, v%d" % (T + 5, v_lane, T + 4, T + 5, T + 4))
    A("v_and_b32 v%d, 3, v%d\nv_lshlrev_b32 v%d, 3, v%d" % (T + 5, v_lane, T + 5, T + 5))
    A("s_lshl_b32 s%d, s%d, 5\nv_add_u32 v%d, s%d, v%d\nv_lshl_add_u32 v%d, v%d, 7, v%d" % (s_t0, s_w, T + 6, s_t0, T + 5, vrq, T + 4, T + 6))
    A("v_bfe_u32 v%d, v%d, 4, 1\nv_xor_b32 v%d, s%d, v%d\nv_lshlrev_b32 v%d, 4, v%d" % (T + 4, v_lane, T + 4, s_b, T + 4, T + 4, T + 4))
    A("v_bfe_u32 v%d, v%d, 5, 1\nv_lshl_add_u32 v%d, v%d, 2, v%d" % (T + 6, v_lane, T + 4, T + 6, T + 4))
    A("v_bfe_u32 v%d, v%d, 2, 1\nv_add_u32 v%d, v%d, v%d" % (T + 6, v_lane, T + 4, T + 6, T + 4))
    A("v_bfe_u32 v%d, v%d, 3, 1\nv_lshl_add_u32 v%d, v%d, 5, v%d" % (T + 6, v_lane, T + 5, T + 6, T + 5))
    A("s_lshl_b32 s%d, s%d, 8\nv_add_u32 v%d, s%d, v%d\nv_lshl_add_u32 v%d, v%d, 10, v%d" % (s_t0, s_w, T + 6, s_t0, T + 5, vro, T + 4, T + 6))
    A("s_waitcnt lgkmcnt(0)")
    chunks = [("o", q) for q in range(4)] + [(0, c) for c in range(4)] + [(1, c) for c in range(4)] + [(2, c) for c in range(4)]
    bufs = [(2, 3, 4, 0, 1)[k] for k in [0, 1, 2, 3, 4, 0, 1, 2, 3, 4, 0, 1, 3, 4, 3, 4]]
    def issue(ci):
        kind, c = chunks[ci]; buf = bufs[ci]
        p = 54 if kind == "o" else 48 + 2 * kind
        srd(a, S_W, p, p + 1, 8 * MB)
        A("s_lshl_b32 s%d, s%d, 13\ns_add_u32 s%d, s%d, %d" % (s_t2, s_w, s_t2, s_t2, buf * 32768))
        if kind == "o":
            A("s_lshr_b32 s%d, s%d, 1\ns_lshl_b32 s%d, s%d, 6\ns_and_b32 s%d, s%d, 1\ns_lshl_b32 s%d, s%d, 3\ns_add_u32 s%d, s%d, s%d" % (
                s_t0, s_w, s_t0, s_t0, s_t1, s_w, s_t1, s_t1, s_t0, s_t0, s_t1))
            A("s_lshl_b32 s%d, s%d, 7\ns_add_u32 s%d, s%d, s%d\ns_add_u32 s%d, s%d, %d\ns_lshl_b32 s%d, s%d, 11" % (s_t1, s_h, s_t0, s_t0, s_t1, s_t0, s_t0, 16 * c, s_t0, s_t0))
            A("s_lshl_b32 s%d, s%d, 10\ns_add_u32 s%d, s%d, s%d" % (s_t1, s_b, s_t0, s_t0, s_t1))
            va, stride = v_l16, 2048
        else:
            A("s_lshl_b32 s%d, s%d, 6\ns_add_u32 s%d, s%d, %d\ns_lshl_b32 s%d, s%d, 13" % (s_t0, s_w, s_t0, s_t0, 256 * c, s_t0, s_t0))
            A("s_lshl_b32 s%d, s%d, 8\ns_add_u32 s%d, s%d, s%d\ns_lshl_b32 s%d, s%d, 7\ns_add_u32 s%d, s%d, s%d" % (s_t1, s_h, s_t0, s_t0, s_t1, s_t1, s_b, s_t0, s_t0, s_t1))
            va, stride = vq, 8 * 8192
        for j in range(8):
            A("s_add_u32 m0, s%d, %d\ns_nop 0" % (s_t2, j * 1024))
            A("buffer_load_dwordx4 v%d, s[12:15], s%d offen lds" % (va, s_t0))
            if j < 7: A("s_add_u32 s%d, s%d, %d" % (s_t0, s_t0, stride))
    issued = 0
    extra = [0]
    def consume(ci):
        kind, c = chunks[ci]; buf = bufs[ci]
        A("s_waitcnt vmcnt(%d)\ns_barrier" % (8 * (issued - ci - 1) + extra[0]))
        A("v_add_u32 v%d, %d, v%d" % (T + 8, buf * 32768, vro if kind == "o" else vrq))
        if kind == "o":
            for u in range(4):
                for rho in range(4):
                    d = V_WV + (u * 4 + c) * 8 + 2 * rho
                    A("ds_read_b64_tr_b16 %s, v%d offset:%d" % (r2(d), T + 8, (8 * (rho >> 1) + 2 * (rho & 1)) * 1024 + u * 64))
        else:
            for fp in range(4):
                for rho in range(4):
                    f = 4 * c + fp
                    base = (8 * f if kind == 0 else 128 + 8 * f if kind == 1 else V_WV + 8 * f) + 2 * rho
                    dst = ("a[%d:%d]" if kind < 2 else "v[%d:%d]") % (base, base + 1)
                    A("ds_read_b64_tr_b16 %s, v%d offset:%d" % (dst, T + 8, (64 * fp + 32 * (rho >> 1) + 2 * (rho & 1)) * 128))
        A("s_waitcnt lgkmcnt(0)\ns_barrier")
    for ci in range(5): issue(ci); issued += 1
    T = 52
    A("s_mov_b32 s%d, 0x%x\ns_mov_b32 s%d, 0x%x" % (s_sent, SENT, s_sent + 1, SENT))
    A("s_mov_b32 s%d, 0x%x" % (s_scale, struct.unpack("<I", struct.pack("<f", 128 ** -0.5 * math.log2(math.e)))[0]))
    A("v_and_b32 v%d, 15, v%d\nv_lshrrev_b32 v%d, 4, v%d\nv_and_b32 v%d, 7, v%d" % (T, v_lane, T + 1, v_lane, T + 2, v_lane))
    A("v_cmp_gt_u32 vcc, 8, v%d\nv_mov_b32 v%d, 0xeeee\nv_mov_b32 v%d, 0x4444\nv_cndmask_b32 v%d, v%d, v%d, vcc" % (T, T + 3, T + 4, v_idx, T + 3, T + 4))
    A("v_lshl_add_u32 v%d, v%d, 3, v%d\nv_lshlrev_b32 v%d, 4, v%d" % (T + 5, T + 1, T + 2, T + 5, T + 5))
    A("v_add_u32 v%d, %d, v%d\ns_lshl_b32 s%d, s%d, 9\nv_add_u32 v%d, s%d, v%d" % (v_ord, L_O, T + 5, s_t0, s_w, v_xo, s_t0, v_l8))
    if x16: A("v_lshrrev_b32 v%d, 1, v%d" % (v_xo, v_xo))
    A("s_lshl_b32 s%d, s%d, 8\ns_cmp_lt_u32 s%d, 2\ns_cselect_b32 s%d, s%d, 0x%x\ns_lshl_b32 s%d, s%d, 9\ns_add_u32 s%d, s%d, s%d" % (s_t1, s_w, s_w, s_t1, s_t1, OOB, s_t0, s_i, s_t0, s_t0, s_t1))
    A("v_mov_b32 v%d, 0x%x\nv_lshrrev_b32 v%d, 5, v%d\nv_lshl_add_u32 v%d, v%d, 3, v%d\nv_lshlrev_b32 v%d, 4, v%d" % (T + 7, OOB, T + 6, v_lane, T + 6, T + 6, T + 2, T + 6, T + 6))
    A("v_bfe_u32 v%d, v%d, 4, 1\nv_lshl_add_u32 v%d, v%d, 3, v%d\nv_add_u32 v%d, s%d, v%d\nv_bfe_u32 v%d, v%d, 3, 1\nv_lshl_add_u32 v%d, v%d, 2, v%d" % (T + 8, v_lane, T + 6, T + 8, T + 6, T + 6, s_t0, T + 6, T + 8, v_lane, v_pst, T + 8, T + 6))
    A("s_lshl_b32 s%d, s%d, 9\ns_add_u32 s%d, s%d, %d" % (s_t0, s_w, s_t0, s_t0, L_O))
    A("v_and_b32 v%d, 5, v%d\nv_bfe_u32 v%d, v%d, 3, 1\nv_lshl_add_u32 v%d, v%d, 1, v%d\nv_lshl_add_u32 v%d, v%d, 3, v%d" % (T + 6, v_lane, T + 7, v_lane, T + 6, T + 7, T + 6, T + 6, T + 1, T + 6))
    A("v_lshl_add_u32 v%d, v%d, 4, s%d\nv_add_u32 v%d, %d, v%d\nv_and_b32 v%d, 2, v%d\nv_cmp_ne_u32 vcc, 0, v%d\ns_nop 1" % (T + 6, T + 6, s_t0, T + 7, L_DUM, v_l16, T + 8, v_lane, T + 8))
    A("v_cndmask_b32 v%d, v%d, v%d, vcc" % (v_owr, T + 7, T + 6))
    A("v_lshrrev_b32 v%d, 1, v%d\nv_lshl_add_u32 v%d, v%d, 4, v%d\nv_lshlrev_b32 v%d, 4, v%d" % (T + 3, T + 1, T + 3, T + 3, T, T + 3, T + 3))
    A("v_and_b32 v%d, 1, v%d\nv_lshl_add_u32 v%d, v%d, 3, v%d" % (T + 4, T + 1, v_i3st, T + 4, T + 3))
    A("v_lshlrev_b32 v%d, 4, v%d\nv_lshl_add_u32 v%d, v%d, 9, v%d" % (T + 3, T, v_i3l, T + 1, T + 3))
    A("v_lshlrev_b32 v%d, 5, v%d\nv_lshl_add_u32 v%d, v%d, 3, v%d" % (T + 3, T, T + 3, T + 1, T + 3))
    A("s_lshl_b32 s%d, s%d, 2\ns_add_u32 s%d, s%d, s%d\ns_lshl_b32 s%d, s%d, 9\ns_add_u32 s%d, s%d, %d" % (s_t0, s_b, s_t0, s_t0, s_w, s_t0, s_t0, s_t0, s_t0, L_F))
    A("v_add_u32 v%d, s%d, v%d\nv_xor_b32 v%d, 2048, v%d" % (v_fown, s_t0, T + 3, v_fpar, v_fown))
    A("s_lshl_b32 s%d, s%d, 1\ns_add_u32 s%d, s%d, s%d\nv_mov_b32 v%d, 0x%x\nv_writelane_b32 v%d, s%d, 0" % (s_t0, s_i, s_t0, s_t0, s_w, v_flag, OOB, v_flag, s_t0))
    A("s_cmp_lt_u32 s%d, 2\ns_cbranch_scc1 L_c_fl01\nv_lshlrev_b32 v%d, %d, v%d\nL_c_fl01:" % (s_w, v_flag, 2 if f16 else 0, v_lane))
    A("s_mul_i32 s%d, s%d, 24576\ns_add_u32 s%d, s%d, %d\nv_add_u32 v%d, s%d, v%d" % (s_t0, s_w, s_t0, s_t0, L_WO, v_word, s_t0, v_l16))
    A("v_mov_b32 v%d, 0x3f80\nv_mov_b32 v%d, 0x3f800000\nv_mov_b32 v%d, 0" % (T + 3, T + 4, T + 5))
    for q in range(4):
        A("v_cmp_eq_u32 vcc, %d, v%d\ns_nop 1\nv_cndmask_b32 v%d, v%d, v%d, vcc" % (2 * q, T + 2, v_sel + q, T + 5, T + 3))
        A("v_cmp_eq_u32 vcc, %d, v%d\ns_nop 1\nv_cndmask_b32 v%d, v%d, v%d, vcc" % (2 * q + 1, T + 2, v_sel + q, v_sel + q, T + 4))
    A("s_lshl_b32 s%d, s%d, 5\ns_add_u32 s%d, s%d, s%d" % (s_t0, s_x, s_t0, s_t0, s_i))
    A("s_lshl_b32 s%d, s%d, 2\ns_add_u32 s%d, s%d, s%d\ns_lshl_b32 s%d, s%d, 11\ns_xor_b32 s%d, s%d, 8192" % (s_t1, s_t0, s_t1, s_t1, s_w, o_qk_own, s_t1, o_qk_par, o_qk_own))
    A("s_lshr_b32 s%d, s%d, 1\ns_lshl_b32 s%d, s%d, 14\ns_lshl_b32 s%d, s%d, 12\ns_add_u32 s%d, s%d, s%d\ns_add_u32 s%d, s%d, %d" % (s_t1, s_t0, s_t1, s_t1, s_t2, s_b, s_t1, s_t1, s_t2, b_x, s_t1, PRB))
    A("s_lshl_b32 s%d, s%d, 7\ns_add_u32 s%d, s%d, %d" % (s_prog, s_t0, s_prog, s_prog, PROG))
    A("s_lshl_b32 s%d, s%d, 2\ns_add_u32 s%d, s%d, s%d\ns_lshl_b32 s%d, s%d, 6" % (s_t1, s_b, s_t1, s_t1, s_w, s_t1, s_t1))
    A("s_lshr_b32 s%d, s%d, 1\ns_add_u32 s%d, s%d, s%d\ns_lshl_b32 s%d, s%d, 9" % (s_t2, s_i, s_t1, s_t1, s_t2, s_t1, s_t1))
    A("s_lshl_b32 s%d, s%d, 18\ns_add_u32 s%d, s%d, %d\ns_add_u32 s%d, s%d, s%d" % (s_t2, s_x, s_t2, s_t2, R_I32, o_i3st, s_t1, s_t2))
    for u in range(1, 4): A("s_add_u32 s%d, s%d, %d" % (o_i3st + u, o_i3st, u * 8192))
    A("s_lshl_b32 s%d, s%d, 13\ns_add_u32 s%d, s%d, s%d\ns_lshl_b32 s%d, s%d, 8\ns_add_u32 s%d, s%d, s%d\ns_add_u32 s%d, s%d, 4096" % (s_t1, s_i, s_t3, s_t1, s_t2, s_t1, s_w, o_i3ld, s_t3, s_t1, o_i3ld2, o_i3ld))
    A("s_lshl_b32 s%d, s%d, 12\ns_add_u32 s%d, s%d, %d" % (s_tagl, s_x, s_tagl, s_tagl, PFL))
    for k in range(4): A("v_mov_b32 v%d, 0\nv_mov_b32 v%d, -1" % (64 + k, 68 + k))
    A("v_mov_b64 v[72:73], s[%d:%d]" % (s_sent, s_sent + 1))
    A("s_lshl_b32 s%d, s%d, 11\ns_add_u32 s%d, s%d, s%d" % (s_t1, s_w, s_t3, s_t3, s_t1))
    ninit = 0
    for sl in range(2):
        A("s_add_u32 s%d, s%d, %d\ns_add_u32 s%d, s%d, %d" % (s_t0, o_qk_own, RING + sl * SLOT, s_t1, s_t3, RING + sl * SLOT))
        for k in range(2):
            A("buffer_store_dwordx4 v[64:67], v%d, %s, s%d offen offset:%d\nbuffer_store_dwordx4 v[68:71], v%d, %s, s%d offen offset:%d" % (v_l16, WS, s_t0, k * 1024, v_l16, WS, s_t1, k * 1024))
        A("s_lshl_b32 s%d, s%d, 14\ns_add_u32 s%d, s%d, %d\nbuffer_store_dword v72, v%d, %s, s%d offen" % (s_t0, s_x, s_t0, s_t0, PBUF + sl * 262144, v_pst, WS, s_t0))
        A("s_lshr_b32 s%d, s%d, 2\ns_add_u32 s%d, s%d, %d\nbuffer_store_dwordx2 v[72:73], v%d, %s, s%d offen" % (s_t0, o_qk_own, s_t0, s_t0, PBUF + sl * 262144 + 131072, v_l8, WS, s_t0))
        ninit += 6
    A("s_lshr_b32 s%d, s%d, 1\ns_lshl_b32 s%d, s%d, 19\ns_and_b32 s%d, s%d, 1\ns_lshl_b32 s%d, s%d, 13\ns_add_u32 s%d, s%d, s%d\ns_add_u32 s%d, s%d, s%d" % (
        s_t0, s_w, s_t0, s_t0, s_t1, s_w, s_t1, s_t1, s_t0, s_t0, s_t1, s_t0, s_t0, b_x))
    A("buffer_store_dwordx4 v[68:71], v%d, %s, s%d offen sc1\nbuffer_store_byte v64, v%d, %s, s%d offen" % (v_l16, WS, s_t0, v_flag, WS, s_tagl))
    ninit += 2
    T = 40
    nxt_after = {0: [5], 1: [6], 2: [7], 3: [8], 4: [9], 5: [10], 6: [11], 8: [12], 9: [13], 12: [14], 13: [15]}
    for ci in range(16):
        extra[0] = ninit if ci < 5 else 0
        consume(ci)
        if ci == 5:
            A("s_cmp_lg_u32 s%d, 0\ns_cbranch_scc1 L_c_nog\nv_mov_b32 v64, 1\nv_mov_b32 v65, 64\ns_mov_b64 exec, 1\nbuffer_atomic_add v64, v65, s[16:19], 0 offen\ns_mov_b64 exec, -1\nL_c_nog:" % s_w)
        for n in nxt_after.get(ci, []):
            assert n == issued
            issue(n); issued += 1
        if ci == 11:
            for fr in range(12):
                for hf in range(2):
                    A("ds_write_b128 v%d, %s offset:%d" % (v_word, r4(V_WV + fr * 8 + 4 * hf), fr * 2048 + hf * 1024))
            for k in range(32): A("v_mov_b32 v%d, v%d" % (V_WO + k, V_WV + 96 + k))
            A("s_waitcnt lgkmcnt(0)")
    A("s_load_dwordx2 s[48:49], s[0:1], 8\ns_mov_b32 s%d, %d\nv_lshlrev_b32 v41, 7, v%d\nv_add_u32 v41, 64, v41\ns_mov_b64 exec, 3" % (s_spin, SPIN, v_lane))
    A("L_c_w:\nbuffer_load_dword v40, v41, s[16:19], 0 offen sc1\ns_sub_u32 s%d, s%d, 1\ns_cbranch_scc1 L_c_fail\ns_waitcnt vmcnt(0)" % (s_spin, s_spin))
    A("v_readlane_b32 s%d, v40, 0\nv_readlane_b32 s%d, v40, 1\ns_cmp_lt_u32 s%d, 65\ns_cbranch_scc1 L_c_w\ns_and_b32 s%d, s%d, 0xffff\ns_cmp_lt_u32 s%d, %d\ns_cbranch_scc1 L_c_w" % (
        s_t0, s_t3, s_t0, s_t0, s_t3, s_t0, NVOTE))
    A("s_mov_b64 exec, -1\ns_lshr_b32 s%d, s%d, 16\ns_cmp_ge_u32 s%d, %d\ns_cselect_b32 s%d, 8192, 0\ns_waitcnt lgkmcnt(0)" % (s_t3, s_t3, s_t3, NVOTE // 2, s_t3))
    srd(a, S_W, 48, 49, 16384)
    A("v_and_b32 v%d, 7, v%d\nv_lshlrev_b32 v%d, 11, v%d\nv_lshrrev_b32 v%d, 4, v%d\nv_lshl_add_u32 v%d, v%d, 3, v%d" % (T, v_lane, T, T, T + 1, v_lane, T, T + 1, T))
    A("s_lshl_b32 s%d, s%d, 6\ns_and_b32 s%d, s%d, 1\ns_lshl_b32 s%d, s%d, 5\ns_add_u32 s%d, s%d, s%d" % (s_t0, s_i, s_t1, s_w, s_t1, s_t1, s_t0, s_t0, s_t1))
    A("buffer_load_dwordx2 v[48:49], v%d, s[12:15], s%d offen" % (T, s_t0))
    A("s_add_u32 s%d, s%d, s%d\ns_add_u32 s%d, s%d, s%d" % (b_x, b_x, s_t3, s_prog, s_prog, s_t3))
    A("s_lshr_b32 s%d, s%d, 1\ns_lshl_b32 s%d, s%d, 7\ns_add_u32 s%d, s%d, %d" % (s_t0, s_h, s_cnt, s_t0, s_cnt, s_cnt, FLAGS + 128 * C_HP))
    A("s_lshl_b32 s%d, s%d, 14\ns_and_b32 s%d, s%d, 1\ns_lshl_b32 s%d, s%d, 12\ns_add_u32 s%d, s%d, s%d" % (s_t0, s_t0, s_t2, s_h, s_t2, s_t2, s_t0, s_t0, s_t2))
    A("s_lshl_b32 s%d, s%d, 18\ns_add_u32 s%d, s%d, s%d\ns_add_u32 s%d, s%d, %d" % (s_t2, s_w, s_t2, s_t2, s_t0, s_t2, s_t2, KX))
    A("s_lshl_b32 s%d, s%d, 14\ns_lshl_b32 s%d, s%d, 12\ns_add_u32 s%d, s%d, s%d\ns_add_u32 s%d, s%d, %d" % (s_t0, s_h, s_t1, s_w, b_kv, s_t0, s_t1, b_kv, b_kv, VT - 8192))
    A("s_cmp_lt_u32 s%d, 2\ns_cselect_b32 s%d, s%d, s%d\ns_add_u32 s%d, s%d, s%d\ns_add_u32 s%d, s%d, %d" % (s_w, b_kv, s_t2, b_kv, b_kv, b_kv, s_t3, m_kv, s_t1, L_KV1))
    A("s_lshl_b32 s%d, s%d, 2\ns_add_u32 s%d, s%d, s%d\ns_lshl_b32 s%d, s%d, 10" % (s_vt, s_b, s_vt, s_vt, s_w, s_vt, s_vt))
    A("s_lshr_b32 s%d, s%d, 1\ns_add_u32 s%d, s%d, s%d\ns_add_u32 s%d, s%d, s%d\ns_add_u32 s%d, s%d, %d" % (s_t1, s_vt, b_km, s_t0, s_t1, b_km, b_km, s_t3, b_km, b_km, KM))
    A("s_lshl_b32 s%d, s%d, 14\ns_add_u32 s%d, s%d, %d" % (b_p, s_x, b_p, b_p, PBUF))
    A("s_add_u32 s%d, s%d, %d\nv_add_u32 v%d, s%d, v%d" % (s_t0, s_vt, L_KV1, v_avx, s_t0, v_l16))
    def wait_kv(tag, off):
        A("v_mov_b32 v40, 0\nL_c_kw%s:" % tag)
        A("buffer_load_dword v41, v40, %s, s%d offen sc1" % (WS, off))
        A("s_sub_u32 s%d, s%d, 1\ns_cbranch_scc1 L_c_fail\ns_waitcnt vmcnt(0)" % (s_spin, s_spin))
        A("v_and_b32 v41, 15, v41\nv_cmp_ne_u32 vcc, 4, v41\ns_cbranch_vccnz L_c_kw%s" % tag)
    def signal(val):
        A("v_mov_b32 v40, 0\nv_mov_b32 v41, %s\ns_mov_b64 exec, 1\nbuffer_store_dword v41, v40, %s, s%d offen sc1\ns_mov_b64 exec, -1" % (val, WS, s_prog))
    wait_kv("0", s_cnt)
    def kv_ld(js, off=o_kv): return ["buffer_load_dwordx4 v%d, %s, s%d offen offset:%d sc1 lds" % (v_l16, WS, off, j * 1024) for j in js]
    kv_flip = "s_xor_b32 s%d, s%d, %d" % (m_kv, m_kv, L_KV0 ^ L_KV1)
    for x in ["s_mov_b32 m0, s%d" % m_kv, kv_flip] + kv_ld(range(4), b_kv): A(x)
    J1 = list(range(kvw[0])); J2 = list(range(kvw[0], 4))
    if nokv: J1 = J2 = []
    RD = 60
    for k in range(2): A("v_lshlrev_b32 v%d, 16, v%d\nv_and_b32 v%d, 0xffff0000, v%d" % (RD + 2 * k, 48 + k, RD + 2 * k + 1, 48 + k))
    A("s_mov_b32 s14, %d\ns_mov_b32 s15, 0x00020000\ns_mov_b32 s%d, 0\ns_mov_b32 s50, 0x3f803f80\ns_mov_b32 s51, 0x3f803f80" % (SLOT, s_step))
    def seg_off(dst, base, delta):
        A("s_add_u32 s%d, s%d, %d\ns_lshl_b32 s%d, s%d, 11\ns_and_b32 s%d, s%d, 8192\ns_xor_b32 s%d, s%d, s%d\ns_lshl_b32 s%d, s%d, 19\ns_add_u32 s%d, s%d, s%d" % (
            s_t0, s_step, delta, s_t1, s_t0, s_t1, s_t1, s_t1, s_t1, base, s_t0, s_t0, dst, s_t0, s_t1))
    def book():
        A("s_and_b32 s%d, s%d, 3\ns_lshl_b32 s%d, s%d, 18\ns_add_u32 s%d, s%d, s%d\ns_xor_b32 s%d, s%d, 524288" % (s_t0, s_step, s_t1, s_t0, o_pl, s_t1, b_p, o_pp, o_pl))
        A("s_lshr_b32 s%d, s%d, 2\ns_add_u32 s%d, s%d, s%d\ns_add_u32 s%d, s%d, %d\ns_xor_b32 s%d, s%d, 2048" % (o_qs, o_qk_own, o_qs, o_qs, s_t1, o_qs, o_qs, PBUF + 131072, o_qr, o_qs))
        A("s_lshl_b32 s%d, s%d, 10\ns_add_u32 s%d, s%d, s%d\ns_lshr_b32 s%d, s%d, 1\ns_add_u32 s%d, s%d, 1" % (s_t1, s_w, o_plf, o_pl, s_t1, s_en, s_t0, s_tag, s_step))
        A("s_and_b32 s%d, s%d, 1\ns_lshl_b32 s%d, s%d, 19\ns_add_u32 s%d, s%d, s%d" % (s_t0, s_step, s_t1, s_t0, o_xs, s_t1, b_x))
        A("s_lshl_b32 s%d, s%d, 20\ns_add_u32 s%d, s%d, %d\ns_add_u32 s12, s8, s%d\ns_addc_u32 s13, s9, 0" % (s_t0, s_t0, s_t0, s_t0, RING, s_t0))
        seg_off(o_km, b_km, 0); seg_off(o_kv, b_kv, 1)
    def prep():
        A("v_subrev_u32 v45, s%d, v%d" % (s_vt, v_avx))
        for k in range(8): A("ds_read_b128 %s, v45 offset:%d" % (r4(64 + 4 * k), k * 1024))
        A("v_mov_b32 v%d, s%d" % (M + 3, s_tag))
        for k in range(6): A(z(v_aq + 2 * k))
    ppoison = ["v_mov_b64 v[40:41], s[%d:%d]" % (s_sent, s_sent + 1), "buffer_store_dword v40, v%d, %s, s%d offen" % (v_pst, WS, o_pp),
               "s_xor_b32 s%d, s%d, 524288" % (s_t0, o_qs), "buffer_store_dwordx2 v[40:41], v%d, %s, s%d offen" % (v_l8, WS, s_t0)]
    book()
    A("s_waitcnt vmcnt(0)\ns_barrier")
    if stamps:
        A("s_memtime s[56:57]\ns_memrealtime s[58:59]")
        for k in range(10): A("s_mov_b32 s%d, 0" % (80 + k))
        for k in range(4): A("s_mov_b32 s%d, 0" % (96 + k))
        A("s_waitcnt lgkmcnt(0)")
    AR = 40; NR = 6
    def smf(m, f): A("v_smfmac_f32_16x16x64_bf16 %s, %s, %s, v%d" % (r4((v_aq, v_ak, v_av)[m]), r4(AR + 4 * (f % NR)), wtile(m, f % 16), v_idx))
    def qrd(lq, f): lq.op("ds_read_b128 %s, v%d offset:%d" % (r4(AR + 4 * (f % NR)), v_l16, L_PL + (f % 16) * 1024), ("A", f))
    def fetch_pre(): A("s_lshl_b32 m0, s%d, 10\ns_mov_b32 s%d, s%d" % (s_w, s_t1, o_plf))
    def fetch():
        for j in range(4):
            A("buffer_load_dwordx4 v%d, %s, s%d offen sc1 lds" % (v_l16, WS, s_t1))
            if j < 3: A("s_add_u32 m0, m0, 4096\ns_add_u32 s%d, s%d, 4096" % (s_t1, s_t1))
    A("s_cmp_ge_u32 s%d, 2\ns_cbranch_scc1 L_c_idle3" % s_w)
    prep()
    for x in ppoison: A(x)
    HM = "s[90:91]"
    A("s_mov_b32 s90, 0xff00ff00\ns_mov_b32 s91, 0xff00ff00")
    A("v_cndmask_b32 v20, v60, v62, %s\nv_cndmask_b32 v21, v61, v63, %s\nv_cvt_pk_bf16_f32 v46, v20, v21" % (HM, HM))
    A("L_c_xok:")
    A("buffer_store_dword v46, v%d, %s, s%d offen" % (v_pst, WS, o_pl))
    A("buffer_store_byte v%d, v%d, %s, s%d offen" % (M + 3, v_flag, WS, s_tagl))
    stamp(1)
    A("L_c_b0:")
    if pbar: A("s_barrier")
    if stamps == 3:
        A("s_waitcnt lgkmcnt(0)")
        A("s_mul_i32 s%d, s%d, 64\ns_add_u32 s%d, s%d, %d\ns_cmp_lg_u32 s%d, %d\ns_cselect_b32 s%d, %d, s%d\nv_mov_b32 v60, s%d" % (
            s_t0, s_step, s_t0, s_t0, L_TR, s_w, tw, s_t0, L_DUM, s_t0, s_t0))
        for k in range(14):
            A("v_mov_b32 v61, s%d\nds_write_b32 v60, v61 offset:%d" % (60 + 2 * k if k < 10 else 86 + k, 4 * k))
    fetch_pre()
    A("L_c_b0x:")
    A("s_barrier")
    if f16: A("s_mov_b64 exec, -1")
    stamp(9)
    if stamps == 3: A("s_memrealtime s[64:65]")
    fetch()
    A("s_mov_b32 m0, s%d\ns_mov_b32 s%d, s%d\ns_waitcnt vmcnt(3) lgkmcnt(0)" % (m_kv, s_e, s_en))
    A("L_c_b1:")
    A("s_barrier")
    stamp(0)
    lq = LQ(a)
    for f in range(4): qrd(lq, f)
    slow = kv_ld(J1); nj = 0; rdn = 4
    for f in range(11):
        lq.need(("A", f)); smf(0, f)
        while rdn <= min(f + NR - 1, 15) and f > 0:
            if rdn % 4 == 0: A("s_waitcnt vmcnt(%d)\ns_barrier" % (3 - rdn // 4 + nj))
            qrd(lq, rdn); rdn += 1
        smf(1, f)
        if slow and f in spos:
            A(slow.pop(0)); nj += 1
    assert not slow
    for f in range(11, 16):
        lq.need(("A", f)); smf(0, f)
    smf(1, 11); qrd(lq, 16); nop(a, 1); smf(1, 12); qrd(lq, 17); nop(a, 1); smf(1, 13); qrd(lq, 18)
    A("v_permlane32_swap_b32 v28, v30")
    smf(1, 14)
    A("v_permlane32_swap_b32 v29, v31")
    smf(1, 15)
    A("v_add_f32 v28, v28, v30\nv_add_f32 v29, v29, v31")
    lq.need(("A", 16)); smf(2, 16)
    A("v_cmp_u_f32 vcc, v28, v29\nv_cvt_pk_bf16_f32 v%d, v28, v29" % (KMP + 1))
    qrd(lq, 19); qrd(lq, 20)
    A("v_permlane32_swap_b32 v32, v34\nv_permlane32_swap_b32 v33, v35")
    A("v_pk_add_f32 v[32:33], v[32:33], v[34:35]\nv_cvt_pk_bf16_f32 v%d, v32, v33" % KMP)
    A("s_cbranch_vccnz L_c_nanq\nL_c_qok:")
    A("buffer_store_dwordx2 %s, v%d, %s, s%d offen" % (r2(KMP), v_l8, WS, o_qs))
    stamp(3)
    lq.op("ds_write_b64 v%d, %s" % (v_fown, r2(KMP)))
    MK = "s[4:5]"
    chk = lambda r: "v_cmp_eq_u32 vcc, s%d, v%d\nv_cmp_eq_u32 %s, s%d, v%d\ns_or_b64 vcc, vcc, %s" % (s_sent, r, MK, s_sent, r + 1, MK)
    ldq = lambda r: "buffer_load_dwordx2 %s, v%d, %s, s%d offen sc1" % (r2(r), v_l8, WS, o_qr)
    qrd(lq, 21)
    for f in range(1, 16):
        lq.need(("A", 16 + f)); smf(2, 16 + f)
        if f + NR - 1 < 16: qrd(lq, 16 + f + NR - 1)
        if f == 2: A("v_mov_b64 %s, s[%d:%d]" % (r2(M), s_sent, s_sent + 1))
        if f in pq: A(ldq(M if pq.index(f) else 28))
    stamp("ve")
    A("s_waitcnt vmcnt(%d)\nds_write_b64 v%d, v[28:29]\n" % (len(pq) - 1, v_fpar) + chk(28) + "\ns_cbranch_vccnz L_c_qretry")
    A("L_c_qgot:")
    lq.all()
    A("s_barrier")
    stamp(4)
    lq = LQ(a)
    for kp in range(4):
        for hf in range(2): lq.op("ds_read_b64_tr_b16 %s, v%d offset:%d" % (r2(40 + 4 * kp + 2 * hf), v_l8, L_F + kp * 1024 + hf * 512), ("F", kp))
    Tm, T0, T1 = 28, 32, 56
    side = {(0, 1): ["v_permlane32_swap_b32 v36, v38"], (0, 2): ["v_permlane32_swap_b32 v37, v39"],
            (1, 0): ["v_add_f32 v36, v36, v38"], (1, 1): ["v_add_f32 v37, v37, v39"], (1, 2): ["v_cvt_pk_bf16_f32 v%d, v36, v37" % (M + 2)],
            (2, 0): ["buffer_store_dwordx2 %s, v%d, %s, s%d offen offset:1024" % (r2(M + 2), v_l8, CUR, o_qk_own)],
            (2, 1): ["v_xor_b32 v60, 4096, v%d" % v_avx, "s_cmp_eq_u32 s%d, %d" % (s_step, nsteps - 1)], (2, 2): ["v_mov_b32 v%d, v%d" % (KMP + 1, M + 2)],
            (3, 0): [("ds_read_b128 v[40:43], v%d offset:8192" % v_avx, "vx")], (3, 1): [("ds_read_b128 v[44:47], v60 offset:8192", "vx")]}
    for kp in range(4):
        lq.need(("F", kp))
        F = r4(40 + 4 * kp)
        for j, (D, Aop) in enumerate(((Tm, F), (T0, r4(64 + 4 * kp)), (T1, r4(80 + 4 * kp)))):
            A("v_mfma_f32_16x16x32_bf16 %s, %s, %s, %s" % (r4(D), Aop, F, "0" if kp == 0 else r4(D)))
            for x in side.get((kp, j), []):
                if isinstance(x, tuple): lq.op(*x)
                else: A(x)
    BUF = [64, 72, 80, 88, 56]
    def word(fr, buf):
        for hf in range(2): lq.op("ds_read_b128 %s, v%d offset:%d" % (r4(BUF[buf] + 4 * hf), v_word, fr * 2048 + hf * 1024), ("W", fr))
    stamp("se")
    A("s_cbranch_scc1 L_c_last")
    A("s_nop 0\nv_mov_b64 v[20:21], s[50:51]\nv_mov_b64 v[22:23], s[50:51]\nv_mov_b64 v[36:37], %s\nv_mov_b32 v53, 0" % r2(M + 2))
    A("v_max3_f32 v61, v28, v29, v32\nv_max3_f32 v62, v33, v34, v35")
    A("v_max3_f32 v61, v56, v57, v61\nv_max3_f32 v62, v58, v59, v62\nv_max_f32 v61, v61, v62")
    A("v_mov_b32 v62, v61")
    word(0, 0)
    A("v_permlane32_swap_b32 v61, v62\nv_max_f32 v61, v61, v62")
    A("v_mov_b32 v62, v61")
    word(1, 1)
    A("v_permlane16_swap_b32 v61, v62\nv_max_f32 v61, v61, v62")
    A("v_mul_f32 v61, s%d, v61" % s_scale)
    stamp("mx")
    ldv = lambda r: "buffer_load_dwordx2 %s, v%d, %s, s%d offen offset:1024 sc1" % (r2(r), v_l8, CUR, o_qk_par)
    if vpos == 0: A(ldv(38))
    regs = [32, 33, 34, 35, 56, 57, 58, 59]
    for r in regs: A("v_fma_f32 v%d, v%d, s%d, -v61" % (r, r, s_scale))
    if vpos == 1: A(ldv(38))
    for r in regs: A("v_exp_f32 v%d, v%d" % (r, r))
    A("v_fma_f32 v28, v28, s%d, -v61" % s_scale)
    A("v_cvt_pk_bf16_f32 v48, v32, v33\nv_cvt_pk_bf16_f32 v49, v34, v35\nv_cvt_pk_bf16_f32 v50, v56, v57\nv_cvt_pk_bf16_f32 v51, v58, v59")
    A("v_fma_f32 v29, v29, s%d, -v61" % s_scale)
    lq.need("vx")
    LS, O0, O1 = 60, 56, 32
    stamp(5)
    A("v_mfma_f32_16x16x32_bf16 %s, %s, v[48:51], 0" % (r4(LS), r4(v_ones)))
    A("v_exp_f32 v28, v28")
    A("v_mfma_f32_16x16x32_bf16 %s, v[40:43], v[48:51], 0" % r4(O0))
    A("v_exp_f32 v29, v29")
    if v2: A(ldv(30))
    A("v_mfma_f32_16x16x32_bf16 %s, v[44:47], v[48:51], 0" % r4(O1))
    A("v_mov_b64 v[54:55], 0\nv_cvt_pk_bf16_f32 v52, v28, v29")
    A("s_waitcnt vmcnt(%d)\nv_cmp_ne_u32 vcc, s%d, v39" % (1 if v2 else 0, s_tag))
    A("v_mfma_f32_16x16x32_bf16 %s, %s, v[52:55], %s" % (r4(LS), r4(v_ones), r4(LS)))
    A("s_cbranch_vccnz L_c_vretry\nL_c_vok:")
    A("v_mfma_f32_16x16x32_bf16 %s, v[36:39], v[52:55], %s" % (r4(O0), r4(O0)))
    A("v_mfma_f32_16x16x32_bf16 %s, v[38:41], v[52:55], %s" % (r4(O1), r4(O1)))
    stamp("pv")
    ACC = [20, 32, 28, 36]
    word(2, 2)
    A(z(28) + "\n" + z(22) + "\nv_xor_b32 v%d, %d, v%d" % (v_avx, L_KV0 ^ L_KV1, v_avx))
    A("v_rcp_f32 v48, v%d" % LS)
    A(z(20))
    A("v_pk_mul_f32 v[56:57], v[56:57], v[48:49] op_sel_hi:[1,0]\nv_pk_mul_f32 v[58:59], v[58:59], v[48:49] op_sel_hi:[1,0]")
    A("v_pk_mul_f32 v[32:33], v[32:33], v[48:49] op_sel_hi:[1,0]\nv_pk_mul_f32 v[34:35], v[34:35], v[48:49] op_sel_hi:[1,0]")
    A("v_cvt_pk_bf16_f32 v52, v56, v57\nv_cvt_pk_bf16_f32 v53, v58, v59\nv_cvt_pk_bf16_f32 v54, v32, v33\nv_cvt_pk_bf16_f32 v55, v34, v35")
    lq.op("ds_write_b128 v%d, v[52:55]" % v_owr, "ow")
    stamp("ow")
    word(3, 3)
    word(4, 4)
    km_store = "buffer_store_dwordx2 %s, v%d, %s, s%d offen sc1" % (r2(KMP), v_l8, WS, o_km)
    nw2 = 0
    if not nokm:
        A(km_store); nw2 += 1
    A("\n".join(z(r) for r in (32, 34, 38, 36)))
    lq.need("ow")
    A("s_barrier")
    stamp(6)
    for k in range(4): lq.op("ds_read_b128 %s, v%d offset:%d" % (r4(40 + 4 * k), v_ord, k * 512), ("o", k))
    for x in kv_ld(J2): A(x)
    nw2 += len(J2)
    A(kv_flip + "\ns_add_u32 s%d, s%d, 1" % (s_step, s_step))
    def post(u):
        t = ACC[u]
        return ["v_cvt_pk_bf16_f32 v%d, v%d, v%d" % (t, t, t + 1), "v_cvt_pk_bf16_f32 v%d, v%d, v%d" % (t + 1, t + 2, t + 3),
                "v_and_or_b32 v%d, v%d, -2, s%d" % (t, t, s_e),
                "buffer_store_dwordx2 %s, v%d, %s, s%d offen" % (r2(t), v_i3st, CUR, o_i3st + u)]
    where = {k: k for k in range(5)}
    nxt = [5]
    def wmf(fr):
        u, kp = fr >> 2, fr & 3
        lq.need(("o", kp))
        if fr < 12: lq.need(("W", fr))
        B = r8(V_WO + 8 * (fr - 12)) if fr >= 12 else r8(BUF[where[fr]])
        A("v_smfmac_f32_16x16x64_bf16 %s, %s, %s, v%d" % (r4(ACC[u]), r4(40 + 4 * kp), B, v_idx))
        if fr < 12 and nxt[0] < 12:
            where[nxt[0]] = where[fr]; word(nxt[0], where[fr]); nxt[0] += 1
    for fr in (0, 1, 2, 3, 4, 12, 13, 14, 15): wmf(fr)
    A("s_waitcnt vmcnt(%d)\n" % nw2 + z(30))
    for x in post(0): A(x)
    wmf(5); wmf(6)
    for x in post(3): A(x)
    for fr in (7, 8, 9, 10, 11): wmf(fr)
    A("s_cmp_ge_u32 s%d, 2" % s_w)
    for x in post(1): A(x)
    nop(a, 3)
    for x in post(2): A(x)
    stamp(7)
    A("s_cbranch_scc1 L_c_idle")
    SETS = [64, 80]
    def rloads(st):
        for k in range(4): A("buffer_load_dwordx4 %s, v%d, %s, s%d offen offset:%d sc1" % (r4(SETS[st] + 4 * k), v_i3l, CUR, o_i3ld if k < 2 else o_i3ld2, (k & 1) * 2048))
    def rproc(st):
        for k in range(4):
            d = SETS[st] + 4 * k
            A("s_waitcnt vmcnt(%d)" % (7 - k))
            A("v_mfma_f32_16x16x32_bf16 %s, %s, %s, %s" % (r4(RD), r4(d), r4(v_sel), "0" if k == 0 else r4(RD)))
            A("v_bitop3_b32 v%d, v%d, v%d, s%d bitop3:0x7e" % (40 + k, d, d + 2, s_e))
            if k == 2: A("v_or3_b32 v40, v40, v41, v42")
        A("v_or_b32 v40, v40, v43\nv_and_b32 v40, 1, v40\nv_cmp_ne_u32 vcc, 0, v40")
        nop(a, 3)
    def spaced(work, gap):
        for _ in range(gap):
            if not work: break
            A(work.pop(0)); gap -= 1
        nop(a, gap)
    def grab(f):
        n0 = len(a.lines); f(); w = [x.strip() for x in a.lines[n0:]]; del a.lines[n0:]
        return w
    XP = [58, 56, 54, 52][:len(xg)]; NXP = len(XP)
    work = [z(r) for r in XP] + ["s_xor_b32 s%d, s%d, 262144" % (o_xr, o_xs)]
    spaced(work, rg[0]); rloads(0); stamp("ri"); spaced(work, rg[1]); rloads(1)
    rproc(0)
    A("s_cbranch_vccnz L_c_r1")
    A("L_c_rok:")
    A("v_cndmask_b32 v20, v60, v62, %s\nv_cndmask_b32 v21, v61, v63, %s" % (HM, HM))
    if x16:
        A("v_cvt_pk_bf16_f32 v22, v20, v21\nv_and_or_b32 v22, v22, -2, s%d\nbuffer_store_dword v22, v%d, %s, s%d offen sc1" % (s_e, v_xo, WS, o_xs))
    else:
        for k in range(2): A("v_and_or_b32 v%d, v%d, -2, s%d" % (20 + k, 20 + k, s_e))
        A("buffer_store_dwordx2 v[20:21], v%d, %s, s%d offen sc1" % (v_xo, WS, o_xs))
    stamp(8)
    xat = lambda r: "buffer_atomic_add_x2 %s, v%d, %s, s%d offen sc0" % (r2(XP[r]), v_xo, WS, o_xr)
    if x16: xat = lambda r: "buffer_atomic_add v%d, v%d, %s, s%d offen sc0" % (XP[r], v_xo, WS, o_xr)
    work = grab(book)
    order = []
    def spaced2(gap):
        for _ in range(gap):
            if not work: break
            x = work.pop(0)
            if x == "BAR": x = "s_waitcnt vmcnt(%d)\ns_barrier" % (len(order) + 1)
            A(x); gap -= 1
            if x.startswith("buffer_"): order.append("s")
        nop(a, gap)
    work += ["BAR"] + grab(prep) + ppoison
    for r in range(NXP):
        spaced2(xg[r]); A(xat(r)); order.append(r)
    spaced2(len(work))
    stamp("xw")
    def xuse(r):
        x = XP[r]
        k = order.index(r)
        A("s_waitcnt vmcnt(%d)" % (len(order) - 1 - k)); del order[:k + 1]
        if x16:
            A("v_and_b32 v42, 1, v%d\nv_cmp_ne_u32 vcc, s%d, v42\nv_and_b32 v%d, 0xffff0000, v%d\nv_lshlrev_b32 v%d, 16, v%d" % (x, s_e, x + 1, x, x, x))
        else: A("v_bitop3_b32 v42, v%d, v%d, s%d bitop3:0x7e\nv_and_b32 v42, 1, v42\nv_cmp_ne_u32 vcc, 0, v42" % (x, x + 1, s_e))
        A("v_pk_add_f32 v[48:49], v[20:21], %s\nv_cvt_pk_bf16_f32 v46, v48, v49\ns_cbranch_vccz L_c_xok" % r2(x))
    for r in range(NXP):
        xuse(r)
        cnt(2)
        if r >= xre:
            A(z(XP[r]) + "\n" + xat(r)); order.append(r)
    A("L_c_xl:")
    order[:] = [o for o in order if o != "s"]
    for r in range(xre, NXP):
        xuse(r)
        cnt(2)
        A(z(XP[r]) + "\n" + xat(r)); order.append(r)
    A("s_sub_u32 s%d, s%d, 1\ns_cbranch_scc0 L_c_xl\ns_branch L_c_fail" % (s_spin, s_spin))
    A("L_c_r1:")
    for st in range(2):
        cnt(0)
        rloads(st)
        rproc(st ^ 1)
        A("s_cbranch_vccz L_c_rok")
    A("s_sub_u32 s%d, s%d, 1\ns_cbranch_scc0 L_c_r1\ns_branch L_c_fail" % (s_spin, s_spin))
    A("L_c_idle:")
    book()
    A("s_waitcnt vmcnt(0)\ns_barrier")
    A("s_cmp_lg_u32 s%d, 3\ns_cbranch_scc1 L_c_idle3" % s_w)
    signal("s%d" % s_step)
    A("s_add_u32 s%d, s%d, 1\ns_and_b32 s%d, s%d, 7\ns_cbranch_scc1 L_c_idle3\ns_cmp_ge_u32 s%d, 64\ns_cbranch_scc1 L_c_idle3" % (s_t1, s_step, s_t0, s_t1, s_t1))
    A("s_lshl_b32 s%d, s%d, 8\ns_add_u32 s%d, s%d, s%d" % (s_t0, s_t1, s_t0, s_t0, s_cnt))
    wait_kv("n", s_t0)
    A("L_c_idle3:")
    prep()
    for x in (ppoison[0], ppoison[2], ppoison[3]): A(x)
    A("s_cmp_lg_u32 s%d, 2\ns_cbranch_scc1 L_c_b0" % s_w)
    fetch_pre()
    A("v_mov_b32 v46, 0")
    if f16: A("s_mul_i32 s%d, s%d, 0x01010101\ns_mov_b64 exec, 0xffff" % (s_t2, s_tag))
    if pbar: A("s_barrier")
    A("L_c_fp:")
    A("buffer_load_%s v46, v%d, %s, s%d offen sc1" % ("dword" if f16 else "ubyte", v_flag, WS, s_tagl))
    A("s_waitcnt vmcnt(%d)\nv_cmp_ne_u32 vcc, s%d, v46\ns_cbranch_vccz L_c_b0x" % (fdepth, s_t2 if f16 else s_tag))
    cnt(1)
    A("s_sub_u32 s%d, s%d, 1\ns_cbranch_scc0 L_c_fp\ns_branch L_c_fail" % (s_spin, s_spin))
    A("L_c_qretry:")
    A(ldq(M) + "\ns_waitcnt vmcnt(24)\n" + chk(M) + "\ns_cbranch_vccz L_c_qr2")
    cnt(3)
    A("s_sub_u32 s%d, s%d, 1\ns_cbranch_scc0 L_c_qretry\ns_branch L_c_fail" % (s_spin, s_spin))
    A("L_c_qr2:\nds_write_b64 v%d, %s\ns_branch L_c_qgot" % (v_fpar, r2(M)))
    A("L_c_vretry:")
    if v2:
        cnt(3)
        A("s_waitcnt vmcnt(0)\nv_mov_b64 v[38:39], v[30:31]\nv_cmp_ne_u32 vcc, s%d, v31\ns_cbranch_vccz L_c_vok" % s_tag)
    A("L_c_vr2:")
    A(ldv(38))
    cnt(3)
    A("s_sub_u32 s%d, s%d, 1\ns_cbranch_scc1 L_c_fail\ns_waitcnt vmcnt(0)\nv_cmp_ne_u32 vcc, s%d, v39\ns_cbranch_vccnz L_c_vr2\ns_branch L_c_vok" % (s_spin, s_spin, s_tag))
    A("L_c_nanq:")
    if stamps: A("s_add_u32 s97, s97, 0x10000")
    A("v_mov_b32 v34, -1")
    for f in range(16):
        A("ds_read_b128 v[20:23], v%d offset:%d\ns_waitcnt lgkmcnt(0)" % (v_l16, L_PL + f * 1024))
        for k in range(4): A("v_xor_b32 v%d, s%d, v%d" % (20 + k, s_sent, 20 + k))
        A("v_min3_u32 v34, v20, v21, v34\nv_min3_u32 v34, v22, v23, v34")
    A("v_cmp_eq_u32 vcc, 0, v34\ns_cbranch_vccz L_c_qok")
    A("s_sub_u32 s%d, s%d, 1\ns_cbranch_scc1 L_c_fail" % (s_spin, s_spin))
    for k in range(6): A(z(v_aq + 2 * k))
    fetch_pre()
    A("s_barrier")
    fetch()
    A("s_mov_b32 m0, s%d\ns_waitcnt vmcnt(0)\ns_branch L_c_b1" % m_kv)
    A("L_c_last:")
    A(km_store)
    A("s_waitcnt vmcnt(0)\ns_barrier\ns_cmp_lg_u32 s%d, 0\ns_cbranch_scc1 L_c_done" % s_w)
    signal("64")
    A("s_branch L_c_done")
    A("L_c_fail:\ns_mov_b64 exec, -1")
    A("v_mov_b32 v40, 1\nv_mov_b32 v41, 96\nbuffer_atomic_add v40, v41, s[16:19], 0 offen")
    A("L_c_done:")
    A("s_waitcnt vmcnt(0)")
    if stamps:
        A("s_memtime s[60:61]\ns_memrealtime s[62:63]\ns_waitcnt lgkmcnt(0)\ns_sub_u32 s60, s60, s56\ns_sub_u32 s61, s62, s58")
        A("s_sub_u32 s62, s56, s94")
        A("s_lshl_b32 s%d, s%d, 5\ns_add_u32 s%d, s%d, s%d\ns_lshl_b32 s%d, s%d, 2\ns_add_u32 s%d, s%d, s%d\ns_lshl_b32 s%d, s%d, 7\ns_add_u32 s%d, s%d, %d" % (
            s_t0, s_x, s_t0, s_t0, s_i, s_t0, s_t0, s_t0, s_t0, s_w, s_t0, s_t0, s_t0, s_t0, FLAGS + MB))
        for k, sr in enumerate([60, 61, 62] + list(range(80, 90)) + [96, 97, 98, 99]): A("v_mov_b32 v%d, s%d" % (40 + k, sr))
        if stamps == 3:
            A("s_cmp_lg_u32 s%d, %d\ns_cbranch_scc1 L_c_notr" % (s_w, tw))
            A("s_lshl_b32 s%d, s%d, 5\ns_add_u32 s%d, s%d, s%d\ns_lshl_b32 s%d, s%d, 12\ns_add_u32 s%d, s%d, %d" % (s_t1, s_x, s_t1, s_t1, s_i, s_t1, s_t1, s_t1, s_t1, FLAGS + 2 * MB))
            A("v_add_u32 v64, %d, v%d" % (L_TR, v_l16))
            for k in range(4):
                A("ds_read_b128 v[68:71], v64 offset:%d\ns_waitcnt lgkmcnt(0)\nbuffer_store_dwordx4 v[68:71], v%d, %s, s%d offen offset:%d\ns_waitcnt vmcnt(0)" % (k * 1024, v_l16, WS, s_t1, k * 1024))
            A("L_c_notr:")
            A("v_mov_b32 v43, s56\nv_mov_b32 v44, s58")
        A("v_mov_b32 v60, 0\ns_mov_b64 exec, 1")
        for k in range(5): A("buffer_store_dwordx4 %s, v60, %s, s%d offen offset:%d" % (r4(40 + 4 * k), WS, s_t0, 16 * k))
        A("s_waitcnt vmcnt(0)")

def emit_role_prologue(a, nwg=256, early=None):
    a("""
    s_cmp_ge_u32 s2, {n}
    s_cbranch_scc1 L_end
    s_load_dwordx4 s[4:7], s[0:1], 96
    s_memtime s[94:95]
    s_getreg_b32 s{xcc}, hwreg(HW_REG_XCC_ID)
    s_and_b32 s{xcc}, s{xcc}, 15
    v_and_b32 v1, 63, v0
    v_lshrrev_b32 v2, 6, v0
    s_waitcnt lgkmcnt(0)
    """.format(n=nwg, xcc=s_xcc))
    srd(a, S_WS, 6, 7, WS_BYTES)
    srd(a, S_DBG, 4, 5, 256)
    if early: early()
    a("""
    v_readfirstlane_b32 s{w}, v2
    v_mov_b32 v3, 1
    s_lshl_b32 s{i}, s{xcc}, 2
    v_mov_b32 v4, s{i}
    v_mov_b32 v5, {misc}
    v_cmp_eq_u32 vcc, 0, v0
    s_and_saveexec_b64 s[48:49], vcc
    s_cbranch_execz L_skipt
    buffer_atomic_add v3, v4, s[16:19], 0 offen sc0
    s_waitcnt vmcnt(0)
    ds_write_b32 v5, v3
    s_waitcnt lgkmcnt(0)
    L_skipt:
    s_mov_b64 exec, s[48:49]
    s_barrier
    ds_read_b32 v3, v5
    s_waitcnt lgkmcnt(0)
    v_readfirstlane_b32 s{i}, v3
    s_barrier
    """.format(w=s_w, i=s_i, xcc=s_xcc, misc=L_MISC))
```

```python
from tasks import *
SEGC = FLAGS + 32768
PROG = FLAGS + 65536
L_BC = 158720 + 16
s_n, s_pre, s_wait, s_tgt, s_sig, s_xseg, s_oseg, s_xcur, s_m0, s_spin = 43, 44, 41, 36, 35, 45, 46, 47, 40, 62

def poll(a, tag, off, tgt, sleep=2, vaddr=None, atomic=False):
    if vaddr is None: a("v_mov_b32 v4, 0"); vaddr = 4
    if atomic:
        a("s_mov_b64 exec, 3\nL_%s:\nv_mov_b32 v5, 0\nbuffer_atomic_add v5, v%d, %s, s%d offen sc0\ns_sub_u32 s%d, s%d, 1\ns_cbranch_scc1 L_w_fail\ns_waitcnt vmcnt(0)" % (tag, vaddr, WS, off, s_spin, s_spin))
        a("v_cmp_gt_u32 vcc, s%d, v5\ns_cbranch_vccz L_%s_ok\ns_sleep %d\ns_branch L_%s\nL_%s_ok:\ns_mov_b64 exec, -1" % (tgt, tag, sleep, tag, tag))
        return
    a("L_%s:\nbuffer_load_dword v5, v%d, %s, s%d offen sc1\ns_sub_u32 s%d, s%d, 1\ns_cbranch_scc1 L_w_fail\ns_waitcnt vmcnt(0)" % (tag, vaddr, WS, off, s_spin, s_spin))
    a("v_cmp_gt_u32 vcc, s%d, v5\ns_cbranch_vccz L_%s_ok\ns_sleep %d\ns_branch L_%s\nL_%s_ok:" % (tgt, tag, sleep, tag, tag))
def signal(a, off):
    a("s_mov_b64 exec, 1\nv_mov_b32 v4, 0\nv_mov_b32 v5, 1\nbuffer_atomic_add v5, v4, %s, s%d offen\ns_mov_b64 exec, -1" % (WS, off))

def unpack_p3(a):
    a("s_and_b32 s%d, s55, 1023\ns_add_u32 s%d, s%d, %d\ns_bfe_u32 s%d, s55, 0xa000a\ns_add_u32 s%d, s%d, %d\ns_lshr_b32 s%d, s55, 20" % (
        s_wait, s_wait, s_wait, SEGC, s_sig, s_sig, s_sig, SEGC, s_tgt))
def stampseg(a, slot, trace):
    if not trace: return
    L = a.label("L_tr")
    a("s_cmp_lg_u32 s%d, 0\ns_cbranch_scc1 %s\ns_memrealtime s[92:93]\ns_lshl_b32 s96, s20, 5\ns_add_u32 s96, s96, s22\ns_lshl_b32 s96, s96, 10\ns_lshl_b32 s97, s%d, 4\ns_add_u32 s96, s96, s97" % (s_w, L, s_n))
    a("s_add_u32 s96, s96, %d\ns_waitcnt lgkmcnt(0)\nv_mov_b32 v4, 0\nv_mov_b32 v5, s92\nbuffer_store_dword v5, v4, %s, s96 offen\n%s:" % (FLAGS + 6 * MB + 4 * slot, WS, L))

def serv_rows(a, name, body, trace=0):
    a("L_%s:" % name)
    unpack_p3(a)
    a("s_mov_b32 s37, 4")
    a("L_%s_l:" % name)
    a("s_lshr_b32 s%d, s52, 1\ns_lshl_b32 s38, s%d, 9\ns_add_u32 s39, s38, s%d" % (s_n, s_n, s_wait))
    a("s_cmp_lg_u32 s%d, 0\ns_cbranch_scc1 L_%s_w" % (s_w, name))
    poll(a, name + "_p", 39, s_tgt)
    a("L_%s_w:\ns_barrier" % name)
    stampseg(a, 0, trace)
    body(a, 52, 37)
    a("s_waitcnt vmcnt(0)\ns_barrier\ns_add_u32 s39, s38, s%d\ns_cmp_lg_u32 s%d, 0\ns_cbranch_scc1 L_%s_s" % (s_sig, s_w, name))
    signal(a, 39)
    a("L_%s_s:" % name)
    stampseg(a, 1, trace)
    a("s_add_u32 s52, s52, s53\ns_cmp_lt_u32 s52, 128\ns_cbranch_scc1 L_%s_l\ns_branch L_w_done" % name)

def serv_att(a, c_hp, trace=0):
    a("L_satt:")
    unpack_p3(a)
    att_setup(a)
    a("s_lshl_b32 s44, s54, 2\ns_add_u32 s44, s44, s%d\ns_mov_b32 s%d, s52" % (s_w, s_n))
    a("v_and_b32 v16, 1, v%d\nv_lshlrev_b32 v16, 7, v16\ns_lshl_b32 s45, s44, 8\ns_add_u32 s45, s45, %d\ns_add_u32 s45, s45, s%d\ns_mov_b32 s37, 0x4004" % (v_lane, PROG, s_near))
    a("L_satt_l:")
    a("s_lshr_b32 s38, s%d, 3\ns_lshl_b32 s38, s38, 4\ns_lshr_b32 s39, s44, 1\ns_add_u32 s38, s38, s39\ns_lshl_b32 s38, s38, 7\ns_add_u32 s38, s38, %d" % (s_n, FLAGS + 128 * c_hp))
    poll(a, "satt_q", 38, 37, sleep=8)
    def mid():
        a("s_add_u32 s39, s%d, 1" % s_n)
        poll(a, "satt_c", 45, 39, sleep=1, vaddr=16, atomic=True)
        stampseg(a, 0, trace)
    task_att(a, s_n, 44, mid)
    a("s_waitcnt vmcnt(0)\ns_barrier\ns_lshl_b32 s38, s%d, 9\ns_add_u32 s39, s38, s%d\ns_cmp_lg_u32 s%d, 0\ns_cbranch_scc1 L_satt_s" % (s_n, s_sig, s_w))
    signal(a, 39)
    a("L_satt_s:")
    stampseg(a, 1, trace)
    a("s_add_u32 s%d, s%d, s53\ns_cmp_lt_u32 s%d, 64\ns_cbranch_scc1 L_satt_l\ns_branch L_w_done" % (s_n, s_n, s_n))

class WS_:
    def __init__(s, name, nk, x64, gu):
        s.name, s.nk, s.x64, s.gu = name, nk, x64, gu
        s.nc = nk // 4
    def emit(s, a, trace=0):
        n, nk, nc = s.name, s.nk, s.nc
        v_ws, v_r0, v_r1, v_xs, v_xr, v_fl, v_l8 = 8, 9, 10, 11, 12, 13, 14
        XF, AC, TM_ = 16, 64, 80
        a("L_%s:" % n)
        unpack_p3(a)
        a("v_lshrrev_b32 v4, 3, v%d\nv_mul_lo_u32 v4, v4, s%d\nv_and_b32 v5, 7, v%d\nv_lshl_add_u32 v%d, v5, 4, v4" % (v_lane, s_ldw, v_lane, v_ws))
        a("s_and_b32 s%d, s%d, 1\ns_lshl_b32 s%d, s%d, 6\ns_mul_i32 s%d, s%d, s%d\ns_add_u32 s%d, s%d, s%d" % (t2, s_w, t0, t2, t0, t0, s_ldw, s_woff, s_woff, t0))
        a("v_lshrrev_b32 v4, 2, v%d\nv_lshlrev_b32 v4, 7, v4\nv_and_b32 v5, 3, v%d\nv_lshl_add_u32 v4, v5, 3, v4" % (v_lane, v_lane))
        if s.gu: a("s_lshl_b32 s%d, s%d, 5\ns_add_u32 s%d, s%d, 16384" % (t0, s_w, t1, t0))
        else: a("s_lshr_b32 s%d, s%d, 1\ns_lshl_b32 s%d, s%d, 14\ns_lshl_b32 s%d, s%d, 6\ns_add_u32 s%d, s%d, s%d\ns_add_u32 s%d, s%d, 32" % (t0, s_w, t0, t0, t1, t2, t0, t0, t1, t1, t0))
        a("v_add_u32 v%d, s%d, v4\nv_add_u32 v%d, s%d, v4" % (v_r0, t0, v_r1, t1))
        a("s_lshl_b32 s%d, s%d, 13\ns_lshl_b32 s%d, s%d, 3\ns_mul_i32 s%d, s%d, 72" % (s_m0, s_w, s_wadv, s_ldw, t3, s_ldw))
        nch = nk // 4
        def wissue(c):
            for j in range(8):
                a("s_add_u32 m0, s%d, %d\ns_nop 0\nbuffer_load_dwordx4 v%d, %s, s%d offen lds" % (s_m0, (c % 4) * 32768 + j * 1024, v_ws, WSRD, s_woff))
                a("s_add_u32 s%d, s%d, s%d" % (s_woff, s_woff, s_wadv if j < 7 else t3))
        for c in range(4): wissue(c)
        for c in range(nch):
            a("s_waitcnt vmcnt(%d)\ns_barrier" % (8 * (min(c + 4, nch) - c - 1)))
            a("v_add_u32 v4, %d, v%d\nv_add_u32 v5, %d, v%d" % ((c % 4) * 32768, v_r0, (c % 4) * 32768, v_r1))
            for kk in range(4):
                for t in range(2):
                    for hf in range(2):
                        d = ((4 * c + kk) * 2 + t) * 4 + 2 * hf
                        a("ds_read_b64_tr_b16 a[%d:%d], v%d offset:%d" % (d, d + 1, 4 + t, (32 * kk + 16 * hf) * 128))
            a("s_waitcnt lgkmcnt(0)\ns_barrier")
            if c + 4 < nch: wissue(c + 4)
        a("s_mul_i32 s%d, s%d, s%d\ns_lshr_b32 s%d, s%d, 1\ns_lshl_b32 s%d, s%d, 10\ns_add_u32 s%d, s%d, s%d\nv_add_u32 v%d, s%d, v%d" % (t0, t2, s_xrs, t1, s_w, t1, t1, t0, t0, t1, v_xs, t0, v_l16))
        a("s_lshl_b32 s%d, s%d, 10" % (s_m0, s_w))
        a("v_lshlrev_b32 v%d, 3, v%d\nv_mov_b32 v%d, v%d\nv_mov_b32 v%d, %d" % (v_l8, v_lane, v_xr, v_l8 if s.x64 else v_l16, v_fl, L_BC))
        a("s_lshl_b32 s%d, s%d, 1\ns_lshl_b32 s%d, s%d, 1" % (s_xseg, s_xrs, s_oseg, s_ors))
        a("s_lshl_b32 s%d, s%d, %d\ns_add_u32 s%d, s%d, s%d" % (t0, s_w, 9 if s.gu else 10, s_obase, s_obase, t0))
        a("s_mov_b32 s%d, 0" % s_n)
        nd = nk // 2
        def dma():
            g = []
            for j in range(nd):
                g.append(["s_add_u32 m0, s%d, %d" % (s_m0, j * 4096), "s_add_u32 s%d, s%d, %d" % (s_xcur, s_xoff, j * 2048),
                          "buffer_load_dwordx4 v%d, %s, s%d offen%s lds" % (v_xs, WS, s_xcur, SC)])
            g[-1] += ["s_xor_b32 s%d, s%d, 65536" % (s_m0, s_m0), "s_add_u32 s%d, s%d, s%d" % (s_xoff, s_xoff, s_xseg)]
            return g
        NRING = 12
        def rd(i):
            d = XF + 4 * (i % NRING)
            if s.x64: return ["ds_read_b64 %s, v%d offset:%d" % (r2(d), v_xr, i * 1024), "ds_read_b64 %s, v%d offset:%d" % (r2(d + 2), v_xr, i * 1024 + 512)]
            return ["ds_read_b128 %s, v%d offset:%d" % (r4(d), v_xr, i * 1024)]
        per = 2 if s.x64 else 1
        def compute(sync, fill):
            ahead = 6
            nb = 2 * nk; issued = 0
            def issue_to(m):
                nonlocal issued
                while issued < min(m, nb):
                    if issued % (2 * nc) == 0: sync(issued // (2 * nc))
                    for x in rd(issued): a(x)
                    issued += 1
            issue_to(ahead)
            for i in range(nb):
                kb, rt = i >> 1, i & 1
                a("s_waitcnt lgkmcnt(%d)" % (per * (issued - i - 1)))
                for t in range(2):
                    c = r4(AC + 4 * (2 * rt + t)); w = (kb * 2 + t) * 4
                    a("v_mfma_f32_16x16x32_bf16 %s, a[%d:%d], %s, %s" % (c, w, w + 3, r4(XF + 4 * (i % NRING)), "0" if kb == 0 else c))
                    if t == 0: issue_to(i + 1 + ahead)
                for x in fill.get(i, []): a(x)
        def flag_load():
            a("s_add_u32 s%d, s%d, 512\nv_mov_b32 v4, 0\nbuffer_load_dword v6, v4, %s, s%d offen sc1" % (t0, s_wait, WS, t0))
        def bcast_put():
            L = a.label("L_bp")
            a("s_cmp_lg_u32 s%d, 0\ns_cbranch_scc1 %s\nds_write_b32 v%d, v6\ns_waitcnt lgkmcnt(0)\n%s:" % (s_w, L, v_fl, L))
        def bcast_get():
            a("ds_read_b32 v7, v%d\nv_xor_b32 v13, 4, v13\ns_waitcnt lgkmcnt(0)\nv_readfirstlane_b32 s%d, v7\ns_cmp_ge_u32 s%d, s%d\ns_cselect_b32 s%d, 1, 0\ns_cmp_ge_u32 s%d, 63\ns_cselect_b32 s%d, 0, s%d" % (
                v_fl, t0, t0, s_tgt, s_pre, s_n, s_pre, s_pre))
        nst = 2
        def epilogue():
            a("v_xor_b32 v%d, 65536, v%d" % (v_xr, v_xr))
            nop(a, 7)
            for rt in range(2):
                c = AC + 8 * rt; t = TM_ + 16 * rt
                if rt: a("s_add_u32 s%d, s%d, s%d" % (t1, s_obase, s_ors))
                so = t1 if rt else s_obase
                if s.gu:
                    for r in range(4): a("v_mul_f32 v%d, %s, v%d" % (t + r, f32(-math.log2(math.e)), c + r))
                    for r in range(4): a("v_exp_f32 v%d, v%d" % (t + r, t + r))
                    a("v_pk_mul_f32 %s, %s, %s\nv_pk_mul_f32 %s, %s, %s" % (r2(c), r2(c), r2(c + 4), r2(c + 2), r2(c + 2), r2(c + 6)))
                    for r in range(4): a("v_add_f32 v%d, 1.0, v%d" % (t + r, t + r))
                    for r in range(4): a("v_rcp_f32 v%d, v%d" % (t + r, t + r))
                    a("s_nop 0\nv_pk_mul_f32 %s, %s, %s\nv_pk_mul_f32 %s, %s, %s" % (r2(c), r2(c), r2(t), r2(c + 2), r2(c + 2), r2(t + 2)))
                    a("v_cvt_pk_bf16_f32 v%d, v%d, v%d\nv_cvt_pk_bf16_f32 v%d, v%d, v%d" % (t + 4, c, c + 1, t + 5, c + 2, c + 3))
                    a("buffer_store_dwordx2 %s, v%d, %s, s%d offen%s" % (r2(t + 4), v_l8, WS, so, SC))
                else:
                    for r in range(4): a("v_cvt_pk_bf16_f32 v%d, v%d, v%d" % (t + r, c + 2 * r, c + 2 * r + 1))
                    a("buffer_store_dwordx4 %s, v%d, %s, s%d offen%s" % (r4(t), v_l16, WS, so, SC))
            a("s_add_u32 s%d, s%d, s%d" % (s_obase, s_obase, s_oseg))
        def sig(tag):
            a("s_cmp_lg_u32 s%d, 0\ns_cbranch_scc1 L_%s_%s" % (s_w, n, tag)); signal(a, s_sig); a("L_%s_%s:\ns_add_u32 s%d, s%d, 512" % (n, tag, s_sig, s_sig))
        a("L_%s_L:" % n)
        a("s_cmp_lg_u32 s%d, 0\ns_cbranch_scc1 L_%s_Lw" % (s_w, n))
        poll(a, n + "_p", s_wait, s_tgt)
        a("L_%s_Lw:\ns_barrier" % n)
        stampseg(a, 0, trace)
        for g in dma():
            for x in g: a(x)
        flag_load()
        def syncL(c):
            done = -(-(c + 1) * nc // 2)
            if c < 3: a("s_waitcnt vmcnt(%d)\ns_barrier" % (nd - done + 1))
            else:
                a("s_waitcnt vmcnt(0)"); bcast_put(); a("s_barrier")
        compute(syncL, {})
        bcast_get()
        a("s_cmp_eq_u32 s%d, 0\ns_cbranch_scc1 L_%s_E" % (s_pre, n))
        for g in dma():
            for x in g: a(x)
        a("L_%s_E:" % n)
        a("s_add_u32 s%d, s%d, 1\ns_add_u32 s%d, s%d, 512" % (s_n, s_n, s_wait, s_wait))
        flag_load()
        epilogue()
        a("s_cmp_lg_u32 s%d, 0\ns_cbranch_scc1 L_%s_B" % (s_pre, n))
        a("s_waitcnt vmcnt(0)\ns_barrier")
        sig("s1")
        stampseg(a, 2, trace)
        a("s_cmp_lt_u32 s%d, 64\ns_cbranch_scc1 L_%s_L\ns_branch L_w_done" % (s_n, n))
        a("L_%s_B:" % n)
        a("s_waitcnt vmcnt(%d)" % nst); bcast_put(); a("s_barrier"); bcast_get()
        a("s_cmp_eq_u32 s%d, 0\ns_cbranch_scc1 L_%s_B0" % (s_pre, n))
        fill = {}
        for j, g in enumerate(dma()): fill[2 * j] = g
        class Cap:
            def __init__(q): q.l = []
            def __call__(q, x): q.l.append(x)
        def late(tag, cnt):
            nonlocal a
            keep = a; a = Cap(); a("s_waitcnt vmcnt(%d)\ns_barrier" % cnt); sig(tag); out = a.l; a = keep
            return out
        fill[2 * nd + 1] = late("s2", nd)
        compute(lambda c: None, fill)
        a("s_branch L_%s_E" % n)
        a("L_%s_B0:" % n)
        compute(lambda c: None, {nk // 2: late("s3", 0)})
        a("s_branch L_%s_E" % n)
```

```python
import struct, math
from asmlib import *
from layout import *

def nop(a, n):
    while n > 0:
        k = min(n, 16); a("s_nop %d" % (k - 1)); n -= k
def r4(v, p="v"): return "%s[%d:%d]" % (p, v, v + 3)
def r2(v): return "v[%d:%d]" % (v, v + 1)
def f32(x): return "0x%08x" % struct.unpack("<I", struct.pack("<f", x))[0]
WS = "s[8:11]"; WSRD = "s[12:15]"; XSRD = "s[24:27]"
OOB = 0x80000000
s_w = 21
P_X, P_WQ, P_WK, P_WV, P_WO, P_WG, P_WU, P_WD, P_OUT = 64, 68, 70, 72, 74, 80, 82, 84, 86
s_xoff, s_woff, s_xrs, s_ldw, s_wadv, s_ngrp, s_epi, s_obase, s_ors, s_m0x, s_m0w, s_ohalf = range(30, 42)
t0, t1, t2, t3 = 4, 5, 6, 7
s_near = 63
v_lane, v_l16 = 1, 2
SC = " sc1"

def load_ptrs(a):
    a("s_load_dwordx16 s[64:79], s[0:1], 0\ns_load_dwordx8 s[80:87], s[0:1], 64\ns_waitcnt lgkmcnt(0)")
    a("v_lshlrev_b32 v%d, 4, v%d" % (v_l16, v_lane))

def set_srd(a, d, p, nbytes):
    a("s_mov_b32 s%d, s%d\ns_mov_b32 s%d, s%d\ns_mov_b32 s%d, 0x%x\ns_mov_b32 s%d, 0x00020000" % (d, p, d + 1, p + 1, d + 2, nbytes, d + 3))

def set_w(a, pa, pb, nbytes):
    if pa == pb: set_srd(a, 12, pa, nbytes); return
    a("s_cmp_lt_u32 s%d, 2\ns_cselect_b32 s12, s%d, s%d\ns_cselect_b32 s13, s%d, s%d\ns_mov_b32 s14, 0x%x\ns_mov_b32 s15, 0x00020000" % (s_w, pa, pb, pa + 1, pb + 1, nbytes))

class Gemm:
    def __init__(self, name, TM, TN, NST, swap=False):
        self.name = name; self.TM = TM; self.TN = TN; self.NST = NST; self.swap = swap
        self.BM = 32 * TM; self.BN = 32 * TN
        self.xbytes = self.BM * 64; self.wbytes = self.BN * 64; self.stage = self.xbytes + self.wbytes
        self.nx = self.xbytes // 4096; self.nw = self.wbytes // 4096
        self.pitch = self.BN
        v = 8
        self.v_xsrc = v; v += self.nx
        self.v_wsrc = v; v += self.nw
        self.nhi = (self.stage * NST + 65535) // 65536
        self.v_xrd = v; v += self.nhi
        self.v_wrd = v; v += self.nhi * (TN // 2)
        v = (v + 3) // 4 * 4
        self.v_frag = v; v += 8 * (TM + TN)
        self.vend = v
    def wfrag(self, buf, tn): return self.v_frag + buf * 4 * (self.TM + self.TN) + 4 * tn
    def xfrag(self, buf, tm): return self.v_frag + buf * 4 * (self.TM + self.TN) + 4 * self.TN + 4 * tm
    def acc(self, tn, tm): return (tn * self.TM + tm) * 4
    def swz(self, a, dst, k):
        U = self.pitch // 32
        if U >= 8: a("v_and_b32 v%d, 7, v%d" % (dst, k))
        elif U == 4: a("v_bfe_u32 v%d, v%d, 1, 2" % (dst, k))
        else: a("v_bfe_u32 v%d, v%d, 2, 1" % (dst, k))
    def setup(self, a):
        TM, TN = self.TM, self.TN; vt = 4
        a("s_mul_i32 s%d, s%d, %d\ns_mul_i32 s%d, s%d, s%d" % (t0, s_w, self.nx, t0, t0, s_xrs))
        a("s_sub_u32 s%d, s%d, 1024" % (t1, s_xrs))
        for j in range(self.nx):
            a("v_add_u32 v%d, s%d, v%d" % (self.v_xsrc + j, t0, v_l16))
            if j < self.nx - 1: a("s_add_u32 s%d, s%d, s%d" % (t0, t0, t1))
        cpr = self.pitch // 16; rpi = 64 // cpr; sh = cpr.bit_length() - 1
        a("v_lshrrev_b32 v%d, %d, v%d\nv_and_b32 v%d, %d, v%d" % (vt, sh, v_lane, vt + 1, cpr - 1, v_lane))
        a("s_and_b32 s%d, s%d, 1\ns_lshl_b32 s%d, s%d, 4" % (t2, s_w, t0, t2))
        for j in range(self.nw):
            a("s_add_u32 s%d, s%d, %d\nv_add_u32 v%d, s%d, v%d" % (t1, t0, j * rpi, vt + 2, t1, vt))
            self.swz(a, vt + 3, vt + 2)
            a("v_lshlrev_b32 v%d, 1, v%d\nv_xor_b32 v%d, v%d, v%d\nv_lshlrev_b32 v%d, 4, v%d" % (vt + 3, vt + 3, vt + 3, vt + 3, vt + 1, vt + 3, vt + 3))
            a("v_mul_lo_u32 v%d, v%d, s%d\nv_add_u32 v%d, v%d, v%d" % (vt + 2, vt + 2, s_ldw, vt + 2, vt + 2, vt + 3))
            a("v_subrev_u32 v%d, %d, v%d" % (self.v_wsrc + j, j * 1024, vt + 2))
        a("s_lshr_b32 s%d, s%d, 1\ns_mul_i32 s%d, s%d, %d" % (t3, s_w, t0, t3, TM * 1024))
        for h in range(self.nhi):
            a("s_add_u32 s%d, s%d, %d\nv_add_u32 v%d, s%d, v%d" % (t1, t0, h * 65536, self.v_xrd + h, t1, v_l16))
        a("v_lshrrev_b32 v%d, 2, v%d" % (vt + 1, v_lane))
        self.swz(a, vt, vt + 1)
        a("v_mul_u32_u24 v%d, %d, v%d\nv_and_b32 v%d, 3, v%d\nv_lshl_add_u32 v%d, v%d, 3, v%d" % (vt + 1, self.pitch, vt + 1, vt + 2, v_lane, vt + 1, vt + 2, vt + 1))
        for tn in range(TN // 2):
            a("s_mul_i32 s%d, s%d, %d\ns_add_u32 s%d, s%d, %d" % (t0, t2, TN // 2, t0, t0, tn))
            a("v_xor_b32 v%d, s%d, v%d\nv_lshl_add_u32 v%d, v%d, 5, v%d" % (vt + 2, t0, vt, vt + 2, vt + 2, vt + 1))
            for h in range(self.nhi):
                a("v_add_u32 v%d, %d, v%d" % (self.v_wrd + h * (TN // 2) + tn, self.xbytes + h * 65536, vt + 2))
        a("s_mul_i32 s%d, s%d, %d" % (s_m0x, s_w, self.nx * 1024))
        a("s_mul_i32 s%d, s%d, %d\ns_add_u32 s%d, s%d, %d" % (s_m0w, s_w, self.nw * 1024, s_m0w, s_m0w, self.xbytes))
        a("s_lshl_b32 s%d, s%d, 5" % (s_wadv, s_ldw))
    def dma(self, st):
        g = []
        for j in range(self.nx):
            x = ["buffer_load_dwordx4 v%d, %s, s%d offen offset:%d%s lds" % (self.v_xsrc + j, WS, s_xoff, j * 1024, SC)]
            if j == 0: x = ["s_add_u32 m0, s%d, %d" % (s_m0x, st * self.stage), "s_nop 0"] + x
            g.append(x)
        for j in range(self.nw):
            x = ["buffer_load_dwordx4 v%d, %s, s%d offen offset:%d lds" % (self.v_wsrc + j, WSRD, s_woff, j * 1024)]
            if j == 0: x = ["s_add_u32 m0, s%d, %d" % (s_m0w, st * self.stage), "s_add_u32 s%d, s%d, 1024" % (s_xoff, s_xoff)] + x
            g.append(x)
        g[-1] = g[-1] + ["s_add_u32 s%d, s%d, s%d" % (s_woff, s_woff, s_wadv)]
        return g
    def reads(self, st, buf):
        out = []; base = st * self.stage; H = self.TN // 2
        for i in range(max(self.TM, self.TN)):
            if i < self.TN:
                f = self.wfrag(buf, i)
                for hf in range(2):
                    off = base + (i // H) * (self.wbytes // 2) + 16 * hf * self.pitch
                    out.append("ds_read_b64_tr_b16 %s, v%d offset:%d" % (r2(f + 2 * hf), self.v_wrd + (off // 65536) * H + i % H, off % 65536))
            if i < self.TM:
                off = base + i * 1024
                out.append("ds_read_b128 %s, v%d offset:%d" % (r4(self.xfrag(buf, i)), self.v_xrd + off // 65536, off % 65536))
        return out
    def mfmas(self, buf, first):
        out = []
        for tn in range(self.TN):
            for tm in range(self.TM):
                c = r4(self.acc(tn, tm), "a"); w = r4(self.wfrag(buf, tn)); x = r4(self.xfrag(buf, tm))
                if self.swap: w, x = x, w
                out.append("v_mfma_f32_16x16x32_bf16 %s, %s, %s, %s" % (c, w, x, "0" if first else c))
        return out
    def step(self, a, st, first=False):
        nd = self.nx + self.nw; nm = self.TM * self.TN; buf = st % 2
        a("s_waitcnt lgkmcnt(0)")
        mf = self.mfmas(buf, first); rd = self.reads((st + 1) % self.NST, buf ^ 1); dm = self.dma(st)
        gaps = [[] for _ in range(nm)]
        gaps[0].append("s_waitcnt vmcnt(%d)\ns_barrier" % (nd * (self.NST - 2)))
        dpos = [((2 * j + 1) * nm) // (2 * len(dm)) for j in range(len(dm))]
        for j, p in enumerate(dpos): gaps[p] += dm[j]
        free = [i for i in range(nm) if i not in dpos]
        for k, x in enumerate(rd): gaps[free[k] if k < len(free) else k % nm].append(x)
        for i in range(nm):
            a(mf[i])
            for x in gaps[i]: a(x)
    def body(self, a):
        n = self.name; nd = self.nx + self.nw
        self.setup(a)
        for st in range(self.NST):
            for g in self.dma(st):
                for x in g: a(x)
        a("s_waitcnt vmcnt(%d)\ns_barrier" % (nd * (self.NST - 1)))
        for x in self.reads(0, 0): a(x)
        self.step(a, 0, True)
        a("s_branch L_%s_s1" % n)
        a("L_%s_loop:" % n)
        a("s_cmp_eq_u32 s%d, 1\ns_cselect_b32 s%d, 0x%x, s%d\ns_cselect_b32 s%d, 0x%x, s%d" % (s_ngrp, s_xoff, OOB, s_xoff, s_woff, OOB, s_woff))
        self.step(a, 0)
        a("L_%s_s1:" % n)
        for st in range(1, self.NST): self.step(a, st)
        a("s_sub_u32 s%d, s%d, 1\ns_cmp_lg_u32 s%d, 0\ns_cbranch_scc1 L_%s_loop" % (s_ngrp, s_ngrp, s_ngrp, n))
        a("s_waitcnt lgkmcnt(0)")
        nop(a, 8)
    def wave_base(self, a, rows_mul, col_bytes):
        a("s_lshr_b32 s%d, s%d, 1\ns_mul_i32 s%d, s%d, %d\ns_mul_i32 s%d, s%d, s%d\ns_add_u32 s%d, s%d, s%d" % (t0, s_w, t0, t0, rows_mul, t0, t0, s_ors, t0, t0, s_obase))
        a("s_and_b32 s%d, s%d, 1\ns_mul_i32 s%d, s%d, %d\ns_add_u32 s%d, s%d, s%d" % (t1, s_w, t1, t1, col_bytes, t0, t0, t1))
    def pack(self, a, t, accs):
        for r, c in enumerate(accs): a("v_accvgpr_read_b32 v%d, a%d" % (t + 4 + r, c))
        for r in range(4): a("v_cvt_pk_bf16_f32 v%d, v%d, v%d" % (t + r, t + 4 + 2 * r, t + 5 + 2 * r))
    def epi_t16(self, a):
        H = self.TN // 2
        self.wave_base(a, self.TM, (H // 2) * 1024)
        k = 0
        for tm in range(self.TM):
            a("s_add_u32 s%d, s%d, s%d" % (t1, t0, s_ohalf))
            for tp in range(self.TN // 2):
                t = self.v_frag + (k % 4) * 12; k += 1
                self.pack(a, t, [self.acc(2 * tp + r // 4, tm) + r % 4 for r in range(8)])
                half, p = (2 * tp) // H, ((2 * tp) % H) // 2
                a("buffer_store_dwordx4 %s, v%d, %s, s%d offen offset:%d%s" % (r4(t), v_l16, WS, t1 if half else t0, p * 1024, SC))
            a("s_add_u32 s%d, s%d, s%d" % (t0, t0, s_ors))
    def epi_vt(self, a):
        H = self.TN // 2
        self.wave_base(a, self.TM // 2, H * 1024)
        k = 0
        for sp in range(self.TM // 2):
            a("s_add_u32 s%d, s%d, s%d" % (t1, t0, s_ohalf))
            for tn in range(self.TN):
                t = self.v_frag + (k % 4) * 12; k += 1
                self.pack(a, t, [self.acc(tn, 2 * sp + r // 4) + r % 4 for r in range(8)])
                a("buffer_store_dwordx4 %s, v%d, %s, s%d offen offset:%d%s" % (r4(t), v_l16, WS, t1 if tn // H else t0, (tn % H) * 1024, SC))
            a("s_add_u32 s%d, s%d, s%d" % (t0, t0, s_ors))
    def epi_f32(self, a):
        H = self.TN // 2
        self.wave_base(a, self.TM, H * 1024)
        for tm in range(self.TM):
            a("s_add_u32 s%d, s%d, s%d" % (t1, t0, s_ohalf))
            for tn in range(self.TN):
                a("buffer_store_dwordx4 %s, v%d, %s, s%d offen offset:%d%s" % (r4(self.acc(tn, tm), "a"), v_l16, WS, t1 if tn // H else t0, (tn % H) * 1024, SC))
            a("s_add_u32 s%d, s%d, s%d" % (t0, t0, s_ors))
    def epi_gu(self, a):
        H = self.TN // 2
        self.wave_base(a, self.TM, (H // 2) * 1024)
        a("s_mov_b32 s%d, %s" % (t2, f32(-math.log2(math.e))))
        k = 0
        for tm in range(self.TM):
            for p in range(H // 2):
                t = self.v_frag + (k % 2) * 28; k += 1
                G, U, E = t + 4, t + 12, t + 20
                for r in range(8): a("v_accvgpr_read_b32 v%d, a%d" % (G + r, self.acc(2 * p + r // 4, tm) + r % 4))
                for r in range(8): a("v_mul_f32 v%d, s%d, v%d" % (E + r, t2, G + r))
                for r in range(8): a("v_exp_f32 v%d, v%d" % (E + r, E + r))
                for r in range(8): a("v_accvgpr_read_b32 v%d, a%d" % (U + r, self.acc(H + 2 * p + r // 4, tm) + r % 4))
                for r in range(8): a("v_add_f32 v%d, 1.0, v%d" % (E + r, E + r))
                for r in range(8): a("v_rcp_f32 v%d, v%d" % (E + r, E + r))
                for r in range(0, 8, 2): a("v_pk_mul_f32 %s, %s, %s" % (r2(G + r), r2(G + r), r2(U + r)))
                for r in range(0, 8, 2): a("v_pk_mul_f32 %s, %s, %s" % (r2(G + r), r2(G + r), r2(E + r)))
                for r in range(4): a("v_cvt_pk_bf16_f32 v%d, v%d, v%d" % (t + r, G + 2 * r, G + 2 * r + 1))
                a("buffer_store_dwordx4 %s, v%d, %s, s%d offen offset:%d%s" % (r4(t), v_l16, WS, t0, p * 1024, SC))
            a("s_add_u32 s%d, s%d, s%d" % (t0, t0, s_ors))

XT = HB + 4 * MB
L_RED = 0
def row_addr(a, v):
    a("v_and_b32 v%d, 15, v%d\nv_lshlrev_b32 v%d, 11, v%d" % (v, v_lane, v, v))
    a("v_bfe_u32 v4, v%d, 4, 1\nv_lshl_add_u32 v%d, v4, 5, v%d\nv_lshrrev_b32 v4, 5, v%d\nv_lshl_add_u32 v%d, v4, 4, v%d" % (v_lane, v, v, v_lane, v, v))
    a("s_lshl_b32 s%d, s%d, 9\nv_add_u32 v%d, s%d, v%d" % (t0, s_w, v, t0, v))
def swap16(a, d):
    a("v_permlane16_swap_b32 v%d, v%d\nv_permlane16_swap_b32 v%d, v%d" % (d, d + 2, d + 1, d + 3))
def unpack(a, F, d):
    for r in range(4): a("v_lshlrev_b32 v%d, 16, v%d\nv_and_b32 v%d, 0xffff0000, v%d" % (F + 2 * r, d + r, F + 2 * r + 1, d + r))
def rowsum(a, v, tmp, slot):
    for sw in ("v_permlane32_swap_b32", "v_permlane16_swap_b32"):
        a("v_mov_b32 v%d, v%d\ns_nop 1\n%s v%d, v%d\nv_add_f32 v%d, v%d, v%d" % (tmp, v, sw, v, tmp, v, v, tmp))
    a("ds_write_b32 v6, v%d offset:%d\ns_waitcnt lgkmcnt(0)\ns_barrier\nds_read_b128 %s, v7 offset:%d\ns_waitcnt lgkmcnt(0)" % (v, slot * 256, r4(tmp), slot * 256))
    a("v_add_f32 v%d, v%d, v%d\nv_add_f32 v%d, v%d, v%d\nv_add_f32 v%d, v%d, v%d" % (tmp, tmp, tmp + 1, tmp + 2, tmp + 2, tmp + 3, v, tmp, tmp + 2))
def layernorm_store(a, F, D, s_dst):
    a("v_and_b32 v7, 15, v%d\nv_lshlrev_b32 v7, 4, v7\ns_lshl_b32 s%d, s%d, 2\nv_add_u32 v6, s%d, v7" % (v_lane, t0, s_w, t0))
    S, T = 8, 12
    a("v_pk_add_f32 %s, %s, %s" % (r2(S), r2(F), r2(F + 2)))
    for k in range(4, 64, 2): a("v_pk_add_f32 %s, %s, %s" % (r2(S), r2(S), r2(F + k)))
    a("v_add_f32 v%d, v%d, v%d" % (S, S, S + 1))
    rowsum(a, S, T, 0)
    a("v_mul_f32 v%d, %s, v%d" % (S, f32(-1.0 / 1024), S))
    for k in range(0, 64, 2): a("v_pk_add_f32 %s, %s, %s op_sel_hi:[1,0]" % (r2(F + k), r2(F + k), r2(S)))
    a("v_pk_mul_f32 %s, %s, %s" % (r2(S), r2(F), r2(F)))
    for k in range(2, 64, 2): a("v_pk_fma_f32 %s, %s, %s, %s" % (r2(S), r2(F + k), r2(F + k), r2(S)))
    a("v_add_f32 v%d, v%d, v%d" % (S, S, S + 1))
    rowsum(a, S, T, 1)
    a("v_mov_b32 v%d, %s\nv_fmac_f32 v%d, %s, v%d\nv_rsq_f32 v%d, v%d\ns_nop 0" % (T, f32(1e-5), T, f32(1.0 / 1024), S, S, T))
    a("s_lshl_b32 s%d, s%d, 13\ns_add_u32 s%d, s%d, s%d\ns_add_u32 s%d, s%d, 4096" % (t0, s_w, t0, t0, s_dst, t1, t0))
    for p in range(8):
        for k in range(0, 8, 2): a("v_pk_mul_f32 %s, %s, %s op_sel_hi:[1,0]" % (r2(F + 8 * p + k), r2(F + 8 * p + k), r2(S)))
        for r in range(4): a("v_cvt_pk_bf16_f32 v%d, v%d, v%d" % (D + 4 * p + r, F + 8 * p + 2 * r, F + 8 * p + 2 * r + 1))
        a("buffer_store_dwordx4 %s, v%d, %s, s%d offen offset:%d%s" % (r4(D + 4 * p), v_l16, WS, t1 if p >= 4 else t0, (p % 4) * 1024, SC))

def task_ln1(a, s_rg):
    D, F = 16, 48
    set_srd(a, 24, P_X, 4 * MB)
    row_addr(a, 5)
    a("s_lshl_b32 s%d, s%d, 15" % (t2, s_rg))
    for p in range(8): a("buffer_load_dwordx4 %s, v5, %s, s%d offen offset:%d" % (r4(D + 4 * p), XSRD, t2, p * 64))
    a("s_lshl_b32 s%d, s%d, 13\ns_add_u32 s%d, s%d, s%d\ns_add_u32 s%d, s%d, %d\ns_add_u32 s%d, s%d, 4096" % (t0, s_w, t0, t0, t2, t0, t0, XT, t1, t0))
    for p in range(8):
        a("s_waitcnt vmcnt(7)")
        swap16(a, D + 4 * p)
        a("buffer_store_dwordx4 %s, v%d, %s, s%d offen offset:%d%s" % (r4(D + 4 * p), v_l16, WS, t1 if p >= 4 else t0, (p % 4) * 1024, SC))
        unpack(a, F + 8 * p, D + 4 * p)
    a("s_add_u32 s%d, s%d, %d" % (t2, t2, XN))
    layernorm_store(a, F, D, t2)

def sum_partials(a, tag, s_rg, s_n, F, D, pbase, pstride, res_base):
    P, U = 112, 240
    a("s_lshl_b32 s%d, s%d, 15\ns_lshl_b32 s%d, s%d, 13\ns_add_u32 s%d, s%d, s%d" % (t2, s_rg, t0, s_w, t3, t0, t2))
    def issue(R, base, sp=None):
        a("s_add_u32 s%d, s%d, %d" % (t0, t3, base))
        if sp is not None: a("s_cmp_gt_u32 s%d, %d\ns_cselect_b32 s%d, s%d, 0x%x" % (s_n, sp, t0, t0, OOB))
        a("s_add_u32 s%d, s%d, 4096" % (t1, t0))
        for p in range(8): a("buffer_load_dwordx4 %s, v%d, %s, s%d offen offset:%d%s" % (r4(R + 4 * p), v_l16, WS, t1 if p >= 4 else t0, (p % 4) * 1024, SC))
    issue(D, res_base)
    for sp in range(4): issue(P + 32 * sp, pbase + sp * pstride)
    a("s_waitcnt vmcnt(32)")
    for p in range(8): unpack(a, F + 8 * p, D + 4 * p)
    for sp in range(8):
        if sp == 4: a("s_cmp_eq_u32 s%d, 4\ns_cbranch_scc1 L_%s_sum" % (s_n, tag))
        a("s_waitcnt vmcnt(%d)" % (24 if sp < 4 else 8 * (7 - sp)))
        for p in range(8):
            u = U + 8 * (p % 2)
            unpack(a, u, P + 32 * (sp % 4) + 4 * p)
            for k in range(0, 8, 2): a("v_pk_add_f32 %s, %s, %s" % (r2(F + 8 * p + k), r2(F + 8 * p + k), r2(u + k)))
        if sp < 4: issue(P + 32 * sp, pbase + (sp + 4) * pstride, sp + 4)
    a("L_%s_sum:" % tag)

def task_ln2(a, s_rg, s_n, pbase, pstride):
    D, F = 16, 48
    sum_partials(a, "ln2", s_rg, s_n, F, D, pbase, pstride, XT)
    a("s_add_u32 s%d, s%d, %d\ns_add_u32 s%d, s%d, 4096" % (t0, t3, HB, t1, t0))
    for p in range(8):
        for r in range(4): a("v_cvt_pk_bf16_f32 v%d, v%d, v%d" % (D + 4 * p + r, F + 8 * p + 2 * r, F + 8 * p + 2 * r + 1))
        a("buffer_store_dwordx4 %s, v%d, %s, s%d offen offset:%d%s" % (r4(D + 4 * p), v_l16, WS, t1 if p >= 4 else t0, (p % 4) * 1024, SC))
        unpack(a, F + 8 * p, D + 4 * p)
    a("s_add_u32 s%d, s%d, %d" % (t2, t2, HN))
    layernorm_store(a, F, D, t2)

def task_fin(a, s_rg, s_n, pbase, pstride):
    D, F = 16, 48
    sum_partials(a, "fin", s_rg, s_n, F, D, pbase, pstride, HB)
    set_srd(a, 24, P_OUT, 4 * MB)
    row_addr(a, 5)
    for p in range(8):
        for r in range(4): a("v_cvt_pk_bf16_f32 v%d, v%d, v%d" % (D + 4 * p + r, F + 8 * p + 2 * r, F + 8 * p + 2 * r + 1))
        a("s_nop 1")
        swap16(a, D + 4 * p)
        a("buffer_store_dwordx4 %s, v5, %s, s%d offen offset:%d" % (r4(D + 4 * p), XSRD, t2, p * 64))

def att_setup(a):
    a("v_and_b32 v4, 15, v%d\nv_lshrrev_b32 v5, 4, v%d\nv_lshlrev_b32 v6, 2, v5\nv_mov_b32 v7, 0xff000000\nv_mov_b32 v9, 0" % (v_lane, v_lane))
    for r in range(4):
        a("v_add_u32 v10, %d, v6\nv_cmp_gt_u32 vcc, v10, v4\ns_nop 1\nv_cndmask_b32 v%d, v9, v7, vcc\nv_mov_b32 v%d, 0x3f803f80" % (r, 12 + r, 20 + r))
    a("v_mov_b64 v[152:153], 0\nv_lshlrev_b32 v8, 3, v%d\ns_lshl_b32 s%d, s%d, 12\nv_add_u32 v17, s%d, v8" % (v_lane, t0, s_w, t0))
    a("v_lshlrev_b32 v18, 5, v4\nv_lshl_add_u32 v18, v5, 3, v18\nv_add_u32 v18, s%d, v18" % t0)
    a("s_mov_b32 s42, %s" % f32(128 ** -0.5 * math.log2(math.e)))

def task_att(a, s_seg, s_head, mid=None):
    Q, K, V, KMr, VMr = 24, 56, 88, 120, 136
    a("s_lshl_b32 s%d, s%d, 18\ns_lshl_b32 s%d, s%d, 12\ns_add_u32 s%d, s%d, s%d" % (t2, s_seg, t3, s_head, t2, t2, t3))
    a("s_lshl_b32 s%d, s%d, 11\ns_xor_b32 s%d, s%d, s%d\ns_and_b32 s%d, s%d, 8192\ns_lshl_b32 s%d, s%d, 19\ns_add_u32 s%d, s%d, s%d" % (t1, s_seg, t1, t1, s_near, t1, t1, t0, s_seg, t1, t1, t0))
    a("s_lshr_b32 s%d, s%d, 1\ns_lshl_b32 s%d, s%d, 14\ns_and_b32 s%d, s%d, 4096\ns_add_u32 s%d, s%d, s%d\ns_add_u32 s%d, s%d, s%d" % (t0, s_head, t0, t0, t3, t3, t3, t3, t0, t3, t3, t1))
    for base, R, src, st in ((KX, K, t3, 262144), (QX, Q, t2, 131072)):
        for tb in range(2):
            a("s_add_u32 s%d, s%d, %d" % (t0, src, base + tb * st))
            for kp in range(4): a("buffer_load_dwordx4 %s, v%d, %s, s%d offen offset:%d%s" % (r4(R + 16 * tb + 4 * kp), v_l16, WS, t0, kp * 1024, SC))
    a("s_lshl_b32 s%d, s%d, 14\ns_add_u32 s%d, s%d, s%d" % (t0, s_head, t1, t1, t0))
    a("s_add_u32 s%d, s%d, %d" % (t0, t1, VT))
    for T in range(8):
        a("buffer_load_dwordx4 %s, v%d, %s, s%d offen offset:%d%s" % (r4(V + 4 * T), v_l16, WS, t0, (T % 4) * 1024, SC))
        if T == 3: a("s_add_u32 s%d, s%d, 4096" % (t0, t0))
    if mid: mid()
    a("s_add_u32 s%d, s%d, %d" % (t0, t1, KM))
    for T in range(8): a("buffer_load_dwordx2 %s, v8, %s, s%d offen offset:%d%s" % (r2(VMr + 2 * T), WS, t0, T * 512, SC))
    S = 156
    tiles = [(S, KMr, 0, "0"), (S + 4, K, 0, "v[12:15]"), (S + 12, KMr, 1, "0"), (S + 16, K, 1, "0"), (S + 20, K + 16, 1, "v[12:15]")]
    a("s_waitcnt vmcnt(8)")
    for kp in range(4):
        for D, Aop, qt, C in tiles:
            if Aop != KMr: a("v_mfma_f32_16x16x32_bf16 %s, %s, %s, %s" % (r4(D), r4(Aop + 4 * kp), r4(Q + 16 * qt + 4 * kp), C if kp == 0 else r4(D)))
    for T in range(8): a("s_waitcnt vmcnt(%d)\nds_write_b64 v18, %s offset:%d" % (7 - T, r2(VMr + 2 * T), T * 512))
    a("s_waitcnt lgkmcnt(0)")
    for T in range(8): a("ds_read_b64_tr_b16 %s, v17 offset:%d" % (r2(KMr + 2 * T), T * 512))
    a("s_waitcnt lgkmcnt(0)")
    for kp in range(4):
        for D, Aop, qt, C in tiles:
            if Aop != KMr: continue
            a("v_mfma_f32_16x16x32_bf16 %s, %s, %s, %s" % (r4(D), r4(Aop + 4 * kp), r4(Q + 16 * qt + 4 * kp), C if kp == 0 else r4(D)))
    nop(a, 8)
    PX, PZ = 180, 188
    for qt in range(2):
        b = S + 12 * qt; M = 200
        val = [b, b + 1] + list(range(b + 4, b + 8 + 4 * qt))
        a("v_max_f32 v%d, v%d, v%d" % (M, val[0], val[1]))
        for k in range(2, len(val), 2): a("v_max3_f32 v%d, v%d, v%d, v%d" % (M, val[k], val[k + 1], M))
        for sw in ("v_permlane32_swap_b32", "v_permlane16_swap_b32"):
            a("v_mov_b32 v%d, v%d\ns_nop 1\n%s v%d, v%d\nv_max_f32 v%d, v%d, v%d" % (M + 1, M, sw, M, M + 1, M, M, M + 1))
        a("v_mul_f32 v%d, s42, v%d" % (M, M))
        for r in val: a("v_fma_f32 v%d, v%d, s42, -v%d" % (r, r, M))
        for r in val: a("v_exp_f32 v%d, v%d" % (r, r))
        px, pz = PX + 4 * qt, PZ + 4 * qt
        a("v_mov_b32 v%d, 0\nv_mov_b64 %s, 0" % (pz, r2(pz + 2)))
        a("v_cvt_pk_bf16_f32 v%d, v%d, v%d" % (pz + 1, b, b + 1))
        a("v_cvt_pk_bf16_f32 v%d, v%d, v%d\nv_cvt_pk_bf16_f32 v%d, v%d, v%d" % (px, b + 4, b + 5, px + 1, b + 6, b + 7))
        if qt: a("v_cvt_pk_bf16_f32 v%d, v%d, v%d\nv_cvt_pk_bf16_f32 v%d, v%d, v%d" % (px + 2, b + 8, b + 9, px + 3, b + 10, b + 11))
        else: a("v_mov_b64 %s, 0" % r2(px + 2))
    a("s_waitcnt vmcnt(0)")
    O, L = 24, 156
    for qt in range(2):
        px, pz = PX + 4 * qt, PZ + 4 * qt
        a("v_mfma_f32_16x16x32_bf16 %s, v[20:23], %s, 0" % (r4(L + 4 * qt), r4(px)))
        a("v_mfma_f32_16x16x32_bf16 %s, v[20:23], %s, %s" % (r4(L + 4 * qt), r4(pz), r4(L + 4 * qt)))
        for T in range(8):
            o = r4(O + 32 * qt + 4 * T)
            a("v_mfma_f32_16x16x32_bf16 %s, %s, %s, 0" % (o, r4(V + 4 * T), r4(px)))
            a("v_mfma_f32_16x16x32_bf16 %s, %s, %s, %s" % (o, r4(VMr + 2 * T), r4(pz), o))
    a("v_rcp_f32 v200, v%d\nv_rcp_f32 v202, v%d" % (L, L + 4))
    nop(a, 6)
    for qt in range(2):
        a("s_add_u32 s%d, s%d, %d" % (t0, t2, OA + qt * 131072))
        for p in range(4):
            o = O + 32 * qt + 8 * p; d = 164 + 4 * (p % 4)
            for k in range(0, 8, 2): a("v_pk_mul_f32 %s, %s, %s op_sel_hi:[1,0]" % (r2(o + k), r2(o + k), r2(200 + 2 * qt)))
            for r in range(4): a("v_cvt_pk_bf16_f32 v%d, v%d, v%d" % (d + r, o + 2 * r, o + 2 * r + 1))
            a("buffer_store_dwordx4 %s, v%d, %s, s%d offen offset:%d%s" % (r4(d), v_l16, WS, t0, p * 1024, SC))
```

```python
import sys
from asmlib import *
from layout import *
from tasks import *
import chain2 as CH
import sched as SC_
from sched import *
from serv import *
NAME = "sequential_preLN__memory_aug_recurrent_mem_tr__swiglu_ffn__prompt_kernel"
SPINW = 200000
def gen(tau=2.6, t0=22.0, ckw={}, trace=0, skw={}, nstb=4):
    T = build(tau, t0, **skw); lists = simulate(T, tau, t0)
    a = Asm()
    a("; @launch grid=(256,1,1) block=(256,1,1) lds=%d" % CH.LDS_BYTES)
    a('.amdgcn_target "amdgcn-amd-amdhsa--gfx950"')
    kernel_begin(a, NAME)
    def early():
        a("s_cmp_lg_u32 s2, 0\ns_cbranch_scc1 L_noinit")
        a("v_lshlrev_b32 v3, 4, v0\nv_mov_b32 v4, 0\nv_mov_b32 v5, 0\nv_mov_b32 v6, 0\nv_mov_b32 v7, 0\ns_mov_b32 s30, %d" % FLAGS)
        for k in range(ZERO_BYTES // 4096):
            a("buffer_store_dwordx4 v[4:7], v3, s[8:11], s30 offen sc1\ns_add_u32 s30, s30, 4096")
        a("s_waitcnt vmcnt(0)\ns_barrier\nv_mov_b32 v4, 1\nv_lshlrev_b32 v5, 6, v0\nv_add_u32 v5, 64, v5")
        a("v_cmp_gt_u32 vcc, 2, v0\ns_and_saveexec_b64 s[48:49], vcc\ns_cbranch_execz L_ini2\nbuffer_atomic_add v4, v5, s[16:19], 0 offen\nL_ini2:\ns_mov_b64 exec, s[48:49]")
        a("L_noinit:")
    CH.emit_role_prologue(a, early=early)
    a("s_cmp_ge_u32 s%d, 32\ns_cbranch_scc1 L_end\ns_cmp_ge_u32 s%d, 8\ns_cbranch_scc1 L_end" % (CH.s_i, CH.s_xcc))
    a("s_cmp_ge_u32 s%d, 2\ns_cbranch_scc1 L_worker\ns_mov_b32 s%d, s%d" % (CH.s_xcc, CH.s_x, CH.s_xcc))
    CH.emit_chain(a, **ckw)
    a("s_endpgm")
    a("L_worker:")
    load_ptrs(a)
    a("s_getpc_b64 s[56:57]\ns_add_u32 s56, s56, task_table@rel32@lo+4\ns_addc_u32 s57, s57, task_table@rel32@hi+12")
    a("s_sub_u32 s20, s20, 2\ns_lshl_b32 s4, s20, 3\ns_load_dwordx2 s[58:59], s[56:57], s4")
    a("s_lshl_b32 s60, s20, 7\ns_add_u32 s60, s60, %d" % (FLAGS + 128 * C_Q))
    a("s_mov_b32 s61, s22\ns_mov_b32 s62, %d\ns_mov_b32 s63, -1" % SPINW)
    a("s_cmp_ge_u32 s20, 2\ns_cbranch_scc1 L_w_nov\ns_cmp_lt_u32 s22, 24\ns_cbranch_scc1 L_w_nov\ns_cmp_lg_u32 s21, 0\ns_cbranch_scc1 L_w_nov")
    a("s_lshl_b32 s4, s20, 5\ns_add_u32 s4, s4, s22\ns_lshl_b32 s4, s4, 14\ns_add_u32 s4, s4, %d\ns_mov_b32 s30, -1\ns_mov_b32 s31, -1\nv_lshlrev_b32 v4, 2, v1" % (PRB + MB))
    for it in range(3):
        for hf in ((0, 1) if it % 2 == 0 else (1, 0)):
            a("s_add_u32 s5, s4, %d\ns_memtime s[32:33]\ns_waitcnt lgkmcnt(0)\nbuffer_store_dword v4, v4, s[8:11], s5 offen sc1\ns_waitcnt vmcnt(0)\ns_memtime s[34:35]\ns_waitcnt lgkmcnt(0)" % (hf * 8192 + it * 1024))
            a("s_sub_u32 s34, s34, s32\ns_min_u32 s%d, s%d, s34" % (30 + hf, 30 + hf))
    a("s_cmp_lt_u32 s31, s30\ns_cselect_b32 s4, 0x10001, 1\nv_mov_b32 v5, s4\nv_mov_b32 v4, 192\ns_mov_b64 exec, 1\nbuffer_atomic_add v5, v4, s[16:19], 0 offen\ns_mov_b64 exec, -1\nL_w_nov:")
    a("""
    s_cmp_lg_u32 s21, 0
    s_cbranch_scc1 L_w_task
    v_mov_b32 v4, 128
    L_w_ini:
    buffer_load_dword v5, v4, s[16:19], 0 offen sc1
    s_sub_u32 s62, s62, 1
    s_cbranch_scc1 L_w_fail
    s_waitcnt vmcnt(0)
    v_cmp_eq_u32 vcc, 0, v5
    s_cbranch_vccnz L_w_ini
    L_w_task:
    s_waitcnt lgkmcnt(0)
    s_cmp_ge_u32 s61, s59
    s_cbranch_scc1 L_end
    s_lshl_b32 s4, s61, 5
    s_add_u32 s4, s4, s58
    s_load_dwordx8 s[48:55], s[56:57], s4
    """)
    if trace: a("s_memrealtime s[88:89]")
    a("""
    s_waitcnt lgkmcnt(0)
    s_cmp_eq_u32 s48, 0
    s_cbranch_scc1 L_w_hasc
    s_cmp_lg_u32 s63, -1
    s_cbranch_scc1 L_w_hasc
    v_mov_b32 v4, 192
    L_w_cal:
    buffer_load_dword v5, v4, s[16:19], 0 offen sc1
    s_sub_u32 s62, s62, 1
    s_cbranch_scc1 L_w_fail
    s_waitcnt vmcnt(0)
    v_readfirstlane_b32 s4, v5
    s_and_b32 s5, s4, 0xffff
    s_cmp_lt_u32 s5, 16
    s_cbranch_scc1 L_w_cal
    s_lshr_b32 s4, s4, 16
    s_cmp_ge_u32 s4, 8
    s_cselect_b32 s63, 8192, 0
    L_w_hasc:
    s_cmp_lg_u32 s21, 0
    s_cbranch_scc1 L_w_go
    s_cmp_eq_u32 s50, 0
    s_cbranch_scc1 L_w_go
    v_mov_b32 v4, 0
    L_w_poll:
    buffer_load_dword v5, v4, s[8:11], s49 offen sc1
    s_sub_u32 s62, s62, 1
    s_cbranch_scc1 L_w_fail
    s_waitcnt vmcnt(0)
    v_cmp_le_u32 vcc, s50, v5
    s_cbranch_vccnz L_w_go
    s_sleep 4
    s_branch L_w_poll
    L_w_go:
    s_barrier
    """)
    if trace: a("s_memrealtime s[90:91]")
    a("s_mov_b32 s%d, s52\ns_mov_b32 s%d, s53\ns_mov_b32 s%d, s54" % (s_xoff, s_woff, s_obase))
    for t in range(12): a("s_cmp_eq_u32 s48, %d\ns_cbranch_scc1 L_t%d" % (t, t))
    a("s_branch L_end")
    gA = Gemm("ga", 8, 8, 4); gAs = Gemm("gas", 8, 8, 4, swap=True); gB = Gemm("gb", 8, 4, 4); gBs = Gemm("gbs", 8, 4, 4, swap=True)
    def stub(t, g, pa, pb, wbytes, xrs, ldw, ngrp, ors, ohalf, epi, half=True, near=False):
        a("L_t%d:" % t)
        set_w(a, pa, pb, wbytes)
        a("s_mov_b32 s%d, %d\ns_mov_b32 s%d, %d\ns_mov_b32 s%d, %d\ns_mov_b32 s%d, %d\ns_mov_b32 s%d, %d\ns_mov_b32 s%d, %d" % (
            s_xrs, xrs, s_ldw, ldw, s_ngrp, ngrp, s_ors, ors, s_ohalf, ohalf, s_epi, epi))
        if half: a("s_lshr_b32 s%d, s%d, 1\ns_mul_i32 s%d, s%d, %d\ns_add_u32 s%d, s%d, s%d" % (t0_, s_w, t0_, t0_, g.BN, s_woff, s_woff, t0_))
        if near: a("s_lshl_b32 s4, s%d, 12\ns_xor_b32 s4, s4, s%d\ns_and_b32 s4, s4, 8192\ns_add_u32 s%d, s%d, s4" % (s_w, s_near, s_obase, s_obase))
        a("s_branch L_%s" % g.name)
    t0_ = 4
    stub(T_QA, gA, P_WQ, P_WQ, 8 * MB, 32768, 8192, 8, 131072, 4096, 0)
    stub(T_KA, gA, P_WK, P_WK, 8 * MB, 32768, 8192, 8, 262144, 4096, 0, near=True)
    stub(T_VA, gAs, P_WV, P_WV, 8 * MB, 32768, 8192, 8, 524288, 16384, 0, near=True)
    stub(T_KB, gB, P_WK, P_WK, 8 * MB, 32768, 8192, 8, 262144, 2048, 0, near=True)
    stub(T_VB, gBs, P_WV, P_WV, 8 * MB, 32768, 8192, 8, 524288, 4096, 0, near=True)
    class N:
        def __init__(q, n): q.name = n; q.BN = 128
    stub(T_SO, N("so"), P_WO, P_WO, 8 * MB, 131072, 2048, 0, 32768, 0, 0)
    stub(T_SGU, N("sgu"), P_WG, P_WU, 1024 * 7168, 32768, 7168, 0, 114688, 0, 0, half=False)
    stub(T_SD, N("sd"), P_WD, P_WD, 3584 * 2048, 114688, 2048, 0, 32768, 0, 0)
    a("L_ga:"); gA.body(a); gA.epi_t16(a); a("s_branch L_w_done")
    a("L_gas:"); gAs.body(a); gAs.epi_vt(a); a("s_branch L_w_done")
    a("L_gbs:"); gBs.body(a); gBs.epi_vt(a); a("s_branch L_w_done")
    a("L_gb:"); gB.body(a); gB.epi_t16(a); a("s_branch L_w_done")
    a("L_t%d:" % T_LN1); task_ln1(a, 52); a("s_branch L_w_done")
    WS_("so", 32, False, False).emit(a, trace); WS_("sgu", 32, False, True).emit(a, trace); WS_("sd", 28, True, False).emit(a, trace)
    a("L_t%d:" % T_SLN); serv_rows(a, "sln", lambda a, r, n: task_ln2(a, r, n, PART_O, PSLAB), trace)
    a("L_t%d:" % T_SFIN); serv_rows(a, "sfin", lambda a, r, n: task_fin(a, r, n, PART_D, PSLAB), trace)
    a("L_t%d:" % T_SATT); serv_att(a, C_HP, trace)
    a("L_w_done:")
    a("s_waitcnt vmcnt(0)\ns_barrier")
    a("v_mov_b32 v7, %d" % CH.L_MISC)
    a("s_cmp_lg_u32 s21, 0\ns_cbranch_scc1 L_w_nx")
    a("""
    s_mov_b64 exec, 1
    s_lshr_b32 s4, s51, 16
    s_and_b32 s5, s51, 0xffff
    s_add_u32 s5, s5, %d
    v_mov_b32 v4, 0
    v_mov_b32 v5, s4
    v_mov_b32 v6, 1
    buffer_atomic_add v5, v4, s[8:11], s5 offen
    buffer_atomic_add v6, v4, s[8:11], s60 offen sc0
    """ % FLAGS)
    if trace:
        a("s_memrealtime s[92:93]\ns_lshl_b32 s4, s61, 5\ns_add_u32 s4, s4, s58\ns_add_u32 s4, s4, %d\ns_waitcnt lgkmcnt(0)" % (FLAGS + 4 * MB))
        a("v_mov_b32 v8, s88\nv_mov_b32 v9, s90\nv_mov_b32 v10, s92\nv_mov_b32 v11, s22\nbuffer_store_dwordx4 v[8:11], v4, s[8:11], s4 offen")
    a("""
    s_waitcnt vmcnt(0)
    ds_write_b32 v7, v6
    s_waitcnt lgkmcnt(0)
    s_mov_b64 exec, -1
    L_w_nx:
    s_barrier
    ds_read_b32 v6, v7
    s_waitcnt lgkmcnt(0)
    v_readfirstlane_b32 s61, v6
    s_add_u32 s61, s61, 32
    s_branch L_w_task
    L_w_fail:
    v_mov_b32 v7, %d
    v_mov_b32 v6, 0x7fffff00
    ds_write_b32 v7, v6
    v_mov_b32 v4, 96
    v_mov_b32 v5, 1
    buffer_atomic_add v5, v4, s[16:19], 0 offen
    s_waitcnt vmcnt(0) lgkmcnt(0)
    L_end:
    s_endpgm
    """ % CH.L_MISC)
    kernel_desc(a, NAME, 512, 102, 256)
    a(".p2align 6\ntask_table:")
    off = 64
    hdr = []
    for l in lists: hdr += [off, len(l)]; off += 32 * len(l)
    a(".long " + ", ".join(map(str, hdr + [0] * (16 - len(hdr)))))
    for l in lists:
        for i in l:
            t = T[i]
            a(".long %d,%d,%d,%d,%d,%d,%d,%d" % (t.typ, FLAGS + 128 * t.wait, t.target, 128 * t.sig | (t.inc << 16), *t.p))
    gen.T, gen.lists = T, lists
    return a.text()
if __name__ == "__main__":
    HDR = open("sequential_preLN__memory_aug_recurrent_mem_tr__swiglu_ffn__prompt.s.ref").read().split("; Override launch")[0]
    BEST = dict(tau=2.4, t0=27, ckw=dict(stamps=0, xg=(14, 24, 36), xre=1))
    open(sys.argv[1], "w").write(HDR + gen(**BEST))
```

```python
import sys
from asmlib import *
from layout import *

L_PL = 0; L_KV0 = 16384; L_KV1 = 32768; L_F = 49152; L_O = 53248; L_DUM = 55296; L_TR = 57344; L_WO = 65536
L_KX = L_KV1
L_MISC = 158720
LDS_BYTES = 163840
OOB = 0x80000000
SPIN = 400000
NVOTE = 16

def nop(a, n):
    while n > 0:
        k = min(n, 16); a("s_nop %d" % (k - 1)); n -= k

def srd(a, d, lo, hi, nbytes):
    a("s_mov_b32 s%d, s%d\ns_mov_b32 s%d, s%d\ns_mov_b32 s%d, 0x%x\ns_mov_b32 s%d, 0x00020000" % (d, lo, d + 1, hi, d + 2, nbytes, d + 3))

S_WS = 8; S_W = 12; S_DBG = 16
s_prog, s_tagl = 2, 3
s_xcc, s_w, s_i, s_x, s_h, s_b, s_step, s_spin = 20, 21, 22, 23, 24, 25, 26, 27
s_sent, s_scale = 28, 30
s_t0, s_t1, s_t2, s_t3 = 4, 5, 6, 7
o_qk_own, o_qk_par, s_e = 31, 32, 33
o_i3st = 34
o_i3ld, o_i3ld2, o_xs, o_xr, o_pl, o_plf, o_pp = 38, 39, 40, 41, 42, 43, 44
o_kv, o_km, b_kv, s_tag, s_cnt = 45, 46, 47, 48, 49
s_vt, m_kv, b_p, s_en = 52, 53, 54, 55
b_km, b_x = 100, 101
CUR = "s[12:15]"; WS = "s[8:11]"
R_QK2, R_I32 = 0, 524288
PBUF = RING + 2 * MB
o_qs, o_qr = 20, 24
v_ord, v_lane, v_l16, v_l8, v_idx, v_word, v_pst, v_i3st, v_i3l, v_xo, v_fown, v_fpar, v_owr, v_flag = range(14)
v_avx = 1
KMP = 14; M = 16; v_ones = 20; v_sel = 24
v_aq, v_ak, v_av = 28, 32, 36
V_WO = 96; V_WV = 128

def r4(v): return "v[%d:%d]" % (v, v + 3)
def r2(v): return "v[%d:%d]" % (v, v + 1)
def r8(v): return "v[%d:%d]" % (v, v + 7)

def wtile(m, f):
    if m == 0: return "a[%d:%d]" % (8 * f, 8 * f + 7)
    if m == 1: return "a[%d:%d]" % (128 + 8 * f, 128 + 8 * f + 7)
    return "v[%d:%d]" % (V_WV + 8 * f, V_WV + 8 * f + 7)

class LQ:
    def __init__(self, a): self.a = a; self.q = []
    def op(self, ins, tag=None): self.a(ins); self.q.append(tag)
    def need(self, tag):
        if tag not in self.q: return
        k = len(self.q) - 1 - self.q[::-1].index(tag)
        self.a("s_waitcnt lgkmcnt(%d)" % (len(self.q) - 1 - k)); self.q = self.q[k + 1:]
    def all(self):
        self.a("s_waitcnt lgkmcnt(0)"); self.q = []

def emit_chain(a, stamps=0, nsteps=64, pq=(5, 9, 12, 15), nokv=0, nokm=0, tw=0, focus=None, kvw=(3, 1), spos=(0, 1, 2, 3), rg=(40, 37), xl=(30, 16),
               v2=1, vpos=0, fdepth=24, xg=(14, 24, 36), xre=1, xb=1, x16=1, pbar=1, f16=1, cnt_='', worder=('o', 0, 1), rf=None, lin=0, nrep=1, fun=2, fchk=1, q2=1):
    A = a
    from serv import PROG
    from sched import C_HP
    import struct, math
    def stamp(k):
        if focus:
            k = focus.get(k)
            if k is None: return
        elif not isinstance(k, int): return
        if stamps > 1: A("s_memtime s[%d:%d]" % (60 + 2 * k, 61 + 2 * k))
    def cnt(k):
        if stamps: A("s_add_u32 s%d, s%d, 1" % (96 + k, 96 + k))
    z = lambda r: "v_mov_b64 %s, 0" % r2(r)
    T = 40
    A("s_load_dwordx8 s[48:55], s[0:1], 16")
    A("s_lshr_b32 s%d, s%d, 1\ns_lshl_b32 s%d, s%d, 4\ns_add_u32 s%d, s%d, s%d\ns_and_b32 s%d, s%d, 1" % (s_h, s_i, s_t0, s_x, s_h, s_h, s_t0, s_b, s_i))
    A("v_lshlrev_b32 v%d, 4, v%d\nv_lshlrev_b32 v%d, 3, v%d" % (v_l16, v_lane, v_l8, v_lane))
    vq, vo, vrq, vro = T, T + 1, T + 2, T + 3
    A("v_lshrrev_b32 v%d, 3, v%d\nv_lshlrev_b32 v%d, 13, v%d\nv_and_b32 v%d, 7, v%d\nv_lshl_add_u32 v%d, v%d, 4, v%d" % (T + 4, v_lane, T + 4, T + 4, T + 5, v_lane, vq, T + 5, T + 4))
    A("v_bfe_u32 v%d, v%d, 5, 1\nv_lshlrev_b32 v%d, 4, v%d" % (T + 4, v_lane, T + 4, T + 4))
    A("v_bfe_u32 v%d, v%d, 3, 1\nv_lshl_add_u32 v%d, v%d, 3, v%d" % (T + 5, v_lane, T + 4, T + 5, T + 4))
    A("v_bfe_u32 v%d, v%d, 2, 1\nv_add_u32 v%d, v%d, v%d" % (T + 5, v_lane, T + 4, T + 5, T + 4))
    A("v_bfe_u32 v%d, v%d, 4, 1\nv_lshl_add_u32 v%d, v%d, 2, v%d" % (T + 5, v_lane, T + 4, T + 5, T + 4))
    A("v_and_b32 v%d, 3, v%d\nv_lshlrev_b32 v%d, 3, v%d" % (T + 5, v_lane, T + 5, T + 5))
    A("s_lshl_b32 s%d, s%d, 5\nv_add_u32 v%d, s%d, v%d\nv_lshl_add_u32 v%d, v%d, 7, v%d" % (s_t0, s_w, T + 6, s_t0, T + 5, vrq, T + 4, T + 6))
    A("v_bfe_u32 v%d, v%d, 4, 1\nv_xor_b32 v%d, s%d, v%d\nv_lshlrev_b32 v%d, 4, v%d" % (T + 4, v_lane, T + 4, s_b, T + 4, T + 4, T + 4))
    A("v_bfe_u32 v%d, v%d, 5, 1\nv_lshl_add_u32 v%d, v%d, 2, v%d" % (T + 6, v_lane, T + 4, T + 6, T + 4))
    A("v_bfe_u32 v%d, v%d, 2, 1\nv_add_u32 v%d, v%d, v%d" % (T + 6, v_lane, T + 4, T + 6, T + 4))
    A("v_bfe_u32 v%d, v%d, 3, 1\nv_lshl_add_u32 v%d, v%d, 5, v%d" % (T + 6, v_lane, T + 5, T + 6, T + 5))
    A("s_lshl_b32 s%d, s%d, 8\nv_add_u32 v%d, s%d, v%d\nv_lshl_add_u32 v%d, v%d, 10, v%d" % (s_t0, s_w, T + 6, s_t0, T + 5, vro, T + 4, T + 6))
    A("s_waitcnt lgkmcnt(0)")
    chunks = [(m, c) for m in list(worder) + [2] for c in range(4)]
    bufs = [(2, 3, 4, 0, 1)[k] for k in [0, 1, 2, 3, 4, 0, 1, 2, 3, 4, 0, 1, 3, 4, 3, 4]]
    def issue(ci):
        kind, c = chunks[ci]; buf = bufs[ci]
        p = 54 if kind == "o" else 48 + 2 * kind
        srd(a, S_W, p, p + 1, 8 * MB)
        A("s_lshl_b32 s%d, s%d, 13\ns_add_u32 s%d, s%d, %d" % (s_t2, s_w, s_t2, s_t2, buf * 32768))
        if kind == "o":
            A("s_lshr_b32 s%d, s%d, 1\ns_lshl_b32 s%d, s%d, 6\ns_and_b32 s%d, s%d, 1\ns_lshl_b32 s%d, s%d, 3\ns_add_u32 s%d, s%d, s%d" % (
                s_t0, s_w, s_t0, s_t0, s_t1, s_w, s_t1, s_t1, s_t0, s_t0, s_t1))
            A("s_lshl_b32 s%d, s%d, 7\ns_add_u32 s%d, s%d, s%d\ns_add_u32 s%d, s%d, %d\ns_lshl_b32 s%d, s%d, 11" % (s_t1, s_h, s_t0, s_t0, s_t1, s_t0, s_t0, 16 * c, s_t0, s_t0))
            A("s_lshl_b32 s%d, s%d, 10\ns_add_u32 s%d, s%d, s%d" % (s_t1, s_b, s_t0, s_t0, s_t1))
            va, stride = v_l16, 2048
        else:
            A("s_lshl_b32 s%d, s%d, 6\ns_add_u32 s%d, s%d, %d\ns_lshl_b32 s%d, s%d, 13" % (s_t0, s_w, s_t0, s_t0, 256 * c, s_t0, s_t0))
            A("s_lshl_b32 s%d, s%d, 8\ns_add_u32 s%d, s%d, s%d\ns_lshl_b32 s%d, s%d, 7\ns_add_u32 s%d, s%d, s%d" % (s_t1, s_h, s_t0, s_t0, s_t1, s_t1, s_b, s_t0, s_t0, s_t1))
            va, stride = vq, 8 * 8192
        for j in range(8):
            A("s_add_u32 m0, s%d, %d\ns_nop 0" % (s_t2, j * 1024))
            A("buffer_load_dwordx4 v%d, s[12:15], s%d offen%s lds" % (va, s_t0, cnt_))
            if j < 7: A("s_add_u32 s%d, s%d, %d" % (s_t0, s_t0, stride))
    issued = 0
    extra = [0]
    def consume(ci):
        kind, c = chunks[ci]; buf = bufs[ci]
        A("s_waitcnt vmcnt(%d)\ns_barrier" % (8 * (issued - ci - 1) + extra[0]))
        A("v_add_u32 v%d, %d, v%d" % (T + 8, buf * 32768, vro if kind == "o" else vrq))
        if kind == "o":
            for u in range(4):
                for rho in range(4):
                    d = V_WV + (u * 4 + c) * 8 + 2 * rho
                    A("ds_read_b64_tr_b16 %s, v%d offset:%d" % (r2(d), T + 8, (8 * (rho >> 1) + 2 * (rho & 1)) * 1024 + u * 64))
        else:
            for fp in range(4):
                for rho in range(4):
                    f = 4 * c + fp
                    base = (8 * f if kind == 0 else 128 + 8 * f if kind == 1 else V_WV + 8 * f) + 2 * rho
                    dst = ("a[%d:%d]" if kind < 2 else "v[%d:%d]") % (base, base + 1)
                    A("ds_read_b64_tr_b16 %s, v%d offset:%d" % (dst, T + 8, (64 * fp + 32 * (rho >> 1) + 2 * (rho & 1)) * 128))
        A("s_waitcnt lgkmcnt(0)\ns_barrier")
    if stamps: A("s_memtime s[56:57]\ns_waitcnt lgkmcnt(0)\ns_sub_u32 s80, s56, s94")
    for ci in range(5): issue(ci); issued += 1
    T = 52
    A("s_mov_b32 s%d, 0x%x\ns_mov_b32 s%d, 0x%x" % (s_sent, SENT, s_sent + 1, SENT))
    A("s_mov_b32 s%d, 0x%x" % (s_scale, struct.unpack("<I", struct.pack("<f", 128 ** -0.5 * math.log2(math.e)))[0]))
    A("v_and_b32 v%d, 15, v%d\nv_lshrrev_b32 v%d, 4, v%d\nv_and_b32 v%d, 7, v%d" % (T, v_lane, T + 1, v_lane, T + 2, v_lane))
    A("v_cmp_gt_u32 vcc, 8, v%d\nv_mov_b32 v%d, 0xeeee\nv_mov_b32 v%d, 0x4444\nv_cndmask_b32 v%d, v%d, v%d, vcc" % (T, T + 3, T + 4, v_idx, T + 3, T + 4))
    A("v_lshl_add_u32 v%d, v%d, 3, v%d\nv_lshlrev_b32 v%d, 4, v%d" % (T + 5, T + 1, T + 2, T + 5, T + 5))
    A("v_add_u32 v%d, %d, v%d\ns_lshl_b32 s%d, s%d, 9\nv_add_u32 v%d, s%d, v%d" % (v_ord, L_O, T + 5, s_t0, s_w, v_xo, s_t0, v_l8))
    if x16: A("v_lshrrev_b32 v%d, 1, v%d" % (v_xo, v_xo))
    A("s_lshl_b32 s%d, s%d, 8\ns_cmp_lt_u32 s%d, 2\ns_cselect_b32 s%d, s%d, 0x%x\ns_lshl_b32 s%d, s%d, 9\ns_add_u32 s%d, s%d, s%d" % (s_t1, s_w, s_w, s_t1, s_t1, OOB, s_t0, s_i, s_t0, s_t0, s_t1))
    A("v_mov_b32 v%d, 0x%x\nv_lshrrev_b32 v%d, 5, v%d\nv_lshl_add_u32 v%d, v%d, 3, v%d\nv_lshlrev_b32 v%d, 4, v%d" % (T + 7, OOB, T + 6, v_lane, T + 6, T + 6, T + 2, T + 6, T + 6))
    A("v_bfe_u32 v%d, v%d, 4, 1\nv_lshl_add_u32 v%d, v%d, 3, v%d\nv_add_u32 v%d, s%d, v%d\nv_bfe_u32 v%d, v%d, 3, 1\nv_lshl_add_u32 v%d, v%d, 2, v%d" % (T + 8, v_lane, T + 6, T + 8, T + 6, T + 6, s_t0, T + 6, T + 8, v_lane, v_pst, T + 8, T + 6))
    A("s_lshl_b32 s%d, s%d, 9\ns_add_u32 s%d, s%d, %d" % (s_t0, s_w, s_t0, s_t0, L_O))
    A("v_and_b32 v%d, 5, v%d\nv_bfe_u32 v%d, v%d, 3, 1\nv_lshl_add_u32 v%d, v%d, 1, v%d\nv_lshl_add_u32 v%d, v%d, 3, v%d" % (T + 6, v_lane, T + 7, v_lane, T + 6, T + 7, T + 6, T + 6, T + 1, T + 6))
    A("v_lshl_add_u32 v%d, v%d, 4, s%d\nv_add_u32 v%d, %d, v%d\nv_and_b32 v%d, 2, v%d\nv_cmp_ne_u32 vcc, 0, v%d\ns_nop 1" % (T + 6, T + 6, s_t0, T + 7, L_DUM, v_l16, T + 8, v_lane, T + 8))
    A("v_cndmask_b32 v%d, v%d, v%d, vcc" % (v_owr, T + 7, T + 6))
    A("v_lshrrev_b32 v%d, 1, v%d\nv_lshl_add_u32 v%d, v%d, 4, v%d\nv_lshlrev_b32 v%d, 4, v%d" % (T + 3, T + 1, T + 3, T + 3, T, T + 3, T + 3))
    A("v_and_b32 v%d, 1, v%d\nv_lshl_add_u32 v%d, v%d, 3, v%d" % (T + 4, T + 1, v_i3st, T + 4, T + 3))
    A("v_lshlrev_b32 v%d, 4, v%d\nv_lshl_add_u32 v%d, v%d, 9, v%d" % (T + 3, T, v_i3l, T + 1, T + 3))
    A("v_lshlrev_b32 v%d, 5, v%d\nv_lshl_add_u32 v%d, v%d, 3, v%d" % (T + 3, T, T + 3, T + 1, T + 3))
    A("s_lshl_b32 s%d, s%d, 2\ns_add_u32 s%d, s%d, s%d\ns_lshl_b32 s%d, s%d, 9\ns_add_u32 s%d, s%d, %d" % (s_t0, s_b, s_t0, s_t0, s_w, s_t0, s_t0, s_t0, s_t0, L_F))
    A("v_add_u32 v%d, s%d, v%d\nv_xor_b32 v%d, 2048, v%d" % (v_fown, s_t0, T + 3, v_fpar, v_fown))
    A("s_lshl_b32 s%d, s%d, 1\ns_add_u32 s%d, s%d, s%d\nv_mov_b32 v%d, 0x%x" % (s_t0, s_i, s_t0, s_t0, s_w, v_flag, OOB))
    for k in range(nrep): A("v_writelane_b32 v%d, s%d, %d\ns_add_u32 s%d, s%d, 256" % (v_flag, s_t0, k, s_t0, s_t0))
    A("s_cmp_lt_u32 s%d, 2\ns_cbranch_scc1 L_c_fl01\ns_and_b32 s%d, s%d, %d\ns_lshl_b32 s%d, s%d, 8\nv_lshl_add_u32 v%d, v%d, 2, s%d\nL_c_fl01:" % (s_w, s_t0, s_i, nrep - 1, s_t0, s_t0, v_flag, v_lane, s_t0))
    A("s_mul_i32 s%d, s%d, 24576\ns_add_u32 s%d, s%d, %d\nv_add_u32 v%d, s%d, v%d" % (s_t0, s_w, s_t0, s_t0, L_WO, v_word, s_t0, v_l16))
    A("v_mov_b32 v%d, 0x3f80\nv_mov_b32 v%d, 0x3f800000\nv_mov_b32 v%d, 0" % (T + 3, T + 4, T + 5))
    for q in range(4):
        A("v_cmp_eq_u32 vcc, %d, v%d\ns_nop 1\nv_cndmask_b32 v%d, v%d, v%d, vcc" % (2 * q, T + 2, v_sel + q, T + 5, T + 3))
        A("v_cmp_eq_u32 vcc, %d, v%d\ns_nop 1\nv_cndmask_b32 v%d, v%d, v%d, vcc" % (2 * q + 1, T + 2, v_sel + q, v_sel + q, T + 4))
    A("s_lshl_b32 s%d, s%d, 5\ns_add_u32 s%d, s%d, s%d" % (s_t0, s_x, s_t0, s_t0, s_i))
    A("s_lshl_b32 s%d, s%d, 2\ns_add_u32 s%d, s%d, s%d\ns_lshl_b32 s%d, s%d, 11\ns_xor_b32 s%d, s%d, 8192" % (s_t1, s_t0, s_t1, s_t1, s_w, o_qk_own, s_t1, o_qk_par, o_qk_own))
    A("s_lshr_b32 s%d, s%d, 1\ns_lshl_b32 s%d, s%d, 14\ns_lshl_b32 s%d, s%d, 12\ns_add_u32 s%d, s%d, s%d\ns_add_u32 s%d, s%d, %d" % (s_t1, s_t0, s_t1, s_t1, s_t2, s_b, s_t1, s_t1, s_t2, b_x, s_t1, PRB))
    A("s_lshl_b32 s%d, s%d, 7\ns_add_u32 s%d, s%d, %d" % (s_prog, s_t0, s_prog, s_prog, PROG))
    A("s_lshl_b32 s%d, s%d, 2\ns_add_u32 s%d, s%d, s%d\ns_lshl_b32 s%d, s%d, 6" % (s_t1, s_b, s_t1, s_t1, s_w, s_t1, s_t1))
    A("s_lshr_b32 s%d, s%d, 1\ns_add_u32 s%d, s%d, s%d\ns_lshl_b32 s%d, s%d, 9" % (s_t2, s_i, s_t1, s_t1, s_t2, s_t1, s_t1))
    A("s_lshl_b32 s%d, s%d, 18\ns_add_u32 s%d, s%d, %d\ns_add_u32 s%d, s%d, s%d" % (s_t2, s_x, s_t2, s_t2, R_I32, o_i3st, s_t1, s_t2))
    for u in range(1, 4): A("s_add_u32 s%d, s%d, %d" % (o_i3st + u, o_i3st, u * 8192))
    A("s_lshl_b32 s%d, s%d, 13\ns_add_u32 s%d, s%d, s%d\ns_lshl_b32 s%d, s%d, 8\ns_add_u32 s%d, s%d, s%d\ns_add_u32 s%d, s%d, 4096" % (s_t1, s_i, s_t3, s_t1, s_t2, s_t1, s_w, o_i3ld, s_t3, s_t1, o_i3ld2, o_i3ld))
    A("s_lshl_b32 s%d, s%d, 12\ns_add_u32 s%d, s%d, %d" % (s_tagl, s_x, s_tagl, s_tagl, PFL))
    for k in range(4): A("v_mov_b32 v%d, 0\nv_mov_b32 v%d, -1" % (64 + k, 68 + k))
    A("v_mov_b64 v[72:73], s[%d:%d]" % (s_sent, s_sent + 1))
    A("s_lshl_b32 s%d, s%d, 11\ns_add_u32 s%d, s%d, s%d" % (s_t1, s_w, s_t3, s_t3, s_t1))
    ninit = 0
    for sl in range(2):
        A("s_add_u32 s%d, s%d, %d\ns_add_u32 s%d, s%d, %d" % (s_t0, o_qk_own, RING + sl * SLOT, s_t1, s_t3, RING + sl * SLOT))
        for k in range(2):
            A("buffer_store_dwordx4 v[64:67], v%d, %s, s%d offen offset:%d\nbuffer_store_dwordx4 v[68:71], v%d, %s, s%d offen offset:%d" % (v_l16, WS, s_t0, k * 1024, v_l16, WS, s_t1, k * 1024))
        A("s_lshl_b32 s%d, s%d, 14\ns_add_u32 s%d, s%d, %d\nbuffer_store_dword v72, v%d, %s, s%d offen" % (s_t0, s_x, s_t0, s_t0, PBUF + sl * 262144, v_pst, WS, s_t0))
        A("s_lshr_b32 s%d, s%d, 2\ns_add_u32 s%d, s%d, %d\nbuffer_store_dwordx2 v[72:73], v%d, %s, s%d offen" % (s_t0, o_qk_own, s_t0, s_t0, PBUF + sl * 262144 + 131072, v_l8, WS, s_t0))
        ninit += 6
    A("s_lshr_b32 s%d, s%d, 1\ns_lshl_b32 s%d, s%d, 19\ns_and_b32 s%d, s%d, 1\ns_lshl_b32 s%d, s%d, 13\ns_add_u32 s%d, s%d, s%d\ns_add_u32 s%d, s%d, s%d" % (
        s_t0, s_w, s_t0, s_t0, s_t1, s_w, s_t1, s_t1, s_t0, s_t0, s_t1, s_t0, s_t0, b_x))
    A("buffer_store_dwordx4 v[68:71], v%d, %s, s%d offen sc1\nbuffer_store_byte v64, v%d, %s, s%d offen" % (v_l16, WS, s_t0, v_flag, WS, s_tagl))
    ninit += 2
    T = 40
    nxt_after = {0: [5], 1: [6], 2: [7], 3: [8], 4: [9], 5: [10], 6: [11], 8: [12], 9: [13], 12: [14], 13: [15]}
    for ci in range(16):
        extra[0] = ninit if ci < 5 else 0
        consume(ci)
        if stamps and ci in (0, 3, 7, 11, 15): A("s_memtime s[56:57]\ns_waitcnt lgkmcnt(0)\ns_sub_u32 s%d, s56, s94" % (81 + (ci + 1) // 4))
        if ci == 5:
            A("s_cmp_lg_u32 s%d, 0\ns_cbranch_scc1 L_c_nog\nv_mov_b32 v64, 1\nv_mov_b32 v65, 64\ns_mov_b64 exec, 1\nbuffer_atomic_add v64, v65, s[16:19], 0 offen\ns_mov_b64 exec, -1\nL_c_nog:" % s_w)
        for n in nxt_after.get(ci, []):
            assert n == issued
            issue(n); issued += 1
        if ci == 11:
            for fr in range(12):
                for hf in range(2):
                    A("ds_write_b128 v%d, %s offset:%d" % (v_word, r4(V_WV + fr * 8 + 4 * hf), fr * 2048 + hf * 1024))
            for k in range(32): A("v_mov_b32 v%d, v%d" % (V_WO + k, V_WV + 96 + k))
            A("s_waitcnt lgkmcnt(0)")
    A("s_load_dwordx2 s[48:49], s[0:1], 8\ns_mov_b32 s%d, %d\nv_lshlrev_b32 v41, 7, v%d\nv_add_u32 v41, 64, v41\ns_mov_b64 exec, 3" % (s_spin, SPIN, v_lane))
    A("L_c_w:\nbuffer_load_dword v40, v41, s[16:19], 0 offen sc1\ns_sub_u32 s%d, s%d, 1\ns_cbranch_scc1 L_c_fail\ns_waitcnt vmcnt(0)" % (s_spin, s_spin))
    A("v_readlane_b32 s%d, v40, 0\nv_readlane_b32 s%d, v40, 1\ns_cmp_lt_u32 s%d, 68\ns_cbranch_scc1 L_c_w\ns_and_b32 s%d, s%d, 0xffff\ns_cmp_lt_u32 s%d, %d\ns_cbranch_scc1 L_c_w" % (
        s_t0, s_t3, s_t0, s_t0, s_t3, s_t0, NVOTE))
    A("s_mov_b64 exec, -1\ns_lshr_b32 s%d, s%d, 16\ns_cmp_ge_u32 s%d, %d\ns_cselect_b32 s%d, 8192, 0\ns_waitcnt lgkmcnt(0)" % (s_t3, s_t3, s_t3, NVOTE // 2, s_t3))
    srd(a, S_W, 48, 49, 16384)
    A("v_and_b32 v%d, 7, v%d\nv_lshlrev_b32 v%d, 11, v%d\nv_lshrrev_b32 v%d, 4, v%d\nv_lshl_add_u32 v%d, v%d, 3, v%d" % (T, v_lane, T, T, T + 1, v_lane, T, T + 1, T))
    A("s_lshl_b32 s%d, s%d, 6\ns_and_b32 s%d, s%d, 1\ns_lshl_b32 s%d, s%d, 5\ns_add_u32 s%d, s%d, s%d" % (s_t0, s_i, s_t1, s_w, s_t1, s_t1, s_t0, s_t0, s_t1))
    A("buffer_load_dwordx2 v[48:49], v%d, s[12:15], s%d offen" % (T, s_t0))
    A("s_add_u32 s%d, s%d, s%d\ns_add_u32 s%d, s%d, s%d" % (b_x, b_x, s_t3, s_prog, s_prog, s_t3))
    A("s_lshr_b32 s%d, s%d, 1\ns_lshl_b32 s%d, s%d, 7\ns_add_u32 s%d, s%d, %d" % (s_t0, s_h, s_cnt, s_t0, s_cnt, s_cnt, FLAGS + 128 * C_HP))
    A("s_lshl_b32 s%d, s%d, 14\ns_and_b32 s%d, s%d, 1\ns_lshl_b32 s%d, s%d, 12\ns_add_u32 s%d, s%d, s%d" % (s_t0, s_t0, s_t2, s_h, s_t2, s_t2, s_t0, s_t0, s_t2))
    A("s_lshl_b32 s%d, s%d, 18\ns_add_u32 s%d, s%d, s%d\ns_add_u32 s%d, s%d, %d" % (s_t2, s_w, s_t2, s_t2, s_t0, s_t2, s_t2, KX))
    A("s_lshl_b32 s%d, s%d, 14\ns_lshl_b32 s%d, s%d, 12\ns_add_u32 s%d, s%d, s%d\ns_add_u32 s%d, s%d, %d" % (s_t0, s_h, s_t1, s_w, b_kv, s_t0, s_t1, b_kv, b_kv, VT - 8192))
    A("s_cmp_lt_u32 s%d, 2\ns_cselect_b32 s%d, s%d, s%d\ns_add_u32 s%d, s%d, s%d\ns_add_u32 s%d, s%d, %d" % (s_w, b_kv, s_t2, b_kv, b_kv, b_kv, s_t3, m_kv, s_t1, L_KV1))
    A("s_lshl_b32 s%d, s%d, 2\ns_add_u32 s%d, s%d, s%d\ns_lshl_b32 s%d, s%d, 10" % (s_vt, s_b, s_vt, s_vt, s_w, s_vt, s_vt))
    A("s_lshr_b32 s%d, s%d, 1\ns_add_u32 s%d, s%d, s%d\ns_add_u32 s%d, s%d, s%d\ns_add_u32 s%d, s%d, %d" % (s_t1, s_vt, b_km, s_t0, s_t1, b_km, b_km, s_t3, b_km, b_km, KM))
    A("s_lshl_b32 s%d, s%d, 14\ns_add_u32 s%d, s%d, %d" % (b_p, s_x, b_p, b_p, PBUF))
    A("s_add_u32 s%d, s%d, %d\nv_add_u32 v%d, s%d, v%d" % (s_t0, s_vt, L_KV1, v_avx, s_t0, v_l16))
    def wait_kv(tag, off):
        A("v_mov_b32 v40, 0\nL_c_kw%s:" % tag)
        A("buffer_load_dword v41, v40, %s, s%d offen sc1" % (WS, off))
        A("s_sub_u32 s%d, s%d, 1\ns_cbranch_scc1 L_c_fail\ns_waitcnt vmcnt(0)" % (s_spin, s_spin))
        A("v_and_b32 v41, 15, v41\nv_cmp_ne_u32 vcc, 8, v41\ns_cbranch_vccnz L_c_kw%s" % tag)
    def signal(val):
        A("v_mov_b32 v40, 0\nv_mov_b32 v41, %s\ns_mov_b64 exec, 1\nbuffer_store_dword v41, v40, %s, s%d offen sc1\ns_mov_b64 exec, -1" % (val, WS, s_prog))
    if stamps: A("s_memtime s[56:57]\ns_waitcnt lgkmcnt(0)\ns_sub_u32 s86, s56, s94")
    wait_kv("0", s_cnt)
    if stamps: A("s_memtime s[56:57]\ns_waitcnt lgkmcnt(0)\ns_sub_u32 s87, s56, s94")
    def kv_ld(js, off=o_kv): return ["buffer_load_dwordx4 v%d, %s, s%d offen offset:%d sc1 lds" % (v_l16, WS, off, j * 1024) for j in js]
    kv_flip = "s_xor_b32 s%d, s%d, %d" % (m_kv, m_kv, L_KV0 ^ L_KV1)
    for x in ["s_mov_b32 m0, s%d" % m_kv, kv_flip] + kv_ld(range(4), b_kv): A(x)
    J1 = list(range(kvw[0])); J2 = list(range(kvw[0], 4))
    if nokv: J1 = J2 = []
    RD = 60
    for k in range(2): A("v_lshlrev_b32 v%d, 16, v%d\nv_and_b32 v%d, 0xffff0000, v%d" % (RD + 2 * k, 48 + k, RD + 2 * k + 1, 48 + k))
    A("s_mov_b32 s14, %d\ns_mov_b32 s15, 0x00020000\ns_mov_b32 s%d, 0\ns_mov_b32 s50, 0x3f803f80\ns_mov_b32 s51, 0x3f803f80" % (SLOT, s_step))
    def seg_off(dst, base, delta):
        A("s_add_u32 s%d, s%d, %d\ns_lshl_b32 s%d, s%d, 11\ns_and_b32 s%d, s%d, 8192\ns_xor_b32 s%d, s%d, s%d\ns_lshl_b32 s%d, s%d, 19\ns_add_u32 s%d, s%d, s%d" % (
            s_t0, s_step, delta, s_t1, s_t0, s_t1, s_t1, s_t1, s_t1, base, s_t0, s_t0, dst, s_t0, s_t1))
    def book():
        A("s_and_b32 s%d, s%d, 3\ns_lshl_b32 s%d, s%d, 18\ns_add_u32 s%d, s%d, s%d\ns_xor_b32 s%d, s%d, 524288" % (s_t0, s_step, s_t1, s_t0, o_pl, s_t1, b_p, o_pp, o_pl))
        A("s_lshr_b32 s%d, s%d, 2\ns_add_u32 s%d, s%d, s%d\ns_add_u32 s%d, s%d, %d\ns_xor_b32 s%d, s%d, 2048" % (o_qs, o_qk_own, o_qs, o_qs, s_t1, o_qs, o_qs, PBUF + 131072, o_qr, o_qs))
        A("s_lshl_b32 s%d, s%d, 10\ns_add_u32 s%d, s%d, s%d\ns_lshr_b32 s%d, s%d, 1\ns_add_u32 s%d, s%d, 1" % (s_t1, s_w, o_plf, o_pl, s_t1, s_en, s_t0, s_tag, s_step))
        A("s_and_b32 s%d, s%d, 1\ns_lshl_b32 s%d, s%d, 19\ns_add_u32 s%d, s%d, s%d" % (s_t0, s_step, s_t1, s_t0, o_xs, s_t1, b_x))
        A("s_lshl_b32 s%d, s%d, 20\ns_add_u32 s%d, s%d, %d\ns_add_u32 s12, s8, s%d\ns_addc_u32 s13, s9, 0" % (s_t0, s_t0, s_t0, s_t0, RING, s_t0))
        seg_off(o_km, b_km, 0); seg_off(o_kv, b_kv, 1)
    def prep():
        A("v_subrev_u32 v45, s%d, v%d" % (s_vt, v_avx))
        for k in range(8): A("ds_read_b128 %s, v45 offset:%d" % (r4(64 + 4 * k), k * 1024))
        A("v_mov_b32 v%d, s%d" % (M + 3, s_tag))
        for k in range(6): A(z(v_aq + 2 * k))
    ppoison = ["v_mov_b64 v[40:41], s[%d:%d]" % (s_sent, s_sent + 1), "buffer_store_dword v40, v%d, %s, s%d offen" % (v_pst, WS, o_pp),
               "s_xor_b32 s%d, s%d, 524288" % (s_t0, o_qs), "buffer_store_dwordx2 v[40:41], v%d, %s, s%d offen" % (v_l8, WS, s_t0)]
    book()
    A("s_waitcnt vmcnt(0)\ns_barrier")
    if stamps:
        A("s_memtime s[56:57]\ns_memrealtime s[58:59]")
        for k in range(4): A("s_mov_b32 s%d, 0" % (96 + k))
        A("s_waitcnt lgkmcnt(0)")
    AR = 40; NR = 6
    def smf(m, f): A("v_smfmac_f32_16x16x64_bf16 %s, %s, %s, v%d" % (r4((v_aq, v_ak, v_av)[m]), r4(AR + 4 * (f % NR)), wtile(m, f % 16), v_idx))
    def qrd(lq, f): lq.op("ds_read_b128 %s, v%d offset:%d" % (r4(AR + 4 * (f % NR)), v_l16, L_PL + (f % 16) * 1024), ("A", f))
    def fetch_pre(): A("s_lshl_b32 m0, s%d, 10\ns_mov_b32 s%d, s%d" % (s_w, s_t1, o_plf))
    def fetch():
        for j in range(4):
            A("buffer_load_dwordx4 v%d, %s, s%d offen sc1 lds" % (v_l16, WS, s_t1))
            if j < 3: A("s_add_u32 m0, m0, 4096\ns_add_u32 s%d, s%d, 4096" % (s_t1, s_t1))
    A("s_cmp_ge_u32 s%d, 2\ns_cbranch_scc1 L_c_idle3" % s_w)
    prep()
    for x in ppoison: A(x)
    HM = "s[90:91]"
    A("s_mov_b32 s90, 0xff00ff00\ns_mov_b32 s91, 0xff00ff00")
    A("v_cndmask_b32 v20, v60, v62, %s\nv_cndmask_b32 v21, v61, v63, %s\nv_cvt_pk_bf16_f32 v46, v20, v21" % (HM, HM))
    A("L_c_xok:")
    A("buffer_store_dword v46, v%d, %s, s%d offen" % (v_pst, WS, o_pl))
    A("buffer_store_byte v%d, v%d, %s, s%d offen" % (M + 3, v_flag, WS, s_tagl))
    stamp(1)
    A("L_c_b0:")
    if pbar: A("s_barrier")
    if stamps == 3:
        A("s_waitcnt lgkmcnt(0)")
        A("s_mul_i32 s%d, s%d, 64\ns_add_u32 s%d, s%d, %d\ns_cmp_lg_u32 s%d, %d\ns_cselect_b32 s%d, %d, s%d\nv_mov_b32 v60, s%d" % (
            s_t0, s_step, s_t0, s_t0, L_TR, s_w, tw, s_t0, L_DUM, s_t0, s_t0))
        for k in range(14):
            A("v_mov_b32 v61, s%d\nds_write_b32 v60, v61 offset:%d" % (60 + 2 * k if k < 10 else 86 + k, 4 * k))
    fetch_pre()
    A("L_c_b0x:")
    A("s_barrier")
    if f16: A("s_mov_b64 exec, -1")
    stamp(9)
    if stamps == 3: A("s_memrealtime s[64:65]")
    fetch()
    A("s_mov_b32 m0, s%d\ns_mov_b32 s%d, s%d\ns_waitcnt vmcnt(3) lgkmcnt(0)" % (m_kv, s_e, s_en))
    A("L_c_b1:")
    A("s_barrier")
    stamp(0)
    lq = LQ(a)
    for f in range(4): qrd(lq, f)
    slow = kv_ld(J1); nj = 0; rdn = 4
    for f in range(11):
        lq.need(("A", f)); smf(0, f)
        while rdn <= min(f + NR - 1, 15) and f > 0:
            if rdn % 4 == 0: A("s_waitcnt vmcnt(%d)\ns_barrier" % (3 - rdn // 4 + nj))
            qrd(lq, rdn); rdn += 1
        smf(1, f)
        if slow and f in spos:
            A(slow.pop(0)); nj += 1
    assert not slow
    for f in range(11, 16):
        lq.need(("A", f)); smf(0, f)
    smf(1, 11); qrd(lq, 16); nop(a, 1); smf(1, 12); qrd(lq, 17); nop(a, 1); smf(1, 13); qrd(lq, 18)
    A("v_permlane32_swap_b32 v28, v30")
    smf(1, 14)
    A("v_permlane32_swap_b32 v29, v31")
    smf(1, 15)
    A("v_add_f32 v28, v28, v30\nv_add_f32 v29, v29, v31")
    lq.need(("A", 16)); smf(2, 16)
    A("v_cmp_u_f32 vcc, v28, v29\nv_cvt_pk_bf16_f32 v%d, v28, v29" % (KMP + 1))
    qrd(lq, 19); qrd(lq, 20)
    A("v_permlane32_swap_b32 v32, v34\nv_permlane32_swap_b32 v33, v35")
    A("v_pk_add_f32 v[32:33], v[32:33], v[34:35]\nv_cvt_pk_bf16_f32 v%d, v32, v33" % KMP)
    A("s_cbranch_vccnz L_c_nanq\nL_c_qok:")
    A("buffer_store_dwordx2 %s, v%d, %s, s%d offen" % (r2(KMP), v_l8, WS, o_qs))
    stamp(3)
    lq.op("ds_write_b64 v%d, %s" % (v_fown, r2(KMP)))
    MK = "s[4:5]"
    chk = lambda r: "v_cmp_eq_u32 vcc, s%d, v%d\nv_cmp_eq_u32 %s, s%d, v%d\ns_or_b64 vcc, vcc, %s" % (s_sent, r, MK, s_sent, r + 1, MK)
    ldq = lambda r: "buffer_load_dwordx2 %s, v%d, %s, s%d offen sc1" % (r2(r), v_l8, WS, o_qr)
    qrd(lq, 21)
    for f in range(1, 16):
        lq.need(("A", 16 + f)); smf(2, 16 + f)
        if f + NR - 1 < 16: qrd(lq, 16 + f + NR - 1)
        if f == 2: A("v_mov_b64 %s, s[%d:%d]" % (r2(M), s_sent, s_sent + 1))
        if f in pq: A(ldq(([28, 22] if q2 else [28])[pq.index(f)] if pq.index(f) <= q2 else M))
    stamp("ve")
    A("s_waitcnt vmcnt(%d)\nds_write_b64 v%d, v[28:29]\n" % (len(pq) - 1, v_fpar) + chk(28) + "\ns_cbranch_vccnz L_c_qretry")
    A("L_c_qgot:")
    lq.all()
    A("s_barrier")
    stamp(4)
    lq = LQ(a)
    for kp in range(4):
        for hf in range(2): lq.op("ds_read_b64_tr_b16 %s, v%d offset:%d" % (r2(40 + 4 * kp + 2 * hf), v_l8, L_F + kp * 1024 + hf * 512), ("F", kp))
    Tm, T0, T1 = 28, 32, 56
    side = {(0, 1): ["v_permlane32_swap_b32 v36, v38"], (0, 2): ["v_permlane32_swap_b32 v37, v39"],
            (1, 0): ["v_add_f32 v36, v36, v38"], (1, 1): ["v_add_f32 v37, v37, v39"], (1, 2): ["v_cvt_pk_bf16_f32 v%d, v36, v37" % (M + 2)],
            (2, 0): ["buffer_store_dwordx2 %s, v%d, %s, s%d offen offset:1024" % (r2(M + 2), v_l8, CUR, o_qk_own)],
            (2, 1): ["v_xor_b32 v60, 4096, v%d" % v_avx, "s_cmp_eq_u32 s%d, %d" % (s_step, nsteps - 1)], (2, 2): ["v_mov_b32 v%d, v%d" % (KMP + 1, M + 2)],
            (3, 0): [("ds_read_b128 v[40:43], v%d offset:8192" % v_avx, "vx")], (3, 1): [("ds_read_b128 v[44:47], v60 offset:8192", "vx")]}
    for kp in range(4):
        lq.need(("F", kp))
        F = r4(40 + 4 * kp)
        for j, (D, Aop) in enumerate(((Tm, F), (T0, r4(64 + 4 * kp)), (T1, r4(80 + 4 * kp)))):
            A("v_mfma_f32_16x16x32_bf16 %s, %s, %s, %s" % (r4(D), Aop, F, "0" if kp == 0 else r4(D)))
            for x in side.get((kp, j), []):
                if isinstance(x, tuple): lq.op(*x)
                else: A(x)
    BUF = [64, 72, 80, 88, 56]
    def word(fr, buf):
        for hf in range(2): lq.op("ds_read_b128 %s, v%d offset:%d" % (r4(BUF[buf] + 4 * hf), v_word, fr * 2048 + hf * 1024), ("W", fr))
    stamp("se")
    A("s_cbranch_scc1 L_c_last")
    A(("s_waitcnt vmcnt(%d)" % (len(pq) - 1) if q2 else "s_nop 0") + "\nv_mov_b64 v[20:21], s[50:51]\nv_mov_b64 v[22:23], s[50:51]\nv_mov_b64 v[36:37], %s\nv_mov_b32 v53, 0" % r2(M + 2))
    A("v_max3_f32 v61, v28, v29, v32\nv_max3_f32 v62, v33, v34, v35")
    A("v_max3_f32 v61, v56, v57, v61\nv_max3_f32 v62, v58, v59, v62\nv_max_f32 v61, v61, v62")
    A("v_mov_b32 v62, v61")
    word(0, 0)
    A("v_permlane32_swap_b32 v61, v62\nv_max_f32 v61, v61, v62")
    A("v_mov_b32 v62, v61")
    word(1, 1)
    A("v_permlane16_swap_b32 v61, v62\nv_max_f32 v61, v61, v62")
    A("v_mul_f32 v61, s%d, v61" % s_scale)
    stamp("mx")
    ldv = lambda r: "buffer_load_dwordx2 %s, v%d, %s, s%d offen offset:1024 sc1" % (r2(r), v_l8, CUR, o_qk_par)
    if vpos == 0: A(ldv(38))
    regs = [32, 33, 34, 35, 56, 57, 58, 59]
    for r in regs: A("v_fma_f32 v%d, v%d, s%d, -v61" % (r, r, s_scale))
    if vpos == 1: A(ldv(38))
    for r in regs: A("v_exp_f32 v%d, v%d" % (r, r))
    A("v_fma_f32 v28, v28, s%d, -v61" % s_scale)
    A("v_cvt_pk_bf16_f32 v48, v32, v33\nv_cvt_pk_bf16_f32 v49, v34, v35\nv_cvt_pk_bf16_f32 v50, v56, v57\nv_cvt_pk_bf16_f32 v51, v58, v59")
    A("v_fma_f32 v29, v29, s%d, -v61" % s_scale)
    lq.need("vx")
    LS, O0, O1 = 60, 56, 32
    stamp(5)
    A("v_mfma_f32_16x16x32_bf16 %s, %s, v[48:51], 0" % (r4(LS), r4(v_ones)))
    A("v_exp_f32 v28, v28")
    A("v_mfma_f32_16x16x32_bf16 %s, v[40:43], v[48:51], 0" % r4(O0))
    A("v_exp_f32 v29, v29")
    if v2: A(ldv(30))
    A("v_mfma_f32_16x16x32_bf16 %s, v[44:47], v[48:51], 0" % r4(O1))
    A("v_mov_b64 v[54:55], 0\nv_cvt_pk_bf16_f32 v52, v28, v29")
    A("s_waitcnt vmcnt(%d)\nv_cmp_ne_u32 vcc, s%d, v39" % (1 if v2 else 0, s_tag))
    A("v_mfma_f32_16x16x32_bf16 %s, %s, v[52:55], %s" % (r4(LS), r4(v_ones), r4(LS)))
    A("s_cbranch_vccnz L_c_vretry\nL_c_vok:")
    A("v_mfma_f32_16x16x32_bf16 %s, v[36:39], v[52:55], %s" % (r4(O0), r4(O0)))
    A("v_mfma_f32_16x16x32_bf16 %s, v[38:41], v[52:55], %s" % (r4(O1), r4(O1)))
    stamp("pv")
    ACC = [20, 32, 28, 36]
    word(2, 2)
    A(z(28) + "\n" + z(22) + "\nv_xor_b32 v%d, %d, v%d" % (v_avx, L_KV0 ^ L_KV1, v_avx))
    A("v_rcp_f32 v48, v%d" % LS)
    A(z(20))
    A("v_pk_mul_f32 v[56:57], v[56:57], v[48:49] op_sel_hi:[1,0]\nv_pk_mul_f32 v[58:59], v[58:59], v[48:49] op_sel_hi:[1,0]")
    A("v_pk_mul_f32 v[32:33], v[32:33], v[48:49] op_sel_hi:[1,0]\nv_pk_mul_f32 v[34:35], v[34:35], v[48:49] op_sel_hi:[1,0]")
    A("v_cvt_pk_bf16_f32 v52, v56, v57\nv_cvt_pk_bf16_f32 v53, v58, v59\nv_cvt_pk_bf16_f32 v54, v32, v33\nv_cvt_pk_bf16_f32 v55, v34, v35")
    lq.op("ds_write_b128 v%d, v[52:55]" % v_owr, "ow")
    stamp("ow")
    word(3, 3)
    word(4, 4)
    km_store = "buffer_store_dwordx2 %s, v%d, %s, s%d offen sc1" % (r2(KMP), v_l8, WS, o_km)
    nw2 = 0
    if not nokm:
        A(km_store); nw2 += 1
    A("\n".join(z(r) for r in (32, 34, 38, 36)))
    lq.need("ow")
    A("s_barrier")
    stamp(6)
    for k in range(4): lq.op("ds_read_b128 %s, v%d offset:%d" % (r4(40 + 4 * k), v_ord, k * 512), ("o", k))
    for x in kv_ld(J2): A(x)
    nw2 += len(J2)
    A(kv_flip + "\ns_add_u32 s%d, s%d, 1" % (s_step, s_step))
    def post(u):
        t = ACC[u]
        return ["v_cvt_pk_bf16_f32 v%d, v%d, v%d" % (t, t, t + 1), "v_cvt_pk_bf16_f32 v%d, v%d, v%d" % (t + 1, t + 2, t + 3),
                "v_and_or_b32 v%d, v%d, -2, s%d" % (t, t, s_e)] + (["v_and_or_b32 v%d, v%d, -2, s%d" % (t + 1, t + 1, s_e)] if rf else []) + [
                "buffer_store_dwordx2 %s, v%d, %s, s%d offen" % (r2(t), v_l8 if lin else v_i3st, CUR, o_i3st + u)]
    where = {k: k for k in range(5)}
    nxt = [5]
    def wmf(fr):
        u, kp = fr >> 2, fr & 3
        lq.need(("o", kp))
        if fr < 12: lq.need(("W", fr))
        B = r8(V_WO + 8 * (fr - 12)) if fr >= 12 else r8(BUF[where[fr]])
        A("v_smfmac_f32_16x16x64_bf16 %s, %s, %s, v%d" % (r4(ACC[u]), r4(40 + 4 * kp), B, v_idx))
        if fr < 12 and nxt[0] < 12:
            where[nxt[0]] = where[fr]; word(nxt[0], where[fr]); nxt[0] += 1
    for fr in (0, 1, 2, 3, 4, 12, 13, 14, 15): wmf(fr)
    A("s_waitcnt vmcnt(%d)\n" % nw2 + z(30))
    for x in post(0): A(x)
    wmf(5); wmf(6)
    for x in post(3): A(x)
    for fr in (7, 8, 9, 10, 11): wmf(fr)
    A("s_cmp_ge_u32 s%d, 2" % s_w)
    for x in post(1): A(x)
    nop(a, 2 if rf else 3)
    for x in post(2): A(x)
    stamp(7)
    A("s_cbranch_scc1 L_c_idle")
    SETS = [64, 80]
    def rloads(st):
        for k in range(4): A("buffer_load_dwordx4 %s, v%d, %s, s%d offen offset:%d sc1" % (r4(SETS[st] + 4 * k), v_i3l, CUR, o_i3ld if k < 2 else o_i3ld2, (k & 1) * 2048))
    def rproc(st):
        for k in range(4):
            d = SETS[st] + 4 * k
            A("s_waitcnt vmcnt(%d)" % (4 * len(rg) - 1 - k))
            A("v_mfma_f32_16x16x32_bf16 %s, %s, %s, %s" % (r4(RD), r4(d), r4(v_sel), "0" if k == 0 else r4(RD)))
            A("v_bitop3_b32 v%d, v%d, v%d, s%d bitop3:0x7e" % (40 + k, d, d + 2, s_e))
            if k == 2: A("v_or3_b32 v40, v40, v41, v42")
        A("v_or_b32 v40, v40, v43\nv_and_b32 v40, 1, v40\nv_cmp_ne_u32 vcc, 0, v40")
        nop(a, 3)
    def spaced(work, gap):
        for _ in range(gap):
            if not work: break
            A(work.pop(0)); gap -= 1
        nop(a, gap)
    def grab(f):
        n0 = len(a.lines); f(); w = [x.strip() for x in a.lines[n0:]]; del a.lines[n0:]
        return w
    XP = [58, 56, 54, 52][:len(xg)]; NXP = len(XP)
    work = [z(r) for r in XP] + ["s_xor_b32 s%d, s%d, 262144" % (o_xr, o_xs)]
    if rf:
        D0 = SETS[0]
        def r4l():
            for k in range(4): A("buffer_load_dwordx4 %s, v%d, %s, s%d offen offset:%d sc1" % (r4(D0 + 4 * k), v_i3l, CUR, o_i3ld if k < 2 else o_i3ld2, (k & 1) * 2048))
        for g in rf[:-1]:
            spaced(work, g); r4l()
        for x in work: A(x)
        A("s_waitcnt vmcnt(%d)" % (4 * (len(rf) - 2)))
        A("L_c_rl:")
        for k in range(8):
            A("v_bitop3_b32 v%d, v%d, v%d, s%d bitop3:0x7e" % (40 + k, D0 + 2 * k, D0 + 2 * k + 1, s_e))
            if k & 1: A("v_mfma_f32_16x16x32_bf16 %s, %s, %s, %s" % (r4(RD), r4(D0 + 2 * k - 2), r4(v_sel), "0" if k == 1 else r4(RD)))
        A("v_or3_b32 v40, v40, v41, v42\nv_or3_b32 v43, v43, v44, v45\nv_or3_b32 v40, v40, v46, v47\nv_or_b32 v40, v40, v43\nv_and_b32 v40, 1, v40\nv_cmp_ne_u32 vcc, 0, v40\ns_nop 0")
        A("s_cbranch_vccnz L_c_r1")
    else:
        spaced(work, rg[0]); rloads(0); stamp("ri")
        if len(rg) > 1: spaced(work, rg[1]); rloads(1)
        rproc(0)
        A("s_cbranch_vccnz L_c_r1")
    A("L_c_rok:")
    A("v_cndmask_b32 v20, v60, v62, %s\nv_cndmask_b32 v21, v61, v63, %s" % (HM, HM))
    if x16:
        A("v_cvt_pk_bf16_f32 v22, v20, v21\nv_and_or_b32 v22, v22, -2, s%d\nbuffer_store_dword v22, v%d, %s, s%d offen sc1" % (s_e, v_xo, WS, o_xs))
    else:
        for k in range(2): A("v_and_or_b32 v%d, v%d, -2, s%d" % (20 + k, 20 + k, s_e))
        A("buffer_store_dwordx2 v[20:21], v%d, %s, s%d offen sc1" % (v_xo, WS, o_xs))
    stamp(8)
    xat = lambda r: "buffer_atomic_add_x2 %s, v%d, %s, s%d offen sc0" % (r2(XP[r]), v_xo, WS, o_xr)
    if x16: xat = lambda r: "buffer_atomic_add v%d, v%d, %s, s%d offen sc0" % (XP[r], v_xo, WS, o_xr)
    work = grab(book)
    order = []
    def spaced2(gap):
        for _ in range(gap):
            if not work: break
            x = work.pop(0)
            if x == "BAR": x = "s_waitcnt vmcnt(%d)\ns_barrier" % (len(order) + 1)
            A(x); gap -= 1
            if x.startswith("buffer_"): order.append("s")
        nop(a, gap)
    work += ["BAR"] + grab(prep) + ppoison
    for r in range(NXP):
        spaced2(xg[r]); A(xat(r)); order.append(r)
    spaced2(len(work))
    stamp("xw")
    def xuse(r):
        x = XP[r]
        k = order.index(r)
        A("s_waitcnt vmcnt(%d)" % (len(order) - 1 - k)); del order[:k + 1]
        if x16:
            A("v_and_b32 v42, 1, v%d\nv_cmp_ne_u32 vcc, s%d, v42\nv_and_b32 v%d, 0xffff0000, v%d\nv_lshlrev_b32 v%d, 16, v%d" % (x, s_e, x + 1, x, x, x))
        else: A("v_bitop3_b32 v42, v%d, v%d, s%d bitop3:0x7e\nv_and_b32 v42, 1, v42\nv_cmp_ne_u32 vcc, 0, v42" % (x, x + 1, s_e))
        A("v_pk_add_f32 v[48:49], v[20:21], %s\nv_cvt_pk_bf16_f32 v46, v48, v49\ns_cbranch_vccz L_c_xok" % r2(x))
    for r in range(NXP):
        xuse(r)
        cnt(2)
        if r >= xre:
            A(z(XP[r]) + "\n" + xat(r)); order.append(r)
    A("L_c_xl:")
    order[:] = [o for o in order if o != "s"]
    for r in range(xre, NXP):
        xuse(r)
        cnt(2)
        A(z(XP[r]) + "\n" + xat(r)); order.append(r)
    A("s_sub_u32 s%d, s%d, 1\ns_cbranch_scc0 L_c_xl\ns_branch L_c_fail" % (s_spin, s_spin))
    A("L_c_r1:")
    if rf:
        r4l(); cnt(0); nop(a, rf[-1])
        A("s_waitcnt vmcnt(24)\ns_sub_u32 s%d, s%d, 1\ns_cbranch_scc0 L_c_rl\ns_branch L_c_fail" % (s_spin, s_spin))
    for st in range(0 if rf else len(rg)):
        cnt(0)
        rloads(st)
        rproc((st + 1) % len(rg))
        A("s_cbranch_vccz L_c_rok")
    if not rf: A("s_sub_u32 s%d, s%d, 1\ns_cbranch_scc0 L_c_r1\ns_branch L_c_fail" % (s_spin, s_spin))
    A("L_c_idle:")
    book()
    A("s_waitcnt vmcnt(0)\ns_barrier")
    A("s_cmp_lg_u32 s%d, 3\ns_cbranch_scc1 L_c_idle3" % s_w)
    signal("s%d" % s_step)
    A("s_add_u32 s%d, s%d, 1\ns_and_b32 s%d, s%d, 7\ns_cbranch_scc1 L_c_idle3\ns_cmp_ge_u32 s%d, 64\ns_cbranch_scc1 L_c_idle3" % (s_t1, s_step, s_t0, s_t1, s_t1))
    A("s_lshl_b32 s%d, s%d, 8\ns_add_u32 s%d, s%d, s%d" % (s_t0, s_t1, s_t0, s_t0, s_cnt))
    wait_kv("n", s_t0)
    A("L_c_idle3:")
    prep()
    for x in (ppoison[0], ppoison[2], ppoison[3]): A(x)
    A("s_cmp_lg_u32 s%d, 2\ns_cbranch_scc1 L_c_b0" % s_w)
    fetch_pre()
    A("v_mov_b32 v46, 0")
    if f16: A("s_mul_i32 s%d, s%d, 0x01010101\ns_mov_b64 exec, 0xffff" % (s_t2, s_tag))
    if pbar: A("s_barrier")
    A("L_c_fp:")
    A("s_waitcnt vmcnt(%d)" % fdepth)
    for k in range(fun):
        A("buffer_load_dword v46, v%d, %s, s%d offen sc1" % (v_flag, WS, s_tagl))
        for _ in range(fchk): A("v_cmp_ne_u32 vcc, s%d, v46\ns_cbranch_vccz L_c_b0x" % s_t2)
    cnt(1)
    A("s_sub_u32 s%d, s%d, 1\ns_cbranch_scc0 L_c_fp\ns_branch L_c_fail" % (s_spin, s_spin))
    A("L_c_qretry:")
    if q2: A("s_waitcnt vmcnt(%d)\nds_write_b64 v%d, v[22:23]\n" % (len(pq) - 2, v_fpar) + chk(22) + "\ns_cbranch_vccz L_c_qgot")
    A("L_c_qr1:")
    A(ldq(M) + "\ns_waitcnt vmcnt(24)\n" + chk(M) + "\ns_cbranch_vccz L_c_qr2")
    cnt(3)
    A("s_sub_u32 s%d, s%d, 1\ns_cbranch_scc0 L_c_qr1\ns_branch L_c_fail" % (s_spin, s_spin))
    A("L_c_qr2:\nds_write_b64 v%d, %s\ns_branch L_c_qgot" % (v_fpar, r2(M)))
    A("L_c_vretry:")
    if v2:
        cnt(3)
        A("s_waitcnt vmcnt(0)\nv_mov_b64 v[38:39], v[30:31]\nv_cmp_ne_u32 vcc, s%d, v31\ns_cbranch_vccz L_c_vok" % s_tag)
    A("L_c_vr2:")
    A(ldv(38))
    cnt(3)
    A("s_sub_u32 s%d, s%d, 1\ns_cbranch_scc1 L_c_fail\ns_waitcnt vmcnt(0)\nv_cmp_ne_u32 vcc, s%d, v39\ns_cbranch_vccnz L_c_vr2\ns_branch L_c_vok" % (s_spin, s_spin, s_tag))
    A("L_c_nanq:")
    if stamps: A("s_add_u32 s97, s97, 0x10000")
    A("v_mov_b32 v34, -1")
    for f in range(16):
        A("ds_read_b128 v[20:23], v%d offset:%d\ns_waitcnt lgkmcnt(0)" % (v_l16, L_PL + f * 1024))
        for k in range(4): A("v_xor_b32 v%d, s%d, v%d" % (20 + k, s_sent, 20 + k))
        A("v_min3_u32 v34, v20, v21, v34\nv_min3_u32 v34, v22, v23, v34")
    A("v_cmp_eq_u32 vcc, 0, v34\ns_cbranch_vccz L_c_qok")
    A("s_sub_u32 s%d, s%d, 1\ns_cbranch_scc1 L_c_fail" % (s_spin, s_spin))
    for k in range(6): A(z(v_aq + 2 * k))
    fetch_pre()
    A("s_barrier")
    fetch()
    A("s_mov_b32 m0, s%d\ns_waitcnt vmcnt(0)\ns_branch L_c_b1" % m_kv)
    A("L_c_last:")
    A(km_store)
    A("s_waitcnt vmcnt(0)\ns_barrier\ns_cmp_lg_u32 s%d, 0\ns_cbranch_scc1 L_c_done" % s_w)
    signal("64")
    A("s_branch L_c_done")
    A("L_c_fail:\ns_mov_b64 exec, -1")
    A("v_mov_b32 v40, 1\nv_mov_b32 v41, 96\nbuffer_atomic_add v40, v41, s[16:19], 0 offen")
    A("L_c_done:")
    A("s_waitcnt vmcnt(0)")
    if stamps:
        A("s_memtime s[60:61]\ns_memrealtime s[62:63]\ns_waitcnt lgkmcnt(0)\ns_sub_u32 s60, s60, s56\ns_sub_u32 s61, s62, s58")
        A("s_sub_u32 s62, s56, s94")
        A("s_lshl_b32 s%d, s%d, 5\ns_add_u32 s%d, s%d, s%d\ns_lshl_b32 s%d, s%d, 2\ns_add_u32 s%d, s%d, s%d\ns_lshl_b32 s%d, s%d, 7\ns_add_u32 s%d, s%d, %d" % (
            s_t0, s_x, s_t0, s_t0, s_i, s_t0, s_t0, s_t0, s_t0, s_w, s_t0, s_t0, s_t0, s_t0, FLAGS + MB))
        for k, sr in enumerate([60, 61, 62] + list(range(80, 90)) + [96, 97, 98, 99]): A("v_mov_b32 v%d, s%d" % (40 + k, sr))
        if stamps == 3:
            A("s_cmp_lg_u32 s%d, %d\ns_cbranch_scc1 L_c_notr" % (s_w, tw))
            A("s_lshl_b32 s%d, s%d, 5\ns_add_u32 s%d, s%d, s%d\ns_lshl_b32 s%d, s%d, 12\ns_add_u32 s%d, s%d, %d" % (s_t1, s_x, s_t1, s_t1, s_i, s_t1, s_t1, s_t1, s_t1, FLAGS + 2 * MB))
            A("v_add_u32 v64, %d, v%d" % (L_TR, v_l16))
            for k in range(4):
                A("ds_read_b128 v[68:71], v64 offset:%d\ns_waitcnt lgkmcnt(0)\nbuffer_store_dwordx4 v[68:71], v%d, %s, s%d offen offset:%d\ns_waitcnt vmcnt(0)" % (k * 1024, v_l16, WS, s_t1, k * 1024))
            A("L_c_notr:")
            A("v_mov_b32 v43, s56\nv_mov_b32 v44, s58")
        A("v_mov_b32 v60, 0\ns_mov_b64 exec, 1")
        for k in range(5): A("buffer_store_dwordx4 %s, v60, %s, s%d offen offset:%d" % (r4(40 + 4 * k), WS, s_t0, 16 * k))
        A("s_waitcnt vmcnt(0)")

def emit_role_prologue(a, nwg=256, early=None):
    a("""
    s_cmp_ge_u32 s2, {n}
    s_cbranch_scc1 L_end
    s_load_dwordx4 s[4:7], s[0:1], 96
    s_memtime s[94:95]
    s_getreg_b32 s{xcc}, hwreg(HW_REG_XCC_ID)
    s_and_b32 s{xcc}, s{xcc}, 15
    v_and_b32 v1, 63, v0
    v_lshrrev_b32 v2, 6, v0
    s_waitcnt lgkmcnt(0)
    """.format(n=nwg, xcc=s_xcc))
    srd(a, S_WS, 6, 7, WS_BYTES)
    srd(a, S_DBG, 4, 5, 256)
    if early: early()
    a("""
    v_readfirstlane_b32 s{w}, v2
    v_mov_b32 v3, 1
    s_lshl_b32 s{i}, s{xcc}, 2
    v_mov_b32 v4, s{i}
    v_mov_b32 v5, {misc}
    v_cmp_eq_u32 vcc, 0, v0
    s_and_saveexec_b64 s[48:49], vcc
    s_cbranch_execz L_skipt
    buffer_atomic_add v3, v4, s[16:19], 0 offen sc0
    s_waitcnt vmcnt(0)
    ds_write_b32 v5, v3
    s_waitcnt lgkmcnt(0)
    L_skipt:
    s_mov_b64 exec, s[48:49]
    s_barrier
    ds_read_b32 v3, v5
    s_waitcnt lgkmcnt(0)
    v_readfirstlane_b32 s{i}, v3
    s_barrier
    """.format(w=s_w, i=s_i, xcc=s_xcc, misc=L_MISC))
```

```python
import heapq
from layout import *
NX = 6
T_LN1, T_QA, T_KA, T_VA, T_KB, T_VB, T_SATT, T_SO, T_SLN, T_SGU, T_SD, T_SFIN, T_PF = range(13)
NAMES = "LN1 QA KA VA KB VB SATT SO SLN SGU SD SFIN PF".split()
C_LN1 = 0
C_Q = 8
C_NONE = 15
C_LNF = 144
C_HP = 16
ZERO_BYTES = 49152 + 131072 + 16384
PSLAB = 4 * MB
PART_O = PART; PART_D = PART + 4 * PSLAB
class Task:
    def __init__(s, typ, xcd, dur, prio, wait, target, sig, inc, p0=0, p1=0, p2=0, p3=0, tag=0):
        s.typ, s.xcd, s.dur, s.prio, s.wait, s.target, s.sig, s.inc, s.p, s.tag = typ, xcd, dur, prio, wait, target, sig, inc, (p0, p1, p2, p3), tag
def build(tau=2.2, t0=22.0, dA=24.0, dB=9.0, lead=8.0, natt=3, nrow=16, nfin=16, qlate=30.0, pf=0, defer=7, wpf=0):
    T = []
    lnx = [k % NX for k in range(120)] + [0, 1, 2, 3] * 2
    for rg in range(128):
        T.append(Task(T_LN1, lnx[rg], 3.0, (0, rg), C_NONE, 0, C_LN1 + rg // 16, 1, rg))
    if pf:
        for k in range(64):
            T.append(Task(T_PF, (128 + k) % NX, 3.0, (0, 128 + k), C_NONE, 0, C_NONE, 0, k % 2, (k // 2) * 262144, 4))
    kvx = [0] * 5 + [1] * 5 + [2] * 5 + [3] * 5 + [4] * 6 + [5] * 6
    qx = [0] * 3 + [1] * 3 + [2] * 3 + [3] * 3 + [4] * 2 + [5] * 2
    need = lambda seg: t0 + seg * tau
    for b in range(8):
        for m in range(2):
            for ct in range(16):
                x = kvx[2 * ct + m]; base = (KX + b * 4 * MB + ct * 16384) if m == 0 else (VT + b * 4 * MB + ct * 32768)
                if b == 0:
                    for hf in range(2):
                        for rh in range(2):
                            T.append(Task(T_KB + m, x, dB, (need(0) - dB, rh), C_LN1 + b, 16, C_HP + 16 * b + ct, 1, XN + rh * 262144, ct * 512 + hf * 256,
                                          base + hf * (4096 if m == 0 else 16384) + rh * 2 * MB, rh, tag=b))
                else:
                    T.append(Task(T_KA + m, x, dA, (need(8 * b) - dA - lead, 0), C_LN1 + b, 16, C_HP + 16 * b + ct, 4, XN + b * 524288, ct * 512, base, tag=b))
        for ct in range(16):
            T.append(Task(T_QA, qx[ct], dA, (max(need(8 * b) - dA, qlate), 1), C_LN1 + b, 16, C_HP + 16 * b + ct, 0x4000, XN + b * 524288, ct * 512, QX + b * 2 * MB + ct * 8192, tag=b))
    big = sorted([t for t in T if t.typ in (T_QA, T_KA, T_VA)], key=lambda t: t.prio)
    jobs = [(m, o) for o in range(0, 7 * MB, 65536) for m in (1, 2)] + [(3, o) for o in range(0, 7 * MB, 65536)]
    if wpf:
        for k in range(0, len(jobs), 2):
            t = big[k // 2]; m, o = jobs[k]
            t.p = t.p[:3] + ((m << 28) | o,)
    for t in T:
        if t.typ in (T_QA, T_KA, T_VA) and t.tag >= defer: t.late = True
    S = []
    p3 = lambda w, sg, tg: (w * 128) | ((sg * 128) << 11) | (tg << 22)
    for sp in range(4):
        for ct in range(8): S.append((T_SO, OA + sp * 32768, sp * 1024 * 2048 + ct * 256, PART_O + sp * PSLAB + ct * 4096, p3(sp, 4, 2)))
    for ct in range(56): S.append((T_SGU, HN, ct * 128, ACT + ct * 2048, p3(12, 6 + ct // 14, 1)))
    for sp in range(4):
        for ct in range(8): S.append((T_SD, ACT + sp * 28 * 1024, sp * 896 * 2048 + ct * 256, PART_D + sp * PSLAB + ct * 4096, p3(6 + sp, 10, 14)))
    L = []
    for r in range(natt):
        for q in range(8): L.append((T_SATT, r, natt, q, p3(0, q // 2, 0)))
    for r in range(nrow): L.append((T_SLN, r, nrow, 0, p3(4, 5, 32)))
    for r in range(nfin): L.append((T_SFIN, r, nfin, 0, p3(10, 11, 32)))
    serv = [[] for _ in range(NX)]
    rot = 0
    grp = {T_SO: [0] * 8 + [1] * 8 + [2] * 4 + [3] * 4 + [4] * 4 + [5] * 4, T_SD: [0] * 4 + [1] * 4 + [2] * 4 + [3] * 4 + [4] * 8 + [5] * 8,
           T_SGU: [0] * 8 + [1] * 8 + [2] * 12 + [3] * 12 + [4] * 8 + [5] * 8}
    for typ in (T_SO, T_SATT, T_SLN, T_SGU, T_SD, T_SFIN):
        G = [x for x in S + L if x[0] == typ]
        for k, x in enumerate(G):
            if typ in grp:
                g = grp[typ]; serv[g[k]].append(x + ((k - g.index(g[k])) | (g.count(g[k]) << 4),))
            else:
                serv[rot % NX].append(x + (0,)); rot += 1
    assert max(len(x) for x in serv) <= 32
    for x in range(NX):
        for k, (typ, *p) in enumerate(serv[x]):
            T.append(Task(typ, x, 1e6, (1e5, k), C_NONE, 0, C_NONE, 0, *p[:4])); T[-1].share = p[4]
    return T
def simulate(T, tau=2.2, t0=22.0, verbose=False):
    cnt = [0] * 256
    lists = [[] for _ in range(NX)]
    free = [32] * NX
    ev = []
    pend = sorted([i for i in range(len(T)) if T[i].dur < 1e5 and not hasattr(T[i], 'late')], key=lambda i: T[i].prio)
    now = 1.0; seq = 0; end = 0
    while pend or ev:
        rest = []
        for i in pend:
            t = T[i]
            if free[t.xcd] and cnt[t.wait] >= t.target:
                free[t.xcd] -= 1; lists[t.xcd].append(i); t.start = now
                seq += 1; heapq.heappush(ev, (now + t.dur + 1.0, seq, i))
            else: rest.append(i)
        pend = rest
        now, _, d = heapq.heappop(ev)
        free[T[d].xcd] += 1; cnt[T[d].sig] += T[d].inc; end = now
    for i in range(len(T)):
        if T[i].dur >= 1e5: lists[T[i].xcd].append(i)
    late = sorted([i for i in range(len(T)) if hasattr(T[i], 'late')], key=lambda i: T[i].prio)
    spare = [32 - sum(1 for t in T if t.dur >= 1e5 and t.xcd == x) for x in range(NX)]
    load = [0] * NX
    for i in late:
        x = min((x for x in range(NX) if spare[x]), key=lambda x: (load[x] + 1) / spare[x])
        load[x] += 1; T[i].xcd = x; lists[x].append(i)
    if verbose: print("spare", spare, "late", load)
    if verbose: print("end %.1f" % end, [len(l) for l in lists])
    return lists
if __name__ == "__main__":
    T = build(); simulate(T, verbose=True)
```

```python
from tasks import *
SEGC = FLAGS + 49152
SEGS = 2048
PROG = FLAGS + 32768
L_BC = 158720 + 512
s_n, s_pre, s_wait, s_tgt, s_sig, s_xseg, s_oseg, s_xcur, s_m0, s_spin = 43, 44, 41, 36, 35, 45, 46, 47, 40, 62

def poll(a, tag, off, tgt, sleep=2, vaddr=None, atomic=False):
    if vaddr is None: a("v_mov_b32 v4, 0"); vaddr = 4
    if atomic:
        a("s_mov_b64 exec, %d" % (3 if vaddr != 4 else 1))
        a("L_%s:\nv_mov_b32 v5, 0\nbuffer_atomic_add v5, v%d, %s, s%d offen sc0\ns_sub_u32 s%d, s%d, 1\ns_cbranch_scc1 L_w_fail\ns_waitcnt vmcnt(0)" % (tag, vaddr, WS, off, s_spin, s_spin))
        a("v_cmp_gt_u32 vcc, s%d, v5\ns_cbranch_vccz L_%s_ok\ns_sleep %d\ns_branch L_%s\nL_%s_ok:\ns_mov_b64 exec, -1" % (tgt, tag, sleep, tag, tag))
        return
    a("L_%s:\nbuffer_load_dword v5, v%d, %s, s%d offen sc1\ns_sub_u32 s%d, s%d, 1\ns_cbranch_scc1 L_w_fail\ns_waitcnt vmcnt(0)" % (tag, vaddr, WS, off, s_spin, s_spin))
    a("v_cmp_gt_u32 vcc, s%d, v5\ns_cbranch_vccz L_%s_ok\ns_sleep %d\ns_branch L_%s\nL_%s_ok:" % (tgt, tag, sleep, tag, tag))
def signal(a, off):
    a("s_mov_b64 exec, 1\nv_mov_b32 v4, 0\nv_mov_b32 v5, 1\nbuffer_atomic_add v5, v4, %s, s%d offen\ns_mov_b64 exec, -1" % (WS, off))

def unpack_p3(a):
    a("s_and_b32 s%d, s55, 2047\ns_add_u32 s%d, s%d, %d\ns_bfe_u32 s%d, s55, 0xb000b\ns_add_u32 s%d, s%d, %d\ns_lshr_b32 s%d, s55, 22" % (
        s_wait, s_wait, s_wait, SEGC, s_sig, s_sig, s_sig, SEGC, s_tgt))
def stampseg(a, slot, trace):
    if not trace: return
    L = a.label("L_tr")
    a("s_cmp_lg_u32 s%d, 0\ns_cbranch_scc1 %s\ns_memrealtime s[92:93]\ns_lshl_b32 s96, s20, 5\ns_add_u32 s96, s96, s22\ns_lshl_b32 s96, s96, 10\ns_lshl_b32 s97, s%d, 4\ns_add_u32 s96, s96, s97" % (s_w, L, s_n))
    a("s_add_u32 s96, s96, %d\ns_waitcnt lgkmcnt(0)\nv_mov_b32 v4, 0\nv_mov_b32 v5, s92\nbuffer_store_dword v5, v4, %s, s96 offen\n%s:" % (FLAGS + 6 * MB + 4 * slot, WS, L))

def serv_rows(a, name, fin, pbase, pstride, R=8, trace=0):
    NS = 16 // R; NL = 8 // NS; U = 32 // R; lu = U.bit_length() - 1
    D, F, P, T_ = 16, 32, 64, 128
    a("L_%s:" % name)
    unpack_p3(a)
    a("v_and_b32 v10, %d, v%d\nv_bfe_u32 v11, v%d, %d, %d\nv_lshrrev_b32 v12, 4, v%d" % (R - 1, v_lane, v_lane, R.bit_length() - 1, NS.bit_length() - 1, v_lane))
    a("s_lshl_b32 s%d, s%d, 13\nv_lshlrev_b32 v8, 10, v11\nv_lshl_add_u32 v8, v12, 8, v8\nv_lshl_add_u32 v8, v10, 4, v8\nv_add_u32 v8, s%d, v8" % (t0, s_w, t0))
    a("v_lshlrev_b32 v9, 11, v10\nv_lshl_add_u32 v9, v11, 6, v9\nv_and_b32 v13, 1, v12\nv_lshl_add_u32 v9, v13, 5, v9\nv_lshrrev_b32 v13, 1, v12\nv_lshl_add_u32 v9, v13, 4, v9")
    a("s_lshl_b32 s%d, s%d, 9\nv_add_u32 v9, s%d, v9\nv_lshlrev_b32 v7, 4, v10\ns_lshl_b32 s%d, s%d, 2\nv_add_u32 v6, s%d, v7" % (t0, s_w, t0, t0, s_w, t0))
    a("s_cmp_eq_u32 s%d, 0\ns_cselect_b32 s%d, 0, 0x%x\nv_mov_b32 v15, 0x%x\nv_writelane_b32 v15, s%d, 0\nv_mov_b32 v14, 0" % (s_w, t0, OOB, OOB, t0))
    if fin: set_srd(a, 24, P_OUT, 4 * MB)
    def mem(op, Rg, base):
        a("s_add_u32 s%d, s37, %d\ns_add_u32 s%d, s%d, 4096" % (t0, base, t1, t0))
        out = []
        for k in range(NL):
            o = k * NS * 1024
            out.append("buffer_%s_dwordx4 %s, v8, %s, s%d offen offset:%d%s" % (op, r4(Rg + 4 * k), WS, t1 if o >= 4096 else t0, o % 4096, SC))
        return out
    a("L_%s_l:" % name)
    a("s_lshr_b32 s%d, s52, %d\ns_lshl_b32 s38, s%d, 11\ns_lshr_b32 s37, s52, %d\ns_lshl_b32 s37, s37, 15\ns_and_b32 s%d, s52, %d\ns_mul_i32 s%d, s%d, %d\ns_add_u32 s37, s37, s%d" % (
        s_n, lu, s_n, lu - 1, t0, NS - 1, t0, t0, R * 16, t0))
    a("s_add_u32 s39, s38, s%d\ns_mov_b32 s%d, 1\ns_cmp_lg_u32 s%d, 0\ns_cbranch_scc1 L_%s_w0" % (s_wait, s_pre, s_w, name))
    a("v_readfirstlane_b32 s%d, v14\ns_cmp_ge_u32 s%d, s%d\ns_cbranch_scc1 L_%s_w0\ns_mov_b32 s%d, 0" % (t0, t0, s_tgt, name, s_pre))
    if fin:
        a("s_add_u32 s40, s38, %d\ns_mov_b32 s42, 1" % (SEGC + 128 * 12))
        poll(a, name + "_f", 40, 42, sleep=20)
    else:
        a("s_add_u32 s40, s%d, %d\ns_add_u32 s42, s%d, 1" % (s_near, PROG, s_n))
        poll(a, name + "_f", 40, 42, sleep=20, atomic=True)
    a("L_%s_w0:\ns_barrier" % name)
    for x in mem("load", D, HB if fin else XT): a(x)
    a("s_cmp_lg_u32 s%d, 0\ns_cbranch_scc1 L_%s_w" % (s_pre, name))
    poll(a, name + "_p", 39, s_tgt, sleep=1, atomic=True)
    a("L_%s_w:\ns_barrier" % name)
    stampseg(a, 0, trace)
    a("s_add_u32 s%d, s52, s53\ns_lshr_b32 s%d, s%d, %d\ns_lshl_b32 s%d, s%d, 11\ns_add_u32 s%d, s%d, s%d\nv_mov_b32 v14, 0\nbuffer_atomic_add v14, v15, %s, s%d offen sc0" % (
        t0, t0, t0, lu, t0, t0, t0, t0, s_wait, WS, t0))
    for sp in range(4):
        for x in mem("load", P + 4 * NL * sp, pbase + sp * pstride): a(x)
    a("s_waitcnt vmcnt(%d)" % (4 * NL))
    for k in range(NL): unpack(a, F + 8 * k, D + 4 * k)
    for sp in range(4):
        for k in range(NL):
            a("s_waitcnt vmcnt(%d)" % (NL * (4 - sp) - 1 - k))
            u = T_ + 8 * (k % 2)
            unpack(a, u, P + 4 * NL * sp + 4 * k)
            for j in range(0, 8, 2): a("v_pk_add_f32 %s, %s, %s" % (r2(F + 8 * k + j), r2(F + 8 * k + j), r2(u + j)))
    NF = 8 * NL
    def pack():
        for k in range(NL):
            for r in range(4): a("v_cvt_pk_bf16_f32 v%d, v%d, v%d" % (D + 4 * k + r, F + 8 * k + 2 * r, F + 8 * k + 2 * r + 1))
    pack()
    if fin:
        a("s_mul_i32 s%d, s52, %d" % (t2, R * 2048))
        for k in range(NL): swap16(a, D + 4 * k)
        for k in range(NL): a("buffer_store_dwordx4 %s, v9, %s, s%d offen offset:%d" % (r4(D + 4 * k), XSRD, t2, k * NS * 64))
        stampseg(a, 1, trace)
    else:
        for x in mem("store", D, HB): a(x)
        for k in range(NL): unpack(a, F + 8 * k, D + 4 * k)
        S, T = 144, 148
        def total(slot):
            a("v_add_f32 v%d, v%d, v%d" % (S, S, S + 1))
            for ror in (4, 8)[-(NS.bit_length() - 1):]: a("s_nop 1\nv_add_f32_dpp v%d, v%d, v%d row_ror:%d row_mask:0xf bank_mask:0xf" % (S, S, S, ror))
            rowsum(a, S, T, slot)
        a("v_pk_add_f32 %s, %s, %s" % (r2(S), r2(F), r2(F + 2)))
        for k in range(4, NF, 2): a("v_pk_add_f32 %s, %s, %s" % (r2(S), r2(S), r2(F + k)))
        total(0)
        a("v_mul_f32 v%d, %s, v%d" % (S, f32(-1.0 / 1024), S))
        for k in range(0, NF, 2): a("v_pk_add_f32 %s, %s, %s op_sel_hi:[1,0]" % (r2(F + k), r2(F + k), r2(S)))
        a("v_pk_mul_f32 %s, %s, %s" % (r2(S), r2(F), r2(F)))
        for k in range(2, NF, 2): a("v_pk_fma_f32 %s, %s, %s, %s" % (r2(S), r2(F + k), r2(F + k), r2(S)))
        total(1)
        a("v_mov_b32 v%d, %s\nv_fmac_f32 v%d, %s, v%d\nv_rsq_f32 v%d, v%d\ns_nop 0" % (T, f32(1e-5), T, f32(1.0 / 1024), S, S, T))
        for k in range(0, NF, 2): a("v_pk_mul_f32 %s, %s, %s op_sel_hi:[1,0]" % (r2(F + k), r2(F + k), r2(S)))
        pack()
        for x in mem("store", D, HN): a(x)
        a("s_waitcnt vmcnt(0)\ns_barrier\ns_add_u32 s39, s38, s%d\ns_cmp_lg_u32 s%d, 0\ns_cbranch_scc1 L_%s_s" % (s_sig, s_w, name))
        a("s_mov_b64 exec, 1\nv_mov_b32 v4, 0\nv_mov_b32 v5, 1\nbuffer_atomic_add v5, v4, %s, s39 offen sc0\ns_waitcnt vmcnt(0)\nv_cmp_eq_u32 vcc, %d, v5\ns_cbranch_vccz L_%s_s1" % (WS, U - 1, name))
        a("s_add_u32 s39, s38, %d\nv_mov_b32 v5, 1\nbuffer_store_dword v5, v4, %s, s39 offen sc1\nL_%s_s1:\ns_mov_b64 exec, -1\nL_%s_s:" % (SEGC + 128 * 12, WS, name, name))
        stampseg(a, 1, trace)
    a("s_add_u32 s52, s52, s53\ns_cmp_lt_u32 s52, %d\ns_cbranch_scc1 L_%s_l\ns_branch L_w_done" % (64 * U, name))

def serv_att(a, c_hp, trace=0):
    a("L_satt:")
    unpack_p3(a)
    att_setup(a)
    a("s_lshl_b32 s44, s54, 2\ns_add_u32 s44, s44, s%d\ns_mov_b32 s%d, s52" % (s_w, s_n))
    a("v_lshlrev_b32 v16, 7, v%d\ns_lshl_b32 s45, s54, 10\ns_add_u32 s45, s45, %d\ns_add_u32 s45, s45, s%d\ns_mov_b32 s37, 0x4008" % (v_lane, PROG, s_near))
    a("L_satt_l:")
    a("s_lshr_b32 s38, s%d, 3\ns_lshl_b32 s38, s38, 4\ns_lshr_b32 s39, s44, 1\ns_add_u32 s38, s38, s39\ns_lshl_b32 s38, s38, 7\ns_add_u32 s38, s38, %d" % (s_n, FLAGS + 128 * c_hp))
    poll(a, "satt_q", 38, 37, sleep=8)
    def mid():
        a("""
        s_cmp_lg_u32 s{w}, 0
        s_cbranch_scc1 L_satt_go
        s_mov_b64 exec, 1
        L_satt_far:
        v_mov_b32 v5, 0
        buffer_atomic_add v5, v16, {WS}, s45 offen sc0
        s_sub_u32 s{sp}, s{sp}, 1
        s_cbranch_scc1 L_w_fail
        s_waitcnt vmcnt(0)
        v_cmp_gt_u32 vcc, s{n}, v5
        s_cbranch_vccz L_satt_near
        s_sleep 40
        s_branch L_satt_far
        L_satt_near:
        s_mov_b64 exec, 0xff
        L_satt_c:
        v_mov_b32 v5, 0
        buffer_atomic_add v5, v16, {WS}, s45 offen sc0
        s_sub_u32 s{sp}, s{sp}, 1
        s_cbranch_scc1 L_w_fail
        s_waitcnt vmcnt(0)
        v_cmp_ge_u32 vcc, s{n}, v5
        s_cbranch_vccnz L_satt_c
        s_mov_b64 exec, -1
        L_satt_go:
        s_barrier
        """.format(w=s_w, WS=WS, sp=s_spin, n=s_n))
        stampseg(a, 0, trace)
    task_att(a, s_n, 44, mid)
    a("s_waitcnt vmcnt(0)\ns_barrier\ns_lshl_b32 s38, s%d, 11\ns_add_u32 s39, s38, s%d\ns_cmp_lg_u32 s%d, 0\ns_cbranch_scc1 L_satt_s" % (s_n, s_sig, s_w))
    signal(a, 39)
    a("L_satt_s:")
    stampseg(a, 1, trace)
    a("s_add_u32 s%d, s%d, s53\ns_cmp_lt_u32 s%d, 64\ns_cbranch_scc1 L_satt_l\ns_branch L_w_done" % (s_n, s_n, s_n))

class WS_:
    def __init__(s, name, nk, x64, gu):
        s.name, s.nk, s.x64, s.gu = name, nk, x64, gu
        s.nc = nk // 4
    def emit(s, a, trace=0, dsp=3, wnt='', warm=1):
        n, nk, nc = s.name, s.nk, s.nc
        v_ws, v_r0, v_r1, v_xs, v_xr, v_fl, v_l8 = 8, 9, 10, 11, 12, 13, 14
        XF, AC, TM_ = 16, 64, 80
        a("L_%s:" % n)
        unpack_p3(a)
        a("v_lshrrev_b32 v4, 3, v%d\nv_mul_lo_u32 v4, v4, s%d\nv_and_b32 v5, 7, v%d\nv_lshl_add_u32 v%d, v5, 4, v4" % (v_lane, s_ldw, v_lane, v_ws))
        a("s_and_b32 s%d, s%d, 1\ns_lshl_b32 s%d, s%d, 6\ns_mul_i32 s%d, s%d, s%d\ns_add_u32 s%d, s%d, s%d" % (t2, s_w, t0, t2, t0, t0, s_ldw, s_woff, s_woff, t0))
        a("v_lshrrev_b32 v4, 2, v%d\nv_lshlrev_b32 v4, 7, v4\nv_and_b32 v5, 3, v%d\nv_lshl_add_u32 v4, v5, 3, v4" % (v_lane, v_lane))
        if s.gu: a("s_lshl_b32 s%d, s%d, 5\ns_add_u32 s%d, s%d, 16384" % (t0, s_w, t1, t0))
        else: a("s_lshr_b32 s%d, s%d, 1\ns_lshl_b32 s%d, s%d, 14\ns_lshl_b32 s%d, s%d, 6\ns_add_u32 s%d, s%d, s%d\ns_add_u32 s%d, s%d, 32" % (t0, s_w, t0, t0, t1, t2, t0, t0, t1, t1, t0))
        a("v_add_u32 v%d, s%d, v4\nv_add_u32 v%d, s%d, v4" % (v_r0, t0, v_r1, t1))
        a("s_lshl_b32 s%d, s%d, 13\ns_lshl_b32 s%d, s%d, 3\ns_mul_i32 s%d, s%d, 72" % (s_m0, s_w, s_wadv, s_ldw, t3, s_ldw))
        nch = nk // 4
        def wissue(c):
            for j in range(8):
                a("s_add_u32 m0, s%d, %d\ns_nop 0\nbuffer_load_dwordx4 v%d, %s, s%d offen%s lds" % (s_m0, (c % 4) * 32768 + j * 1024, v_ws, WSRD, s_woff, wnt))
                a("s_add_u32 s%d, s%d, s%d" % (s_woff, s_woff, s_wadv if j < 7 else t3))
        for c in range(4): wissue(c)
        for c in range(nch):
            a("s_waitcnt vmcnt(%d)\ns_barrier" % (8 * (min(c + 4, nch) - c - 1)))
            a("v_add_u32 v4, %d, v%d\nv_add_u32 v5, %d, v%d" % ((c % 4) * 32768, v_r0, (c % 4) * 32768, v_r1))
            for kk in range(4):
                for t in range(2):
                    for hf in range(2):
                        d = ((4 * c + kk) * 2 + t) * 4 + 2 * hf
                        a("ds_read_b64_tr_b16 a[%d:%d], v%d offset:%d" % (d, d + 1, 4 + t, (32 * kk + 16 * hf) * 128))
            a("s_waitcnt lgkmcnt(0)\ns_barrier")
            if c + 4 < nch: wissue(c + 4)
        a("s_mul_i32 s%d, s%d, s%d\ns_lshr_b32 s%d, s%d, 1\ns_lshl_b32 s%d, s%d, 10\ns_add_u32 s%d, s%d, s%d\nv_add_u32 v%d, s%d, v%d" % (t0, t2, s_xrs, t1, s_w, t1, t1, t0, t0, t1, v_xs, t0, v_l16))
        a("s_lshl_b32 s%d, s%d, 10" % (s_m0, s_w))
        a("v_lshlrev_b32 v%d, 3, v%d\nv_mov_b32 v%d, v%d\nv_mov_b32 v%d, %d" % (v_l8, v_lane, v_xr, v_l8 if s.x64 else v_l16, v_fl, L_BC))
        a("s_lshl_b32 s%d, s%d, 1\ns_lshl_b32 s%d, s%d, 1" % (s_xseg, s_xrs, s_oseg, s_ors))
        a("s_lshl_b32 s%d, s%d, %d\ns_add_u32 s%d, s%d, s%d" % (t0, s_w, 9 if s.gu else 10, s_obase, s_obase, t0))
        a("s_mov_b32 s%d, 0" % s_n)
        a("s_cmp_eq_u32 s%d, 0\ns_cselect_b32 s%d, 0, 0x%x\nv_mov_b32 v15, 0x%x\nv_writelane_b32 v15, s%d, 0\ns_add_u32 s%d, s%d, %d\nv_writelane_b32 v15, s%d, 1" % (s_w, t0, OOB, OOB, t0, t0, t0, SEGS, t0))
        a("v_lshl_add_u32 v%d, v%d, 2, v%d" % (v_fl, v_lane, v_fl))
        nd = nk // 2
        a("s_and_b32 s%d, s49, 15\ns_lshr_b32 s%d, s49, 4\ns_mul_i32 s%d, s%d, s%d\ns_add_u32 s%d, s%d, s%d\ns_sub_u32 s%d, %d, s%d\ns_cselect_b32 s%d, 0x%x, 0\ns_lshl_b32 s%d, s%d, 11\ns_and_b32 s%d, s%d, 0xffff\ns_or_b32 s%d, s%d, s%d" % (
            t0, t1, t1, t1, s_w, t0, t0, t1, t0, nd - 1, t0, t1, OOB, t0, t0, t0, t0, t0, t0, t1))
        a("v_and_b32 v4, 15, v%d\nv_lshlrev_b32 v4, 6, v4\nv_lshrrev_b32 v5, 5, v%d\nv_lshl_add_u32 v4, v5, 10, v4\nv_bfe_u32 v5, v%d, 4, 1\nv_mul_lo_u32 v5, v5, s%d\nv_add3_u32 v3, v4, v5, s%d" % (v_lane, v_lane, v_lane, s_xrs, t0))
        def dma():
            g = []
            for j in range(nd):
                g.append(["s_add_u32 m0, s%d, %d" % (s_m0, j * 4096), "s_add_u32 s%d, s%d, %d" % (s_xcur, s_xoff, j * 2048),
                          "buffer_load_dwordx4 v%d, %s, s%d offen%s lds" % (v_xs, WS, s_xcur, SC)])
            if warm: g[0] = ["buffer_load_dword v120, v3, %s, s%d offen%s" % (WS, s_xoff, SC)] + g[0]
            g[-1] += ["s_xor_b32 s%d, s%d, 65536" % (s_m0, s_m0), "s_add_u32 s%d, s%d, s%d" % (s_xoff, s_xoff, s_xseg)]
            return g
        NRING = 12
        def rd(i):
            d = XF + 4 * (i % NRING)
            if s.x64: return ["ds_read_b64 %s, v%d offset:%d" % (r2(d), v_xr, i * 1024), "ds_read_b64 %s, v%d offset:%d" % (r2(d + 2), v_xr, i * 1024 + 512)]
            return ["ds_read_b128 %s, v%d offset:%d" % (r4(d), v_xr, i * 1024)]
        per = 2 if s.x64 else 1
        def compute(sync, fill):
            ahead = 6
            nb = 2 * nk; issued = 0
            def issue_to(m):
                nonlocal issued
                while issued < min(m, nb):
                    if issued % (2 * nc) == 0: sync(issued // (2 * nc))
                    for x in rd(issued): a(x)
                    issued += 1
            issue_to(ahead)
            for i in range(nb):
                kb, rt = i >> 1, i & 1
                a("s_waitcnt lgkmcnt(%d)" % (per * (issued - i - 1)))
                for t in range(2):
                    c = r4(AC + 4 * (2 * rt + t)); w = (kb * 2 + t) * 4
                    a("v_mfma_f32_16x16x32_bf16 %s, a[%d:%d], %s, %s" % (c, w, w + 3, r4(XF + 4 * (i % NRING)), "0" if kb == 0 else c))
                    if t == 0: issue_to(i + 1 + ahead)
                for x in fill.get(i, []): a(x)
        def flag_load():
            a("s_add_u32 s%d, s%d, %d" % (t0, s_wait, SEGS))
            if s.gu: a("buffer_load_dword v6, v15, %s, s%d offen sc1" % (WS, t0))
            else: a("v_mov_b32 v6, 0\nbuffer_atomic_add v6, v15, %s, s%d offen sc0" % (WS, t0))
        def bcast_put():
            L = a.label("L_bp")
            a("s_cmp_lg_u32 s%d, 0\ns_cbranch_scc1 %s\ns_mov_b64 exec, 3\nds_write_b32 v%d, v6\ns_mov_b64 exec, -1\ns_waitcnt lgkmcnt(0)\n%s:" % (s_w, L, v_fl, L))
        def bcast_get(last):
            a("ds_read_b32 v7, v%d\nv_xor_b32 v13, 256, v13\ns_waitcnt lgkmcnt(0)\nv_readlane_b32 s%d, v7, 0\nv_readlane_b32 s%d, v7, 1" % (v_fl, t0, t1))
            a("s_cmp_ge_u32 s%d, s%d\ns_cselect_b32 s%d, 1, 0\ns_cmp_ge_u32 s%d, %d\ns_cselect_b32 s%d, 0, s%d\ns_cmp_ge_u32 s%d, s%d\ns_cselect_b32 s39, 1, 0" % (
                t0, s_tgt, s_pre, s_n, last, s_pre, s_pre, t1, s_tgt))
        nst = 2
        def epilogue():
            a("v_xor_b32 v%d, 65536, v%d" % (v_xr, v_xr))
            nop(a, 7)
            for rt in range(2):
                c = AC + 8 * rt; t = TM_ + 16 * rt
                if rt: a("s_add_u32 s%d, s%d, s%d" % (t1, s_obase, s_ors))
                so = t1 if rt else s_obase
                if s.gu:
                    for r in range(4): a("v_mul_f32 v%d, %s, v%d" % (t + r, f32(-math.log2(math.e)), c + r))
                    for r in range(4): a("v_exp_f32 v%d, v%d" % (t + r, t + r))
                    a("v_pk_mul_f32 %s, %s, %s\nv_pk_mul_f32 %s, %s, %s" % (r2(c), r2(c), r2(c + 4), r2(c + 2), r2(c + 2), r2(c + 6)))
                    for r in range(4): a("v_add_f32 v%d, 1.0, v%d" % (t + r, t + r))
                    for r in range(4): a("v_rcp_f32 v%d, v%d" % (t + r, t + r))
                    a("s_nop 0\nv_pk_mul_f32 %s, %s, %s\nv_pk_mul_f32 %s, %s, %s" % (r2(c), r2(c), r2(t), r2(c + 2), r2(c + 2), r2(t + 2)))
                    a("v_cvt_pk_bf16_f32 v%d, v%d, v%d\nv_cvt_pk_bf16_f32 v%d, v%d, v%d" % (t + 4, c, c + 1, t + 5, c + 2, c + 3))
                    a("buffer_store_dwordx2 %s, v%d, %s, s%d offen%s" % (r2(t + 4), v_l8, WS, so, SC))
                else:
                    for r in range(4): a("v_cvt_pk_bf16_f32 v%d, v%d, v%d" % (t + r, c + 2 * r, c + 2 * r + 1))
                    a("buffer_store_dwordx4 %s, v%d, %s, s%d offen%s" % (r4(t), v_l16, WS, so, SC))
            a("s_add_u32 s%d, s%d, s%d" % (s_obase, s_obase, s_oseg))
        def sig(tag):
            a("s_cmp_lg_u32 s%d, 0\ns_cbranch_scc1 L_%s_%s" % (s_w, n, tag)); signal(a, s_sig); a("L_%s_%s:\ns_add_u32 s%d, s%d, %d" % (n, tag, s_sig, s_sig, SEGS))
        a("L_%s_L:" % n)
        a("s_cmp_lg_u32 s%d, 0\ns_cbranch_scc1 L_%s_Lw" % (s_w, n))
        poll(a, n + "_p", s_wait, s_tgt, sleep=1, atomic=not s.gu)
        a("L_%s_Lw:\ns_barrier" % n)
        stampseg(a, 0, trace)
        for g in dma():
            for x in g: a(x)
        a("L_%s_L2:" % n)
        def syncL(c):
            done = -(-(c + 1) * nc // 2)
            a("s_waitcnt vmcnt(%d)\ns_barrier" % (nd - done))
            if c == 3: flag_load()
        compute(syncL, {})
        a("L_%s_T:" % n)
        a("s_add_u32 s%d, s%d, 1\ns_add_u32 s%d, s%d, %d" % (s_n, s_n, s_wait, s_wait, SEGS))
        epilogue()
        a("s_waitcnt vmcnt(%d)" % nst); bcast_put(); a("s_barrier")
        bcast_get(64)
        a("s_cmp_lg_u32 s%d, 0\ns_cbranch_scc1 L_%s_T1" % (s_pre, n))
        a("s_waitcnt vmcnt(0)\ns_barrier")
        sig("s1")
        stampseg(a, 2, trace)
        a("s_cmp_lt_u32 s%d, 64\ns_cbranch_scc1 L_%s_L\ns_branch L_w_done" % (s_n, n))
        a("L_%s_T1:" % n)
        for g in dma():
            for x in g: a(x)
        a("s_cmp_lg_u32 s39, 0\ns_cbranch_scc1 L_%s_T2" % n)
        a("s_waitcnt vmcnt(%d)\ns_barrier" % (nd + warm))
        a("s_cmp_lg_u32 s%d, 3\ns_cbranch_scc1 L_%s_s4" % (s_w, n)); signal(a, s_sig); a("L_%s_s4:\ns_add_u32 s%d, s%d, %d" % (n, s_sig, s_sig, SEGS))
        a("s_branch L_%s_L2" % n)
        a("L_%s_T2:" % n)
        flag_load()
        a("s_waitcnt vmcnt(0)\ns_branch L_%s_B1" % n)
        a("L_%s_E:" % n)
        a("s_add_u32 s%d, s%d, 1\ns_add_u32 s%d, s%d, %d" % (s_n, s_n, s_wait, s_wait, SEGS))
        flag_load()
        epilogue()
        a("s_waitcnt vmcnt(%d)" % nst)
        a("L_%s_B1:" % n)
        bcast_put(); a("s_barrier"); bcast_get(63)
        a("s_cmp_eq_u32 s%d, 0\ns_cbranch_scc1 L_%s_B0" % (s_pre, n))
        fill = {}
        for j, g in enumerate(dma()): fill[dsp * j] = g
        class Cap:
            def __init__(q): q.l = []
            def __call__(q, x): q.l.append(x)
        def late(tag, cnt):
            nonlocal a
            keep = a; a = Cap(); a("s_waitcnt vmcnt(%d)\ns_barrier" % cnt); sig(tag); out = a.l; a = keep
            return out
        fill[dsp * 6 + 1] = late("s2", 7 + warm)
        compute(lambda c: None, fill)
        a("s_branch L_%s_E" % n)
        a("L_%s_B0:" % n)
        compute(lambda c: flag_load() if c == 3 else None, {nk // 4: late("s3", 0)})
        a("s_branch L_%s_T" % n)
```

```python
import sys
from asmlib import *
from layout import *
from tasks import *
import chain2 as CH
import sched as SC_
from sched import *
from serv import *
NAME = "sequential_preLN__memory_aug_recurrent_mem_tr__swiglu_ffn__prompt_kernel"
SPINW = 200000
def gen(tau=2.6, t0=22.0, ckw={}, trace=0, skw={}, dsp=2, wnt=' nt', lead=1, cpf=0, RL=4, RF=4, warm=0):
    T = build(tau, t0, **skw); lists = simulate(T, tau, t0)
    a = Asm()
    a("; @launch grid=(256,1,1) block=(256,1,1) lds=%d" % CH.LDS_BYTES)
    a('.amdgcn_target "amdgcn-amd-amdhsa--gfx950"')
    kernel_begin(a, NAME)
    def early():
        a("s_sub_u32 s30, s2, 2\ns_cmp_ge_u32 s30, 4\ns_cbranch_scc1 L_noinit")
        a("v_lshlrev_b32 v3, 4, v0\nv_mov_b32 v4, 0\nv_mov_b32 v5, 0\nv_mov_b32 v6, 0\nv_mov_b32 v7, 0\ns_mul_i32 s30, s30, %d\ns_add_u32 s30, s30, %d" % (ZERO_BYTES // 4, FLAGS))
        for k in range(ZERO_BYTES // 16384):
            a("buffer_store_dwordx4 v[4:7], v3, s[8:11], s30 offen sc1\ns_add_u32 s30, s30, 4096")
        a("s_waitcnt vmcnt(0)\ns_barrier\nv_mov_b32 v4, 1\nv_lshlrev_b32 v5, 6, v0\nv_add_u32 v5, 64, v5")
        a("v_cmp_gt_u32 vcc, 2, v0\ns_and_saveexec_b64 s[48:49], vcc\ns_cbranch_execz L_ini2\nbuffer_atomic_add v4, v5, s[16:19], 0 offen\nL_ini2:\ns_mov_b64 exec, s[48:49]")
        a("L_noinit:")
    CH.emit_role_prologue(a, early=early)
    a("s_cmp_ge_u32 s%d, 32\ns_cbranch_scc1 L_end\ns_cmp_ge_u32 s%d, 8\ns_cbranch_scc1 L_end" % (CH.s_i, CH.s_xcc))
    a("s_cmp_ge_u32 s%d, 2\ns_cbranch_scc1 L_worker\ns_mov_b32 s%d, s%d" % (CH.s_xcc, CH.s_x, CH.s_xcc))
    CH.emit_chain(a, **ckw)
    a("s_endpgm")
    a("L_worker:")
    load_ptrs(a)
    a("s_getpc_b64 s[56:57]\ns_add_u32 s56, s56, task_table@rel32@lo+4\ns_addc_u32 s57, s57, task_table@rel32@hi+12")
    a("s_sub_u32 s20, s20, 2\ns_lshl_b32 s4, s20, 3\ns_load_dwordx2 s[58:59], s[56:57], s4")
    a("s_lshl_b32 s60, s20, 7\ns_add_u32 s60, s60, %d" % (FLAGS + 128 * C_Q))
    a("s_mov_b32 s61, s22\ns_mov_b32 s62, %d\ns_mov_b32 s63, -1" % SPINW)
    if lead:
        a("s_cmp_lt_u32 s20, 2\ns_cbranch_scc1 L_w_nol\ns_cmp_lt_u32 s22, 24\ns_cbranch_scc1 L_w_nol")
        a("s_sub_u32 s4, s20, 2\ns_lshl_b32 s4, s4, 3\ns_add_u32 s4, s4, s22\ns_sub_u32 s4, s4, 24\ns_lshl_b32 s4, s4, 18\nv_lshlrev_b32 v4, 10, v0\nv_or_b32 v5, 0x1f80, v4")
        for p in (P_WO, P_WQ, P_WK, P_WV):
            set_srd(a, 12, p, 8 * MB)
            a("buffer_load_dwordx2 v[6:7], v4, s[12:15], s4 offen offset:%d" % (3 * 128 + 60))
            if p != P_WO: a("buffer_load_dwordx2 v[6:7], v5, s[12:15], s4 offen offset:60")
        a("L_w_nol:")
    a("s_cmp_ge_u32 s20, 2\ns_cbranch_scc1 L_w_nov\ns_cmp_lt_u32 s22, 24\ns_cbranch_scc1 L_w_nov\ns_cmp_lg_u32 s21, 0\ns_cbranch_scc1 L_w_nov")
    a("s_lshl_b32 s4, s20, 5\ns_add_u32 s4, s4, s22\ns_lshl_b32 s4, s4, 14\ns_add_u32 s4, s4, %d\ns_mov_b32 s30, -1\ns_mov_b32 s31, -1\nv_lshlrev_b32 v4, 2, v1" % (PRB + MB))
    for it in range(3):
        for hf in ((0, 1) if it % 2 == 0 else (1, 0)):
            a("s_add_u32 s5, s4, %d\ns_memtime s[32:33]\ns_waitcnt lgkmcnt(0)\nbuffer_store_dword v4, v4, s[8:11], s5 offen sc1\ns_waitcnt vmcnt(0)\ns_memtime s[34:35]\ns_waitcnt lgkmcnt(0)" % (hf * 8192 + it * 1024))
            a("s_sub_u32 s34, s34, s32\ns_min_u32 s%d, s%d, s34" % (30 + hf, 30 + hf))
    a("s_cmp_lt_u32 s31, s30\ns_cselect_b32 s4, 0x10001, 1\nv_mov_b32 v5, s4\nv_mov_b32 v4, 192\ns_mov_b64 exec, 1\nbuffer_atomic_add v5, v4, s[16:19], 0 offen\ns_mov_b64 exec, -1\nL_w_nov:")
    def init_wait(tag):
        a("""
        s_cmp_ge_u32 s61, 32
        s_cbranch_scc1 L_%s_d
        v_mov_b32 v4, 128
        L_%s:
        buffer_load_dword v5, v4, s[16:19], 0 offen sc1
        s_sub_u32 s62, s62, 1
        s_cbranch_scc1 L_w_fail
        s_waitcnt vmcnt(0)
        v_cmp_gt_u32 vcc, 4, v5
        s_cbranch_vccnz L_%s
        L_%s_d:
        """ % (tag, tag, tag, tag))
    a("""
    L_w_task:
    s_waitcnt lgkmcnt(0)
    s_cmp_ge_u32 s61, s59
    s_cbranch_scc1 L_end
    s_lshl_b32 s4, s61, 5
    s_add_u32 s4, s4, s58
    s_load_dwordx8 s[48:55], s[56:57], s4
    """)
    if trace: a("s_memrealtime s[88:89]")
    a("s_waitcnt lgkmcnt(0)")
    if cpf:
        a("s_cmp_ge_u32 s61, 32\ns_cbranch_scc1 L_w_npf\ns_cmp_eq_u32 s48, %d\ns_cbranch_scc1 L_w_npf" % T_LN1)
        a("s_cmp_eq_u32 s48, %d\ns_cselect_b32 s12, s%d, s%d\ns_cselect_b32 s13, s%d, s%d\ns_mov_b32 s14, 0x800000\ns_mov_b32 s15, 0x00020000" % (T_KB, P_WK, P_WV, P_WK + 1, P_WV + 1))
        a("v_lshrrev_b32 v4, 4, v0\nv_lshlrev_b32 v4, 13, v4\nv_and_b32 v5, 15, v0\nv_lshl_add_u32 v4, v5, 4, v4\ns_mov_b32 s4, s53\ns_mov_b32 s5, %d\nL_w_pf:" % cpf)
        a("buffer_load_dwordx4 v[8:11], v4, s[12:15], s4 offen\ns_add_u32 s4, s4, 131072\ns_waitcnt vmcnt(40)\ns_sub_u32 s5, s5, 1\ns_cmp_lg_u32 s5, 0\ns_cbranch_scc1 L_w_pf\ns_waitcnt vmcnt(0)\nL_w_npf:")
    a("""
    s_cmp_lg_u32 s21, 0
    s_cbranch_scc1 L_w_go
    s_cmp_eq_u32 s50, 0
    s_cbranch_scc1 L_w_go
    """)
    init_wait("wi1")
    a("""
    v_mov_b32 v4, 0
    L_w_poll:
    buffer_load_dword v5, v4, s[8:11], s49 offen sc1
    s_sub_u32 s62, s62, 1
    s_cbranch_scc1 L_w_fail
    s_waitcnt vmcnt(0)
    v_cmp_le_u32 vcc, s50, v5
    s_cbranch_vccnz L_w_go
    s_sleep 1
    s_branch L_w_poll
    L_w_go:
    s_barrier
    """)
    if trace: a("s_memrealtime s[90:91]")
    a("s_mov_b32 s%d, s52\ns_mov_b32 s%d, s53\ns_mov_b32 s%d, s54" % (s_xoff, s_woff, s_obase))
    for t in range(13): a("s_cmp_eq_u32 s48, %d\ns_cbranch_scc1 L_t%d" % (t, t))
    a("s_branch L_end")
    def get_near(tag):
        a("""
        s_cmp_lg_u32 s63, -1
        s_cbranch_scc1 L_%s_c
        v_mov_b32 v4, 192
        L_%s_p:
        buffer_load_dword v5, v4, s[16:19], 0 offen sc1
        s_sub_u32 s62, s62, 1
        s_cbranch_scc1 L_w_fail
        s_waitcnt vmcnt(0)
        v_readfirstlane_b32 s4, v5
        s_and_b32 s5, s4, 0xffff
        s_cmp_lt_u32 s5, 16
        s_cbranch_scc1 L_%s_p
        s_lshr_b32 s4, s4, 16
        s_cmp_ge_u32 s4, 8
        s_cselect_b32 s63, 8192, 0
        L_%s_c:
        """ % (tag, tag, tag, tag))
    def near_fix(tag, bywave):
        a("s_cmp_eq_u32 s%d, 0\ns_cbranch_scc1 L_%s_n" % (s_epi, tag))
        get_near(tag)
        a("s_lshl_b32 s4, s%d, %d\ns_xor_b32 s4, s4, s%d\ns_and_b32 s4, s4, 8192\ns_add_u32 s%d, s%d, s4\nL_%s_n:" % (s_w if bywave else 55, 12 if bywave else 13, s_near, s_obase, s_obase, tag))
    def wpf(tag):
        a("s_lshr_b32 s4, s55, 28\ns_cmp_eq_u32 s4, 0\ns_cbranch_scc1 L_%s_pf" % tag)
        a("s_and_b32 s5, s55, 0xfffffff\ns_and_b32 s6, s21, 1\ns_lshl_b32 s6, s6, 15\ns_add_u32 s5, s5, s6")
        set_w(a, P_WG, P_WU, 7 * MB)
        a("s_cmp_eq_u32 s4, 1\ns_cbranch_scc1 L_%s_p1" % tag)
        set_w(a, P_WD, P_WD, 7 * MB)
        a("s_lshr_b32 s6, s21, 1\ns_lshl_b32 s6, s6, 16\ns_add_u32 s5, s5, s6\nL_%s_p1:\nv_lshlrev_b32 v4, 7, v1" % tag)
        for k in range(4): a("buffer_load_dword v5, v4, s[12:15], s5 offen\nbuffer_load_dword v5, v4, s[12:15], s5 offen offset:64\ns_add_u32 s5, s5, 8192")
        a("L_%s_pf:" % tag)
    gA = Gemm("ga", 8, 8, 4); gAs = Gemm("gas", 8, 8, 4, swap=True); gB = Gemm("gb", 4, 4, 8); gBs = Gemm("gbs", 4, 4, 8, swap=True)
    def stub(t, g, pa, pb, wbytes, xrs, ldw, ngrp, ors, ohalf, epi, half=True, near=False):
        a("L_t%d:" % t)
        set_w(a, pa, pb, wbytes)
        a("s_mov_b32 s%d, %d\ns_mov_b32 s%d, %d\ns_mov_b32 s%d, %d\ns_mov_b32 s%d, %d\ns_mov_b32 s%d, %d\ns_mov_b32 s%d, %d" % (
            s_xrs, xrs, s_ldw, ldw, s_ngrp, ngrp, s_ors, ors, s_ohalf, ohalf, s_epi, epi))
        if half: a("s_lshr_b32 s%d, s%d, 1\ns_mul_i32 s%d, s%d, %d\ns_add_u32 s%d, s%d, s%d" % (t0_, s_w, t0_, t0_, g.BN, s_woff, s_woff, t0_))
        a("s_branch L_%s" % g.name)
    t0_ = 4
    stub(T_QA, gA, P_WQ, P_WQ, 8 * MB, 32768, 8192, 8, 131072, 4096, 0)
    stub(T_KA, gA, P_WK, P_WK, 8 * MB, 32768, 8192, 8, 262144, 4096, 1)
    stub(T_VA, gAs, P_WV, P_WV, 8 * MB, 32768, 8192, 8, 524288, 16384, 1)
    stub(T_KB, gB, P_WK, P_WK, 8 * MB, 32768, 8192, 4, 262144, 2048, 1)
    stub(T_VB, gBs, P_WV, P_WV, 8 * MB, 32768, 8192, 4, 524288, 4096, 1)
    class N:
        def __init__(q, n): q.name = n; q.BN = 128
    stub(T_SO, N("so"), P_WO, P_WO, 8 * MB, 131072, 2048, 0, 32768, 0, 0)
    stub(T_SGU, N("sgu"), P_WG, P_WU, 1024 * 7168, 32768, 7168, 0, 114688, 0, 0, half=False)
    stub(T_SD, N("sd"), P_WD, P_WD, 3584 * 2048, 114688, 2048, 0, 32768, 0, 0)
    a("L_ga:"); gA.body(a); near_fix("na", 1); wpf("na"); gA.epi_t16(a); a("s_branch L_w_done")
    a("L_gas:"); gAs.body(a); near_fix("nas", 1); wpf("nas"); gAs.epi_vt(a); a("s_branch L_w_done")
    a("L_gbs:"); gBs.body(a); near_fix("nbs", 0); gBs.epi_vt(a); a("s_branch L_w_done")
    a("L_gb:"); gB.body(a); near_fix("nb", 0); gB.epi_t16(a); a("s_branch L_w_done")
    a("L_t%d:" % T_PF)
    a("s_cmp_eq_u32 s52, 0\ns_cselect_b32 s12, s%d, s%d\ns_cselect_b32 s13, s%d, s%d\ns_mov_b32 s14, 0x800000\ns_mov_b32 s15, 0x00020000" % (P_WO, P_WQ, P_WO + 1, P_WQ + 1))
    a("s_lshl_b32 s4, s21, 14\ns_add_u32 s53, s53, s4\nL_pf:\ns_mov_b32 s4, s53")
    for k in range(16):
        a("buffer_load_dwordx4 v[8:11], v2, s[12:15], s4 offen offset:%d" % ((k % 4) * 1024))
        if k % 4 == 3: a("s_add_u32 s4, s4, 4096")
    a("s_waitcnt vmcnt(32)\ns_add_u32 s53, s53, 65536\ns_sub_u32 s54, s54, 1\ns_cmp_lg_u32 s54, 0\ns_cbranch_scc1 L_pf\ns_branch L_w_done")
    a("L_t%d:" % T_LN1); task_ln1(a, 52); a("s_branch L_w_done")
    WS_("so", 32, False, False).emit(a, trace, dsp, wnt, warm); WS_("sgu", 32, False, True).emit(a, trace, dsp, wnt, warm); WS_("sd", 28, True, False).emit(a, trace, dsp, wnt, warm)
    a("L_t%d:" % T_SLN); get_near("nl"); serv_rows(a, "sln", False, PART_O, PSLAB, RL, trace)
    a("L_t%d:" % T_SFIN); serv_rows(a, "sfin", True, PART_D, PSLAB, RF, trace)
    a("L_t%d:" % T_SATT); get_near("nt"); serv_att(a, C_HP, trace)
    a("L_w_done:")
    a("s_cmp_lg_u32 s21, 0\ns_cbranch_scc1 L_wi2_d")
    init_wait("wi2")
    a("s_waitcnt vmcnt(0)\ns_barrier")
    a("v_mov_b32 v7, %d" % CH.L_MISC)
    a("s_cmp_lg_u32 s21, 0\ns_cbranch_scc1 L_w_nx")
    a("""
    s_mov_b64 exec, 1
    s_lshr_b32 s4, s51, 16
    s_and_b32 s5, s51, 0xffff
    s_add_u32 s5, s5, %d
    v_mov_b32 v4, 0
    v_mov_b32 v5, s4
    v_mov_b32 v6, 1
    buffer_atomic_add v5, v4, s[8:11], s5 offen sc0
    buffer_atomic_add v6, v4, s[8:11], s60 offen sc0
    """ % FLAGS)
    if trace:
        a("s_memrealtime s[92:93]\ns_lshl_b32 s4, s61, 5\ns_add_u32 s4, s4, s58\ns_add_u32 s4, s4, %d\ns_waitcnt lgkmcnt(0)" % (FLAGS + 4 * MB))
        a("v_mov_b32 v8, s88\nv_mov_b32 v9, s90\nv_mov_b32 v10, s92\nv_mov_b32 v11, s22\nbuffer_store_dwordx4 v[8:11], v4, s[8:11], s4 offen")
    a("s_cmp_lg_u32 s48, %d\ns_cbranch_scc1 L_w_nf\ns_waitcnt vmcnt(%d)\nv_cmp_eq_u32 vcc, 15, v5\ns_cbranch_vccz L_w_nf" % (T_LN1, 2 if trace else 1))
    a("v_mov_b32 v5, 16\ns_add_u32 s5, s5, %d\nbuffer_store_dword v5, v4, s[8:11], s5 offen sc1\ns_waitcnt vmcnt(1)\ns_branch L_w_nf2\nL_w_nf:\ns_waitcnt vmcnt(0)\nL_w_nf2:" % (128 * C_LNF))
    a("""
    ds_write_b32 v7, v6
    s_waitcnt lgkmcnt(0)
    s_mov_b64 exec, -1
    L_w_nx:
    s_barrier
    ds_read_b32 v6, v7
    s_waitcnt lgkmcnt(0)
    v_readfirstlane_b32 s61, v6
    s_add_u32 s61, s61, 32
    s_branch L_w_task
    L_w_fail:
    s_mov_b64 exec, -1
    v_mov_b32 v7, %d
    v_mov_b32 v6, 0x7fffff00
    ds_write_b32 v7, v6
    v_mov_b32 v4, 96
    v_mov_b32 v5, 1
    buffer_atomic_add v5, v4, s[16:19], 0 offen
    s_waitcnt vmcnt(0) lgkmcnt(0)
    L_end:
    s_endpgm
    """ % CH.L_MISC)
    kernel_desc(a, NAME, 512, 102, 256)
    a(".p2align 6\ntask_table:")
    off = 64
    hdr = []
    for l in lists: hdr += [off, len(l)]; off += 32 * len(l)
    a(".long " + ", ".join(map(str, hdr + [0] * (16 - len(hdr)))))
    for l in lists:
        for i in l:
            t = T[i]
            a(".long %d,%d,%d,%d,%d,%d,%d,%d" % (t.typ, t.share if hasattr(t, 'share') else FLAGS + 128 * (t.wait + (C_LNF if t.wait < 8 else 0)), t.target, 128 * t.sig | (t.inc << 16), *t.p))
    gen.T, gen.lists = T, lists
    return a.text()
if __name__ == "__main__":
    HDR = open("sequential_preLN__memory_aug_recurrent_mem_tr__swiglu_ffn__prompt.s.ref").read().split("; Override launch")[0]
    BEST = dict(tau=2.3, t0=21, ckw=dict(stamps=0))
    open(sys.argv[1], "w").write(HDR + gen(**BEST))
```

```python
import sys
from asmlib import *
from layout import *

L_PL = 0; L_KV0 = 16384; L_KV1 = 32768; L_F = 49152; L_O = 53248; L_DUM = 55296; L_TR = 57344; L_WO = 65536
L_KX = L_KV1
L_MISC = 158720
LDS_BYTES = 163840
OOB = 0x80000000
SPIN = 400000
NVOTE = 8

def nop(a, n):
    while n > 0:
        k = min(n, 16); a("s_nop %d" % (k - 1)); n -= k

def srd(a, d, lo, hi, nbytes):
    a("s_mov_b32 s%d, s%d\ns_mov_b32 s%d, s%d\ns_mov_b32 s%d, 0x%x\ns_mov_b32 s%d, 0x00020000" % (d, lo, d + 1, hi, d + 2, nbytes, d + 3))

S_WS = 8; S_W = 12; S_DBG = 16
s_prog, s_tagl = 2, 3
s_xcc, s_w, s_i, s_x, s_h, s_b, s_step, s_spin = 20, 21, 22, 23, 24, 25, 26, 27
s_sent, s_scale = 28, 30
s_t0, s_t1, s_t2, s_t3 = 4, 5, 6, 7
o_qk_own, o_qk_par, s_e = 31, 32, 33
o_i3st = 34
o_i3ld, o_i3ld2, o_xs, o_xr, o_pl, o_plf, o_pp = 38, 39, 40, 41, 42, 43, 44
o_kv, o_km, b_kv, s_tag, s_cnt = 45, 46, 47, 48, 49
s_vt, m_kv, b_p, s_en = 52, 53, 54, 55
b_km, b_x = 100, 101
CUR = "s[12:15]"; WS = "s[8:11]"
R_QK2, R_I32 = 0, 524288
PBUF = RING + 2 * MB
o_qs, o_qr = 20, 24
v_ord, v_lane, v_l16, v_l8, v_idx, v_word, v_pst, v_i3st, v_i3l, v_xo, v_fown, v_fpar, v_owr, v_flag = range(14)
v_avx = 1
KMP = 14; M = 16; v_ones = 20; v_sel = 24
v_aq, v_ak, v_av = 28, 32, 36
V_WO = 96; V_WV = 128

def r4(v): return "v[%d:%d]" % (v, v + 3)
def r2(v): return "v[%d:%d]" % (v, v + 1)
def r8(v): return "v[%d:%d]" % (v, v + 7)

def wtile(m, f):
    if m == 0: return "a[%d:%d]" % (8 * f, 8 * f + 7)
    if m == 1: return "a[%d:%d]" % (128 + 8 * f, 128 + 8 * f + 7)
    return "v[%d:%d]" % (V_WV + 8 * f, V_WV + 8 * f + 7)

class LQ:
    def __init__(self, a): self.a = a; self.q = []
    def op(self, ins, tag=None): self.a(ins); self.q.append(tag)
    def need(self, tag):
        if tag not in self.q: return
        k = len(self.q) - 1 - self.q[::-1].index(tag)
        self.a("s_waitcnt lgkmcnt(%d)" % (len(self.q) - 1 - k)); self.q = self.q[k + 1:]
    def all(self):
        self.a("s_waitcnt lgkmcnt(0)"); self.q = []

def emit_chain(a, stamps=0, nsteps=64, pq=(6, 10, 14, 16), nokv=0, nokm=0, tw=0, focus=None, kvw=(3, 1), spos=(0, 1, 2, 3), rg=(40, 37), xl=(30, 16),
               v2=1, vpos=0, fdepth=24, xg=(14, 24, 36), xre=1, xb=1, x16=1, pbar=1, f16=1, cnt_='', worder=('o', 0, 1), rf=None, lin=0, nrep=1, fun=2, fchk=1, q2=1, vsplit=5, nv0=0, s1late=1, touch=1, wb=0):
    A = a
    from serv import PROG
    from sched import C_HP
    import struct, math
    def stamp(k):
        if focus:
            k = focus.get(k)
            if k is None: return
        elif not isinstance(k, int): return
        if stamps > 1: A("s_memtime s[%d:%d]" % (60 + 2 * k, 61 + 2 * k))
    def cnt(k):
        if stamps: A("s_add_u32 s%d, s%d, 1" % (96 + k, 96 + k))
    z = lambda r: "v_mov_b64 %s, 0" % r2(r)
    T = 40
    A("s_load_dwordx8 s[48:55], s[0:1], 16")
    A("s_lshr_b32 s%d, s%d, 1\ns_lshl_b32 s%d, s%d, 4\ns_add_u32 s%d, s%d, s%d\ns_and_b32 s%d, s%d, 1" % (s_h, s_i, s_t0, s_x, s_h, s_h, s_t0, s_b, s_i))
    A("v_lshlrev_b32 v%d, 4, v%d\nv_lshlrev_b32 v%d, 3, v%d" % (v_l16, v_lane, v_l8, v_lane))
    vq, vo, vrq, vro = T, T + 1, T + 2, T + 3
    A("v_lshrrev_b32 v%d, 3, v%d\nv_lshlrev_b32 v%d, 13, v%d\nv_and_b32 v%d, 7, v%d\nv_lshl_add_u32 v%d, v%d, 4, v%d" % (T + 4, v_lane, T + 4, T + 4, T + 5, v_lane, vq, T + 5, T + 4))
    A("v_bfe_u32 v%d, v%d, 5, 1\nv_lshlrev_b32 v%d, 4, v%d" % (T + 4, v_lane, T + 4, T + 4))
    A("v_bfe_u32 v%d, v%d, 3, 1\nv_lshl_add_u32 v%d, v%d, 3, v%d" % (T + 5, v_lane, T + 4, T + 5, T + 4))
    A("v_bfe_u32 v%d, v%d, 2, 1\nv_add_u32 v%d, v%d, v%d" % (T + 5, v_lane, T + 4, T + 5, T + 4))
    A("v_bfe_u32 v%d, v%d, 4, 1\nv_lshl_add_u32 v%d, v%d, 2, v%d" % (T + 5, v_lane, T + 4, T + 5, T + 4))
    A("v_and_b32 v%d, 3, v%d\nv_lshlrev_b32 v%d, 3, v%d" % (T + 5, v_lane, T + 5, T + 5))
    A("s_lshl_b32 s%d, s%d, 5\nv_add_u32 v%d, s%d, v%d\nv_lshl_add_u32 v%d, v%d, 7, v%d" % (s_t0, s_w, T + 6, s_t0, T + 5, vrq, T + 4, T + 6))
    A("v_bfe_u32 v%d, v%d, 4, 1\nv_xor_b32 v%d, s%d, v%d\nv_lshlrev_b32 v%d, 4, v%d" % (T + 4, v_lane, T + 4, s_b, T + 4, T + 4, T + 4))
    A("v_bfe_u32 v%d, v%d, 5, 1\nv_lshl_add_u32 v%d, v%d, 2, v%d" % (T + 6, v_lane, T + 4, T + 6, T + 4))
    A("v_bfe_u32 v%d, v%d, 2, 1\nv_add_u32 v%d, v%d, v%d" % (T + 6, v_lane, T + 4, T + 6, T + 4))
    A("v_bfe_u32 v%d, v%d, 3, 1\nv_lshl_add_u32 v%d, v%d, 5, v%d" % (T + 6, v_lane, T + 5, T + 6, T + 5))
    A("s_lshl_b32 s%d, s%d, 8\nv_add_u32 v%d, s%d, v%d\nv_lshl_add_u32 v%d, v%d, 10, v%d" % (s_t0, s_w, T + 6, s_t0, T + 5, vro, T + 4, T + 6))
    A("s_waitcnt lgkmcnt(0)")
    chunks = [(m, c) for m in list(worder) + [2] for c in range(4)]
    bufs = [(2, 3, 4, 0, 1)[k] for k in [0, 1, 2, 3, 4, 0, 1, 2, 3, 4, 0, 1, 3, 4, 3, 4]]
    def issue(ci):
        kind, c = chunks[ci]; buf = bufs[ci]
        p = 54 if kind == "o" else 48 + 2 * kind
        srd(a, S_W, p, p + 1, 8 * MB)
        A("s_lshl_b32 s%d, s%d, 13\ns_add_u32 s%d, s%d, %d" % (s_t2, s_w, s_t2, s_t2, buf * 32768))
        if kind == "o":
            A("s_lshr_b32 s%d, s%d, 1\ns_lshl_b32 s%d, s%d, 6\ns_and_b32 s%d, s%d, 1\ns_lshl_b32 s%d, s%d, 3\ns_add_u32 s%d, s%d, s%d" % (
                s_t0, s_w, s_t0, s_t0, s_t1, s_w, s_t1, s_t1, s_t0, s_t0, s_t1))
            A("s_lshl_b32 s%d, s%d, 7\ns_add_u32 s%d, s%d, s%d\ns_add_u32 s%d, s%d, %d\ns_lshl_b32 s%d, s%d, 11" % (s_t1, s_h, s_t0, s_t0, s_t1, s_t0, s_t0, 16 * c, s_t0, s_t0))
            A("s_lshl_b32 s%d, s%d, 10\ns_add_u32 s%d, s%d, s%d" % (s_t1, s_b, s_t0, s_t0, s_t1))
            va, stride = v_l16, 2048
        else:
            A("s_lshl_b32 s%d, s%d, 6\ns_add_u32 s%d, s%d, %d\ns_lshl_b32 s%d, s%d, 13" % (s_t0, s_w, s_t0, s_t0, 256 * c, s_t0, s_t0))
            A("s_lshl_b32 s%d, s%d, 8\ns_add_u32 s%d, s%d, s%d\ns_lshl_b32 s%d, s%d, 7\ns_add_u32 s%d, s%d, s%d" % (s_t1, s_h, s_t0, s_t0, s_t1, s_t1, s_b, s_t0, s_t0, s_t1))
            va, stride = vq, 8 * 8192
        for j in range(8):
            A("s_add_u32 m0, s%d, %d\ns_nop 0" % (s_t2, j * 1024))
            A("buffer_load_dwordx4 v%d, s[12:15], s%d offen%s lds" % (va, s_t0, cnt_))
            if j < 7: A("s_add_u32 s%d, s%d, %d" % (s_t0, s_t0, stride))
    issued = 0
    extra = [0]
    def consume(ci):
        kind, c = chunks[ci]; buf = bufs[ci]
        A("s_waitcnt vmcnt(%d)\ns_barrier" % (8 * (issued - ci - 1) + extra[0]))
        A("v_add_u32 v%d, %d, v%d" % (T + 8, buf * 32768, vro if kind == "o" else vrq))
        if kind == "o":
            for u in range(4):
                for rho in range(4):
                    d = V_WV + (u * 4 + c) * 8 + 2 * rho
                    A("ds_read_b64_tr_b16 %s, v%d offset:%d" % (r2(d), T + 8, (8 * (rho >> 1) + 2 * (rho & 1)) * 1024 + u * 64))
        else:
            for fp in range(4):
                for rho in range(4):
                    f = 4 * c + fp
                    base = (8 * f if kind == 0 else 128 + 8 * f if kind == 1 else V_WV + 8 * f) + 2 * rho
                    dst = ("a[%d:%d]" if kind < 2 else "v[%d:%d]") % (base, base + 1)
                    A("ds_read_b64_tr_b16 %s, v%d offset:%d" % (dst, T + 8, (64 * fp + 32 * (rho >> 1) + 2 * (rho & 1)) * 128))
        A("s_waitcnt lgkmcnt(0)\ns_barrier")
    if stamps: A("s_memtime s[56:57]\ns_waitcnt lgkmcnt(0)\ns_sub_u32 s80, s56, s94")
    for ci in range(5): issue(ci); issued += 1
    if stamps: A("s_memtime s[56:57]\ns_waitcnt lgkmcnt(0)\ns_sub_u32 s88, s56, s94")
    T = 52
    A("s_mov_b32 s%d, 0x%x\ns_mov_b32 s%d, 0x%x" % (s_sent, SENT, s_sent + 1, SENT))
    A("s_mov_b32 s%d, 0x%x" % (s_scale, struct.unpack("<I", struct.pack("<f", 128 ** -0.5 * math.log2(math.e)))[0]))
    A("v_and_b32 v%d, 15, v%d\nv_lshrrev_b32 v%d, 4, v%d\nv_and_b32 v%d, 7, v%d" % (T, v_lane, T + 1, v_lane, T + 2, v_lane))
    A("v_cmp_gt_u32 vcc, 8, v%d\nv_mov_b32 v%d, 0xeeee\nv_mov_b32 v%d, 0x4444\nv_cndmask_b32 v%d, v%d, v%d, vcc" % (T, T + 3, T + 4, v_idx, T + 3, T + 4))
    A("v_lshl_add_u32 v%d, v%d, 3, v%d\nv_lshlrev_b32 v%d, 4, v%d" % (T + 5, T + 1, T + 2, T + 5, T + 5))
    A("v_add_u32 v%d, %d, v%d\ns_lshl_b32 s%d, s%d, 9\nv_add_u32 v%d, s%d, v%d" % (v_ord, L_O, T + 5, s_t0, s_w, v_xo, s_t0, v_l8))
    if x16: A("v_lshrrev_b32 v%d, 1, v%d" % (v_xo, v_xo))
    A("s_lshl_b32 s%d, s%d, 8\ns_cmp_lt_u32 s%d, 2\ns_cselect_b32 s%d, s%d, 0x%x\ns_lshl_b32 s%d, s%d, 9\ns_add_u32 s%d, s%d, s%d" % (s_t1, s_w, s_w, s_t1, s_t1, OOB, s_t0, s_i, s_t0, s_t0, s_t1))
    A("v_mov_b32 v%d, 0x%x\nv_lshrrev_b32 v%d, 5, v%d\nv_lshl_add_u32 v%d, v%d, 3, v%d\nv_lshlrev_b32 v%d, 4, v%d" % (T + 7, OOB, T + 6, v_lane, T + 6, T + 6, T + 2, T + 6, T + 6))
    A("v_bfe_u32 v%d, v%d, 4, 1\nv_lshl_add_u32 v%d, v%d, 3, v%d\nv_add_u32 v%d, s%d, v%d\nv_bfe_u32 v%d, v%d, 3, 1\nv_lshl_add_u32 v%d, v%d, 2, v%d" % (T + 8, v_lane, T + 6, T + 8, T + 6, T + 6, s_t0, T + 6, T + 8, v_lane, v_pst, T + 8, T + 6))
    A("s_lshl_b32 s%d, s%d, 9\ns_add_u32 s%d, s%d, %d" % (s_t0, s_w, s_t0, s_t0, L_O))
    A("v_and_b32 v%d, 5, v%d\nv_bfe_u32 v%d, v%d, 3, 1\nv_lshl_add_u32 v%d, v%d, 1, v%d\nv_lshl_add_u32 v%d, v%d, 3, v%d" % (T + 6, v_lane, T + 7, v_lane, T + 6, T + 7, T + 6, T + 6, T + 1, T + 6))
    A("v_lshl_add_u32 v%d, v%d, 4, s%d\nv_add_u32 v%d, %d, v%d\nv_and_b32 v%d, 2, v%d\nv_cmp_ne_u32 vcc, 0, v%d\ns_nop 1" % (T + 6, T + 6, s_t0, T + 7, L_DUM, v_l16, T + 8, v_lane, T + 8))
    A("v_cndmask_b32 v%d, v%d, v%d, vcc" % (v_owr, T + 7, T + 6))
    A("v_lshrrev_b32 v%d, 1, v%d\nv_lshl_add_u32 v%d, v%d, 4, v%d\nv_lshlrev_b32 v%d, 4, v%d" % (T + 3, T + 1, T + 3, T + 3, T, T + 3, T + 3))
    A("v_and_b32 v%d, 1, v%d\nv_lshl_add_u32 v%d, v%d, 3, v%d" % (T + 4, T + 1, v_i3st, T + 4, T + 3))
    A("v_lshlrev_b32 v%d, 4, v%d\nv_lshl_add_u32 v%d, v%d, 9, v%d" % (T + 3, T, v_i3l, T + 1, T + 3))
    A("v_lshlrev_b32 v%d, 5, v%d\nv_lshl_add_u32 v%d, v%d, 3, v%d" % (T + 3, T, T + 3, T + 1, T + 3))
    A("s_lshl_b32 s%d, s%d, 9\ns_add_u32 s%d, s%d, %d" % (s_t0, s_w, s_t0, s_t0, L_F))
    A("v_add_u32 v%d, s%d, v%d\nv_xor_b32 v%d, 2048, v%d" % (v_fown, s_t0, T + 3, v_fpar, v_fown))
    A("s_lshl_b32 s%d, s%d, 1\ns_add_u32 s%d, s%d, s%d\nv_mov_b32 v%d, 0x%x" % (s_t0, s_i, s_t0, s_t0, s_w, v_flag, OOB))
    for k in range(nrep): A("v_writelane_b32 v%d, s%d, %d\ns_add_u32 s%d, s%d, 256" % (v_flag, s_t0, k, s_t0, s_t0))
    A("s_cmp_lt_u32 s%d, 2\ns_cbranch_scc1 L_c_fl01\ns_and_b32 s%d, s%d, %d\ns_lshl_b32 s%d, s%d, 8\nv_lshl_add_u32 v%d, v%d, 2, s%d\nL_c_fl01:" % (s_w, s_t0, s_i, nrep - 1, s_t0, s_t0, v_flag, v_lane, s_t0))
    A("s_mul_i32 s%d, s%d, 24576\ns_add_u32 s%d, s%d, %d\nv_add_u32 v%d, s%d, v%d" % (s_t0, s_w, s_t0, s_t0, L_WO, v_word, s_t0, v_l16))
    A("v_mov_b32 v%d, 0x3f80\nv_mov_b32 v%d, 0x3f800000\nv_mov_b32 v%d, 0" % (T + 3, T + 4, T + 5))
    for q in range(4):
        A("v_cmp_eq_u32 vcc, %d, v%d\ns_nop 1\nv_cndmask_b32 v%d, v%d, v%d, vcc" % (2 * q, T + 2, v_sel + q, T + 5, T + 3))
        A("v_cmp_eq_u32 vcc, %d, v%d\ns_nop 1\nv_cndmask_b32 v%d, v%d, v%d, vcc" % (2 * q + 1, T + 2, v_sel + q, v_sel + q, T + 4))
    A("s_lshl_b32 s%d, s%d, 5\ns_add_u32 s%d, s%d, s%d" % (s_t0, s_x, s_t0, s_t0, s_i))
    A("s_lshl_b32 s%d, s%d, 2\ns_add_u32 s%d, s%d, s%d\ns_lshl_b32 s%d, s%d, 11\ns_xor_b32 s%d, s%d, 8192" % (s_t1, s_t0, s_t1, s_t1, s_w, o_qk_own, s_t1, o_qk_par, o_qk_own))
    A("s_lshr_b32 s%d, s%d, 1\ns_lshl_b32 s%d, s%d, 14\ns_lshl_b32 s%d, s%d, 12\ns_add_u32 s%d, s%d, s%d\ns_add_u32 s%d, s%d, %d" % (s_t1, s_t0, s_t1, s_t1, s_t2, s_b, s_t1, s_t1, s_t2, b_x, s_t1, PRB))
    A("s_lshl_b32 s%d, s%d, 7\ns_add_u32 s%d, s%d, %d" % (s_prog, s_t0, s_prog, s_prog, PROG))
    A("s_lshl_b32 s%d, s%d, 2\ns_add_u32 s%d, s%d, s%d\ns_lshl_b32 s%d, s%d, 6" % (s_t1, s_b, s_t1, s_t1, s_w, s_t1, s_t1))
    A("s_lshr_b32 s%d, s%d, 1\ns_add_u32 s%d, s%d, s%d\ns_lshl_b32 s%d, s%d, 9" % (s_t2, s_i, s_t1, s_t1, s_t2, s_t1, s_t1))
    A("s_lshl_b32 s%d, s%d, 18\ns_add_u32 s%d, s%d, %d\ns_add_u32 s%d, s%d, s%d" % (s_t2, s_x, s_t2, s_t2, R_I32, o_i3st, s_t1, s_t2))
    for u in range(1, 4): A("s_add_u32 s%d, s%d, %d" % (o_i3st + u, o_i3st, u * 8192))
    A("s_lshl_b32 s%d, s%d, 13\ns_add_u32 s%d, s%d, s%d\ns_lshl_b32 s%d, s%d, 8\ns_add_u32 s%d, s%d, s%d\ns_add_u32 s%d, s%d, 4096" % (s_t1, s_i, s_t3, s_t1, s_t2, s_t1, s_w, o_i3ld, s_t3, s_t1, o_i3ld2, o_i3ld))
    A("s_lshl_b32 s%d, s%d, 12\ns_add_u32 s%d, s%d, %d" % (s_tagl, s_x, s_tagl, s_tagl, PFL))
    if stamps: A("s_memtime s[56:57]\ns_waitcnt lgkmcnt(0)\ns_sub_u32 s89, s56, s94")
    for k in range(4): A("v_mov_b32 v%d, 0\nv_mov_b32 v%d, -1" % (64 + k, 68 + k))
    A("v_mov_b64 v[72:73], s[%d:%d]" % (s_sent, s_sent + 1))
    A("s_lshl_b32 s%d, s%d, 11\ns_add_u32 s%d, s%d, s%d" % (s_t1, s_w, s_t3, s_t3, s_t1))
    ninit = 0
    for sl in range(2):
        A("s_add_u32 s%d, s%d, %d\ns_add_u32 s%d, s%d, %d" % (s_t0, o_qk_own, RING + sl * SLOT, s_t1, s_t3, RING + sl * SLOT))
        for k in range(2):
            A("buffer_store_dwordx4 v[64:67], v%d, %s, s%d offen offset:%d\nbuffer_store_dwordx4 v[68:71], v%d, %s, s%d offen offset:%d" % (v_l16, WS, s_t0, k * 1024, v_l16, WS, s_t1, k * 1024))
        A("s_lshl_b32 s%d, s%d, 14\ns_add_u32 s%d, s%d, %d\nbuffer_store_dword v72, v%d, %s, s%d offen" % (s_t0, s_x, s_t0, s_t0, PBUF + sl * 262144, v_pst, WS, s_t0))
        A("s_lshr_b32 s%d, s%d, 2\ns_add_u32 s%d, s%d, %d\nbuffer_store_dwordx2 v[72:73], v%d, %s, s%d offen" % (s_t0, o_qk_own, s_t0, s_t0, PBUF + sl * 262144 + 131072, v_l8, WS, s_t0))
        ninit += 6
    A("s_lshr_b32 s%d, s%d, 1\ns_lshl_b32 s%d, s%d, 19\ns_and_b32 s%d, s%d, 1\ns_lshl_b32 s%d, s%d, 13\ns_add_u32 s%d, s%d, s%d\ns_add_u32 s%d, s%d, s%d" % (
        s_t0, s_w, s_t0, s_t0, s_t1, s_w, s_t1, s_t1, s_t0, s_t0, s_t1, s_t0, s_t0, b_x))
    A("buffer_store_dwordx4 v[68:71], v%d, %s, s%d offen sc1\nbuffer_store_byte v64, v%d, %s, s%d offen" % (v_l16, WS, s_t0, v_flag, WS, s_tagl))
    ninit += 2
    T = 40
    nxt_after = {0: [5], 1: [6], 2: [7], 3: [8], 4: [9], 5: [10], 6: [11], 8: [12], 9: [13], 12: [14], 13: [15]}
    for ci in range(16):
        extra[0] = ninit if ci < 5 else 0
        consume(ci)
        if stamps and ci in (0, 3, 7, 11, 15): A("s_memtime s[56:57]\ns_waitcnt lgkmcnt(0)\ns_sub_u32 s%d, s56, s94" % (81 + (ci + 1) // 4))
        if ci == 5:
            A("s_cmp_lg_u32 s%d, 0\ns_cbranch_scc1 L_c_nog\nv_mov_b32 v64, 1\nv_mov_b32 v65, 64\ns_mov_b64 exec, 1\nbuffer_atomic_add v64, v65, s[16:19], 0 offen\ns_mov_b64 exec, -1\nL_c_nog:" % s_w)
        for n in nxt_after.get(ci, []):
            assert n == issued
            issue(n); issued += 1
        if ci == 11:
            for fr in range(12):
                for hf in range(2):
                    A("ds_write_b128 v%d, %s offset:%d" % (v_word, r4(V_WV + fr * 8 + 4 * hf), fr * 2048 + hf * 1024))
            for k in range(32): A("v_mov_b32 v%d, v%d" % (V_WO + k, V_WV + 96 + k))
            A("s_waitcnt lgkmcnt(0)")
    if touch:
        A("s_mul_i32 s%d, s%d, 1792\ns_add_u32 s%d, s%d, s%d" % (s_t3, s_w, s_t3, s_t3, o_i3ld))
        for sl in range(2):
            A("s_add_u32 s%d, s%d, %d\ns_add_u32 s%d, s%d, %d" % (s_t0, o_qk_own, RING + sl * SLOT, s_t1, s_t3, RING + sl * SLOT))
            A("buffer_load_dwordx2 v[64:65], v%d, %s, s%d offen offset:1024 sc1" % (v_l8, WS, s_t0))
            for k in range(2): A("buffer_load_dwordx4 v[64:67], v%d, %s, s%d offen offset:%d sc1" % (v_l16, WS, s_t1, k * 1024))
        for sl in range(4):
            A("s_lshl_b32 s%d, s%d, 14\ns_add_u32 s%d, s%d, %d\nbuffer_load_dword v64, v%d, %s, s%d offen sc1" % (s_t0, s_x, s_t0, s_t0, PBUF + sl * 262144, v_pst, WS, s_t0))
            A("s_lshr_b32 s%d, s%d, 2\ns_add_u32 s%d, s%d, %d\nbuffer_load_dwordx2 v[64:65], v%d, %s, s%d offen sc1" % (s_t0, o_qk_own, s_t0, s_t0, PBUF + sl * 262144 + 131072, v_l8, WS, s_t0))
        A("buffer_load_ubyte v64, v%d, %s, s%d offen sc1" % (v_flag, WS, s_tagl))
        A("v_lshlrev_b32 v66, 21, v%d\ns_mov_b32 s%d, %d\ns_mov_b32 exec_hi, 0xffff\nbuffer_load_dword v64, v66, %s, s%d offen sc1\ns_mov_b32 exec_hi, -1" % (v_lane, s_t0, KX - 128, WS, s_t0))
    A("s_load_dwordx2 s[48:49], s[0:1], 8\ns_mov_b32 s%d, %d\nv_lshlrev_b32 v41, 7, v%d\nv_add_u32 v41, 64, v41\ns_mov_b64 exec, 3" % (s_spin, SPIN, v_lane))
    A("L_c_w:\nbuffer_load_dword v40, v41, s[16:19], 0 offen sc1\ns_sub_u32 s%d, s%d, 1\ns_cbranch_scc1 L_c_fail\ns_waitcnt vmcnt(0)" % (s_spin, s_spin))
    A("v_readlane_b32 s%d, v40, 0\nv_readlane_b32 s%d, v40, 1\ns_cmp_lt_u32 s%d, 68\ns_cbranch_scc1 L_c_w\ns_and_b32 s%d, s%d, 0xffff\ns_cmp_lt_u32 s%d, %d\ns_cbranch_scc1 L_c_w" % (
        s_t0, s_t3, s_t0, s_t0, s_t3, s_t0, NVOTE))
    A("s_mov_b64 exec, -1\ns_lshr_b32 s%d, s%d, 16\ns_cmp_ge_u32 s%d, %d\ns_cselect_b32 s%d, 8192, 0\ns_waitcnt lgkmcnt(0)" % (s_t3, s_t3, s_t3, NVOTE // 2, s_t3))
    srd(a, S_W, 48, 49, 16384)
    A("v_and_b32 v%d, 7, v%d\nv_lshlrev_b32 v%d, 11, v%d\nv_lshrrev_b32 v%d, 4, v%d\nv_lshl_add_u32 v%d, v%d, 3, v%d" % (T, v_lane, T, T, T + 1, v_lane, T, T + 1, T))
    A("s_lshl_b32 s%d, s%d, 6\ns_and_b32 s%d, s%d, 1\ns_lshl_b32 s%d, s%d, 5\ns_add_u32 s%d, s%d, s%d" % (s_t0, s_i, s_t1, s_w, s_t1, s_t1, s_t0, s_t0, s_t1))
    A("buffer_load_dwordx2 v[48:49], v%d, s[12:15], s%d offen" % (T, s_t0))
    A("s_add_u32 s%d, s%d, s%d\ns_add_u32 s%d, s%d, s%d" % (b_x, b_x, s_t3, s_prog, s_prog, s_t3))
    A("s_lshr_b32 s%d, s%d, 1\ns_lshl_b32 s%d, s%d, 7\ns_add_u32 s%d, s%d, %d" % (s_t0, s_h, s_cnt, s_t0, s_cnt, s_cnt, FLAGS + 128 * C_HP))
    A("s_lshl_b32 s%d, s%d, 14\ns_and_b32 s%d, s%d, 1\ns_lshl_b32 s%d, s%d, 12\ns_add_u32 s%d, s%d, s%d" % (s_t0, s_t0, s_t2, s_h, s_t2, s_t2, s_t0, s_t0, s_t2))
    A("s_lshl_b32 s%d, s%d, 18\ns_add_u32 s%d, s%d, s%d\ns_add_u32 s%d, s%d, %d" % (s_t2, s_w, s_t2, s_t2, s_t0, s_t2, s_t2, KX))
    A("s_lshl_b32 s%d, s%d, 14\ns_lshl_b32 s%d, s%d, 12\ns_add_u32 s%d, s%d, s%d\ns_add_u32 s%d, s%d, %d" % (s_t0, s_h, s_t1, s_w, b_kv, s_t0, s_t1, b_kv, b_kv, VT - 8192))
    A("s_cmp_lt_u32 s%d, 2\ns_cselect_b32 s%d, s%d, s%d\ns_add_u32 s%d, s%d, s%d\ns_add_u32 s%d, s%d, %d" % (s_w, b_kv, s_t2, b_kv, b_kv, b_kv, s_t3, m_kv, s_t1, L_KV1))
    A("s_lshl_b32 s%d, s%d, 2\ns_add_u32 s%d, s%d, s%d\ns_lshl_b32 s%d, s%d, 10" % (s_vt, s_b, s_vt, s_vt, s_w, s_vt, s_vt))
    A("s_lshr_b32 s%d, s%d, 1\ns_add_u32 s%d, s%d, s%d\ns_add_u32 s%d, s%d, s%d\ns_add_u32 s%d, s%d, %d" % (s_t1, s_vt, b_km, s_t0, s_t1, b_km, b_km, s_t3, b_km, b_km, KM))
    A("s_lshl_b32 s%d, s%d, 14\ns_add_u32 s%d, s%d, %d" % (b_p, s_x, b_p, b_p, PBUF))
    A("s_add_u32 s%d, s%d, %d\nv_add_u32 v%d, s%d, v%d" % (s_t0, s_vt, L_KV1, v_avx, s_t0, v_l16))
    A("s_lshl_b32 s%d, s%d, 11\ns_sub_u32 s%d, s%d, s%d" % (s_t0, s_b, s_vt, s_vt, s_t0))
    def wait_kv(tag, off):
        A("v_mov_b32 v40, 0\nL_c_kw%s:" % tag)
        A("buffer_load_dword v41, v40, %s, s%d offen sc1" % (WS, off))
        A("s_sub_u32 s%d, s%d, 1\ns_cbranch_scc1 L_c_fail\ns_waitcnt vmcnt(0)" % (s_spin, s_spin))
        A("v_and_b32 v41, 15, v41\nv_cmp_ne_u32 vcc, 8, v41\ns_cbranch_vccnz L_c_kw%s" % tag)
    def signal(val):
        A("v_mov_b32 v40, 0\nv_mov_b32 v41, %s\ns_mov_b64 exec, 1\nbuffer_store_dword v41, v40, %s, s%d offen sc1\ns_mov_b64 exec, -1" % (val, WS, s_prog))
    if stamps: A("s_memtime s[56:57]\ns_waitcnt lgkmcnt(0)\ns_sub_u32 s86, s56, s94")
    wait_kv("0", s_cnt)
    if stamps: A("s_memtime s[56:57]\ns_waitcnt lgkmcnt(0)\ns_sub_u32 s87, s56, s94")
    def kv_ld(js, off=o_kv): return ["buffer_load_dwordx4 v%d, %s, s%d offen offset:%d sc1 lds" % (v_l16, WS, off, j * 1024) for j in js]
    kv_flip = "s_xor_b32 s%d, s%d, %d" % (m_kv, m_kv, L_KV0 ^ L_KV1)
    for x in ["s_mov_b32 m0, s%d" % m_kv, kv_flip] + kv_ld(range(4), b_kv): A(x)
    J1 = list(range(kvw[0])); J2 = list(range(kvw[0], 4))
    if nokv: J1 = J2 = []
    RD = 60
    for k in range(2): A("v_lshlrev_b32 v%d, 16, v%d\nv_and_b32 v%d, 0xffff0000, v%d" % (RD + 2 * k, 48 + k, RD + 2 * k + 1, 48 + k))
    A("s_mov_b32 s14, %d\ns_mov_b32 s15, 0x00020000\ns_mov_b32 s%d, 0\ns_mov_b32 s50, 0x3f803f80\ns_mov_b32 s51, 0x3f803f80" % (SLOT, s_step))
    def seg_off(dst, base, delta):
        A("s_add_u32 s%d, s%d, %d\ns_lshl_b32 s%d, s%d, 11\ns_and_b32 s%d, s%d, 8192\ns_xor_b32 s%d, s%d, s%d\ns_lshl_b32 s%d, s%d, 19\ns_add_u32 s%d, s%d, s%d" % (
            s_t0, s_step, delta, s_t1, s_t0, s_t1, s_t1, s_t1, s_t1, base, s_t0, s_t0, dst, s_t0, s_t1))
    def book():
        A("s_and_b32 s%d, s%d, 3\ns_lshl_b32 s%d, s%d, 18\ns_add_u32 s%d, s%d, s%d\ns_xor_b32 s%d, s%d, 524288" % (s_t0, s_step, s_t1, s_t0, o_pl, s_t1, b_p, o_pp, o_pl))
        A("s_lshr_b32 s%d, s%d, 2\ns_add_u32 s%d, s%d, s%d\ns_add_u32 s%d, s%d, %d\ns_xor_b32 s%d, s%d, 2048" % (o_qs, o_qk_own, o_qs, o_qs, s_t1, o_qs, o_qs, PBUF + 131072, o_qr, o_qs))
        A("s_lshl_b32 s%d, s%d, 10\ns_add_u32 s%d, s%d, s%d\ns_lshr_b32 s%d, s%d, 1\ns_add_u32 s%d, s%d, 1" % (s_t1, s_w, o_plf, o_pl, s_t1, s_en, s_t0, s_tag, s_step))
        A("s_and_b32 s%d, s%d, 1\ns_lshl_b32 s%d, s%d, 19\ns_add_u32 s%d, s%d, s%d" % (s_t0, s_step, s_t1, s_t0, o_xs, s_t1, b_x))
        A("s_lshl_b32 s%d, s%d, 20\ns_add_u32 s%d, s%d, %d\ns_add_u32 s12, s8, s%d\ns_addc_u32 s13, s9, 0" % (s_t0, s_t0, s_t0, s_t0, RING, s_t0))
        seg_off(o_km, b_km, 0); seg_off(o_kv, b_kv, 1)
    def prep():
        A("v_subrev_u32 v45, s%d, v%d\nv_xor_b32 v44, 2048, v45" % (s_vt, v_avx))
        for k in range(8): A("ds_read_b128 %s, v%d offset:%d" % (r4(64 + 4 * k), 44 if k & 2 else 45, (k >> 2) * 4096 + (k & 1) * 1024))
        A("v_mov_b32 v%d, s%d" % (M + 3, s_tag))
        for k in range(6): A(z(v_aq + 2 * k))
    ppoison = ["v_mov_b64 v[40:41], s[%d:%d]" % (s_sent, s_sent + 1), "buffer_store_dword v40, v%d, %s, s%d offen" % (v_pst, WS, o_pp),
               "s_xor_b32 s%d, s%d, 524288" % (s_t0, o_qs), "buffer_store_dwordx2 v[40:41], v%d, %s, s%d offen" % (v_l8, WS, s_t0)]
    book()
    A("s_waitcnt vmcnt(0)\ns_barrier")
    if stamps:
        A("s_memtime s[56:57]\ns_memrealtime s[58:59]")
        for k in range(4): A("s_mov_b32 s%d, 0" % (96 + k))
        A("s_waitcnt lgkmcnt(0)")
    AR = 40; NR = 6
    def smf(m, f): A("v_smfmac_f32_16x16x64_bf16 %s, %s, %s, v%d" % (r4((v_aq, v_ak, v_av)[m]), r4(AR + 4 * (f % NR)), wtile(m, f % 16), v_idx))
    def qrd(lq, f): lq.op("ds_read_b128 %s, v%d offset:%d" % (r4(AR + 4 * (f % NR)), v_l16, L_PL + (f % 16) * 1024), ("A", f))
    def fetch_pre(): A("s_lshl_b32 m0, s%d, 10\ns_mov_b32 s%d, s%d" % (s_w, s_t1, o_plf))
    def fetch():
        for j in range(4):
            A("buffer_load_dwordx4 v%d, %s, s%d offen sc1 lds" % (v_l16, WS, s_t1))
            if j < 3: A("s_add_u32 m0, m0, 4096\ns_add_u32 s%d, s%d, 4096" % (s_t1, s_t1))
    A("s_cmp_ge_u32 s%d, 2\ns_cbranch_scc1 L_c_idle3" % s_w)
    prep()
    for x in ppoison: A(x)
    HM = "s[90:91]"
    A("s_mov_b32 s90, 0xff00ff00\ns_mov_b32 s91, 0xff00ff00")
    A("v_cndmask_b32 v20, v60, v62, %s\nv_cndmask_b32 v21, v61, v63, %s\nv_cvt_pk_bf16_f32 v46, v20, v21" % (HM, HM))
    A("L_c_xok:")
    A("buffer_store_dword v46, v%d, %s, s%d offen" % (v_pst, WS, o_pl))
    A("buffer_store_byte v%d, v%d, %s, s%d offen" % (M + 3, v_flag, WS, s_tagl))
    stamp(1)
    A("L_c_b0:")
    if pbar: A("s_barrier")
    if stamps == 3:
        A("s_waitcnt lgkmcnt(0)")
        A("s_mul_i32 s%d, s%d, 64\ns_add_u32 s%d, s%d, %d\ns_cmp_lg_u32 s%d, %d\ns_cselect_b32 s%d, %d, s%d\nv_mov_b32 v60, s%d" % (
            s_t0, s_step, s_t0, s_t0, L_TR, s_w, tw, s_t0, L_DUM, s_t0, s_t0))
        for k in range(14):
            A("v_mov_b32 v61, s%d\nds_write_b32 v60, v61 offset:%d" % (60 + 2 * k if k < 10 else 86 + k, 4 * k))
    fetch_pre()
    A("L_c_b0x:")
    A("s_barrier")
    if f16: A("s_mov_b64 exec, -1")
    stamp(9)
    if stamps == 3: A("s_memrealtime s[64:65]")
    fetch()
    A("s_mov_b32 m0, s%d\ns_mov_b32 s%d, s%d\ns_waitcnt vmcnt(3) lgkmcnt(0)" % (m_kv, s_e, s_en))
    A("L_c_b1:")
    A("s_barrier")
    stamp(0)
    lq = LQ(a)
    for f in range(4): qrd(lq, f)
    slow = kv_ld(J1); nj = 0; rdn = 4
    for f in range(11):
        lq.need(("A", f)); smf(0, f)
        while rdn <= min(f + NR - 1, 15) and f > 0:
            if rdn % 4 == 0: A("s_waitcnt vmcnt(%d)\ns_barrier" % (3 - rdn // 4 + nj))
            qrd(lq, rdn); rdn += 1
        smf(1, f)
        if f < nv0: smf(2, f)
        if slow and f in spos:
            A(slow.pop(0)); nj += 1
    assert not slow
    for f in range(11, 16):
        lq.need(("A", f)); smf(0, f)
    VS = list(range(nv0, 11))
    slot = lambda k: AR + 4 * ((10 + k) % NR)
    def vrd(k): lq.op("ds_read_b128 %s, v%d offset:%d" % (r4(slot(k)), v_l16, L_PL + VS[k] * 1024), ("V", k))
    smf(1, 11); vrd(0); nop(a, 1); smf(1, 12); nop(a, 2); smf(1, 13); nop(a, 1)
    A("v_permlane32_swap_b32 v28, v30")
    smf(1, 14)
    A("v_permlane32_swap_b32 v29, v31")
    smf(1, 15)
    A("v_add_f32 v28, v28, v30\nv_add_f32 v29, v29, v31")
    smf(2, 11)
    A("v_cmp_u_f32 vcc, v28, v29\nv_cvt_pk_bf16_f32 v%d, v28, v29" % (KMP + 1))
    vrd(1)
    A("v_mov_b64 %s, s[%d:%d]\ns_nop 0" % (r2(M), s_sent, s_sent + 1))
    A("v_permlane32_swap_b32 v32, v34\nv_permlane32_swap_b32 v33, v35")
    A("v_pk_add_f32 v[32:33], v[32:33], v[34:35]\nv_cvt_pk_bf16_f32 v%d, v32, v33" % KMP)
    A("s_cbranch_vccnz L_c_nanq\nL_c_qok:")
    A("buffer_store_dwordx2 %s, v%d, %s, s%d offen" % (r2(KMP), v_l8, WS, o_qs))
    stamp(3)
    lq.op("ds_write_b64 v%d, %s" % (v_fown, r2(KMP)), "fw")
    MK = "s[4:5]"
    chk = lambda r: "v_cmp_eq_u32 vcc, s%d, v%d\nv_cmp_eq_u32 %s, s%d, v%d\ns_or_b64 vcc, vcc, %s" % (s_sent, r, MK, s_sent, r + 1, MK)
    ldq = lambda r: "buffer_load_dwordx2 %s, v%d, %s, s%d offen sc1" % (r2(r), v_l8, WS, o_qr)
    FR = [32, 20, 40, 44]
    def frd(kp):
        for hf in range(2): lq.op("ds_read_b64_tr_b16 %s, v%d offset:%d" % (r2(FR[kp] + 2 * hf), v_l8, L_F + kp * 1024 + hf * 512), ("F", kp))
    n = 0
    def vside():
        nonlocal n
        n += 1
        if n in pq: A(ldq([28, 30][pq.index(n)] if pq.index(n) < 2 else M))
    for f in range(12, 16):
        smf(2, f); vrd(f - 10); vside()
    nb = len(VS) - 5
    for k in range(len(VS)):
        if k % 2 == 0: lq.need(("V", min(k + 1, len(VS) - 1)))
        A("v_smfmac_f32_16x16x64_bf16 %s, %s, %s, v%d" % (r4(v_av), r4(slot(k)), wtile(2, VS[k]), v_idx))
        if k + 6 < len(VS): vrd(k + 6)
        if k == nb - 1:
            lq.need("fw"); A("s_barrier")
        if k in (nb, nb + 1): frd(k - nb)
        vside()
    stamp("v1")
    Tm, T0, T1 = 52, 48, 56
    def smma(kp, side):
        lq.need(("F", kp))
        F = r4(FR[kp])
        for j, (D, Aop) in enumerate(((Tm, F), (T0, r4(64 + 4 * kp)), (T1, r4(80 + 4 * kp)))):
            A("v_mfma_f32_16x16x32_bf16 %s, %s, %s, %s" % (r4(D), Aop, F, "0" if kp == 0 else r4(D)))
            for x in side.get(j, []):
                if isinstance(x, tuple): lq.op(*x)
                else: A(x)
    late = [f for f in pq if f > n]
    assert len(late) <= 1
    vpost = ["v_permlane32_swap_b32 v36, v38", "v_permlane32_swap_b32 v37, v39", "v_pk_add_f32 v[36:37], v[36:37], v[38:39]",
             "v_cvt_pk_bf16_f32 v%d, v36, v37" % (M + 2), "buffer_store_dwordx2 %s, v%d, %s, s%d offen offset:1024" % (r2(M + 2), v_l8, CUR, o_qk_own)]
    s0 = lambda: smma(0, {0: ["v_xor_b32 v60, 4096, v%d" % v_avx], 1: [ldq(M)] if late else []})
    if s1late < 2: s0()
    else: assert not late
    vb = 0
    if not s1late:
        if vsplit < 0:
            smma(1, {1: vpost[:1], 2: vpost[1:]}); vpost = []; vb = 1
        else: smma(1, {})
    stamp("ve")
    A("s_waitcnt vmcnt(%d)\nds_write_b64 v%d, v[28:29]\n" % (len(pq) - 1 + vb, v_fpar) + chk(28) + "\ns_cbranch_vccnz L_c_qretry")
    A("L_c_qgot:")
    stamp("qg")
    if s1late:
        lq.q.append(None)
        if s1late == 2: s0()
        smma(1, {})
    for x in vpost[:vsplit]: A(x)
    stamp("vp")
    lq.all()
    A("s_barrier")
    stamp(4)
    lq = LQ(a)
    frd(2); frd(3)
    for x in vpost[vsplit:]: A(x)
    A("s_cmp_eq_u32 s%d, %d\nv_mov_b32 v%d, v%d\nv_mov_b64 v[36:37], %s" % (s_step, nsteps - 1, KMP + 1, M + 2, r2(M + 2)))
    smma(2, {0: ["v_mov_b64 v[20:21], s[50:51]"], 1: ["v_mov_b64 v[22:23], s[50:51]"]})
    smma(3, {0: [("ds_read_b128 v[40:43], v%d offset:8192" % v_avx, "vx")]})
    BUF = [64, 72, 80, 88, 56]
    def word(fr, buf):
        for hf in range(2): lq.op("ds_read_b128 %s, v%d offset:%d" % (r4(BUF[buf] + 4 * hf), v_word, fr * 2048 + hf * 1024), ("W", fr))
    stamp("se")
    A("s_cbranch_scc1 L_c_last")
    lq.op("ds_read_b128 v[44:47], v60 offset:8192", "vx")
    word(0, 0)
    A("s_waitcnt vmcnt(%d)\nv_mov_b32 v29, 0\nv_mov_b64 v[30:31], 0" % (len(pq) - 1))
    A("v_max3_f32 v61, v52, v53, v48\nv_max3_f32 v62, v49, v50, v51")
    A("v_max3_f32 v61, v56, v57, v61\nv_max3_f32 v62, v58, v59, v62\nv_max_f32 v61, v61, v62")
    A("v_mov_b32 v62, v61")
    word(1, 1)
    A("v_permlane32_swap_b32 v61, v62\nv_max_f32 v61, v61, v62")
    A("v_mov_b32 v62, v61")
    ldv = lambda r: "buffer_load_dwordx2 %s, v%d, %s, s%d offen offset:1024 sc1" % (r2(r), v_l8, CUR, o_qk_par)
    if vpos == 0: A(ldv(38) + "\ns_nop 0")
    else: word(2, 2)
    A("v_permlane16_swap_b32 v61, v62\nv_max_f32 v61, v61, v62")
    A("v_mul_f32 v61, s%d, v61" % s_scale)
    stamp("mx")
    if vpos == 1: A(ldv(38))
    regs = [48, 49, 50, 51, 56, 57, 58, 59]
    for r in regs: A("v_fma_f32 v%d, v%d, s%d, -v61" % (r, r, s_scale))
    for r in regs: A("v_exp_f32 v%d, v%d" % (r, r))
    A("v_fma_f32 v52, v52, s%d, -v61" % s_scale)
    A("v_cvt_pk_bf16_f32 v32, v48, v49\nv_cvt_pk_bf16_f32 v33, v50, v51\nv_cvt_pk_bf16_f32 v34, v56, v57\nv_cvt_pk_bf16_f32 v35, v58, v59")
    A("v_fma_f32 v53, v53, s%d, -v61" % s_scale)
    lq.need("vx")
    LS, O0, O1 = 60, 56, 48
    stamp(5)
    A("v_mfma_f32_16x16x32_bf16 %s, %s, v[32:35], 0" % (r4(LS), r4(v_ones)))
    A("v_exp_f32 v52, v52")
    A("v_mfma_f32_16x16x32_bf16 %s, v[40:43], v[32:35], 0" % r4(O0))
    A("v_exp_f32 v53, v53")
    A("v_mfma_f32_16x16x32_bf16 %s, v[44:47], v[32:35], 0" % r4(O1))
    if v2: A(ldv(M))
    A("v_cvt_pk_bf16_f32 v28, v52, v53")
    A("s_waitcnt vmcnt(%d)\nv_cmp_ne_u32 vcc, s%d, v39" % (1 if v2 else 0, s_tag))
    A("v_mfma_f32_16x16x32_bf16 %s, %s, v[28:31], %s" % (r4(LS), r4(v_ones), r4(LS)))
    A("s_cbranch_vccnz L_c_vretry\nL_c_vok:")
    A("v_mfma_f32_16x16x32_bf16 %s, v[36:39], v[28:31], %s" % (r4(O0), r4(O0)))
    A("v_mfma_f32_16x16x32_bf16 %s, v[38:41], v[28:31], %s" % (r4(O1), r4(O1)))
    stamp("pv")
    ACC = [20, 32, 28, 36]
    if vpos == 0: word(2, 2)
    else: A(z(32) + "\n" + z(34))
    A(z(20) + "\n" + z(22) + "\nv_xor_b32 v%d, %d, v%d" % (v_avx, L_KV0 ^ L_KV1, v_avx))
    A("v_rcp_f32 v52, v%d" % LS)
    A(z(28))
    A("v_pk_mul_f32 v[56:57], v[56:57], v[52:53] op_sel_hi:[1,0]\nv_pk_mul_f32 v[58:59], v[58:59], v[52:53] op_sel_hi:[1,0]")
    A("v_pk_mul_f32 v[48:49], v[48:49], v[52:53] op_sel_hi:[1,0]\nv_pk_mul_f32 v[50:51], v[50:51], v[52:53] op_sel_hi:[1,0]")
    A("v_cvt_pk_bf16_f32 v44, v56, v57\nv_cvt_pk_bf16_f32 v45, v58, v59\nv_cvt_pk_bf16_f32 v46, v48, v49\nv_cvt_pk_bf16_f32 v47, v50, v51")
    lq.op("ds_write_b128 v%d, v[44:47]" % v_owr, "ow")
    stamp("ow")
    word(3, 3)
    word(4, 4)
    km_store = "buffer_store_dwordx2 %s, v%d, %s, s%d offen sc1" % (r2(KMP), v_l8, WS, o_km)
    nw2 = 0
    if not nokm:
        A(km_store); nw2 += 1
    A("\n".join(z(r) for r in ((32, 34, 38, 36) if vpos == 0 else (38, 36))))
    lq.need("ow")
    A("s_barrier")
    stamp(6)
    for k in range(4): lq.op("ds_read_b128 %s, v%d offset:%d" % (r4(40 + 4 * k), v_ord, k * 512), ("o", k))
    for x in kv_ld(J2): A(x)
    nw2 += len(J2)
    A(kv_flip + "\ns_add_u32 s%d, s%d, 1" % (s_step, s_step))
    def post(u):
        t = ACC[u]
        return ["v_cvt_pk_bf16_f32 v%d, v%d, v%d" % (t, t, t + 1), "v_cvt_pk_bf16_f32 v%d, v%d, v%d" % (t + 1, t + 2, t + 3),
                "v_and_or_b32 v%d, v%d, -2, s%d" % (t, t, s_e)] + (["v_and_or_b32 v%d, v%d, -2, s%d" % (t + 1, t + 1, s_e)] if rf else []) + [
                "buffer_store_dwordx2 %s, v%d, %s, s%d offen" % (r2(t), v_l8 if lin else v_i3st, CUR, o_i3st + u)]
    where = {k: k for k in range(5)}
    nxt = [5]
    def wmf(fr):
        u, kp = fr >> 2, fr & 3
        lq.need(("o", kp))
        if fr < 12: lq.need(("W", fr))
        B = r8(V_WO + 8 * (fr - 12)) if fr >= 12 else r8(BUF[where[fr]])
        A("v_smfmac_f32_16x16x64_bf16 %s, %s, %s, v%d" % (r4(ACC[u]), r4(40 + 4 * kp), B, v_idx))
        if fr < 12 and nxt[0] < 12:
            where[nxt[0]] = where[fr]; word(nxt[0], where[fr]); nxt[0] += 1
    for fr in (0, 1, 2, 3, 4, 12, 13, 14, 15): wmf(fr)
    for x in post(0): A(x)
    wmf(5); wmf(6)
    for x in post(3): A(x)
    for fr in (7, 8, 9, 10, 11): wmf(fr)
    A("s_cmp_ge_u32 s%d, 2" % s_w)
    for x in post(1): A(x)
    nop(a, 2 if rf else 3)
    for x in post(2): A(x)
    stamp(7)
    A("s_cbranch_scc1 L_c_idle")
    SETS = [64, 80]
    def rloads(st):
        for k in range(4): A("buffer_load_dwordx4 %s, v%d, %s, s%d offen offset:%d sc1" % (r4(SETS[st] + 4 * k), v_i3l, CUR, o_i3ld if k < 2 else o_i3ld2, (k & 1) * 2048))
    def rproc(st):
        for k in range(4):
            d = SETS[st] + 4 * k
            A("s_waitcnt vmcnt(%d)" % (4 * len(rg) - 1 - k))
            A("v_mfma_f32_16x16x32_bf16 %s, %s, %s, %s" % (r4(RD), r4(d), r4(v_sel), "0" if k == 0 else r4(RD)))
            A("v_bitop3_b32 v%d, v%d, v%d, s%d bitop3:0x7e" % (40 + k, d, d + 2, s_e))
            if k == 2: A("v_or3_b32 v40, v40, v41, v42")
        A("v_or_b32 v40, v40, v43\nv_and_b32 v40, 1, v40\nv_cmp_ne_u32 vcc, 0, v40")
        nop(a, 3)
    def spaced(work, gap):
        for _ in range(gap):
            if not work: break
            A(work.pop(0)); gap -= 1
        nop(a, gap)
    def grab(f):
        n0 = len(a.lines); f(); w = [x.strip() for x in a.lines[n0:]]; del a.lines[n0:]
        return w
    XP = [58, 56, 54, 52][:len(xg)]; NXP = len(XP)
    work = [z(r) for r in XP] + ["s_xor_b32 s%d, s%d, 262144" % (o_xr, o_xs)]
    if rf:
        D0 = SETS[0]
        def r4l():
            for k in range(4): A("buffer_load_dwordx4 %s, v%d, %s, s%d offen offset:%d sc1" % (r4(D0 + 4 * k), v_i3l, CUR, o_i3ld if k < 2 else o_i3ld2, (k & 1) * 2048))
        for g in rf[:-1]:
            spaced(work, g); r4l()
        for x in work: A(x)
        A("s_waitcnt vmcnt(%d)" % (4 * (len(rf) - 2)))
        A("L_c_rl:")
        for k in range(8):
            A("v_bitop3_b32 v%d, v%d, v%d, s%d bitop3:0x7e" % (40 + k, D0 + 2 * k, D0 + 2 * k + 1, s_e))
            if k & 1: A("v_mfma_f32_16x16x32_bf16 %s, %s, %s, %s" % (r4(RD), r4(D0 + 2 * k - 2), r4(v_sel), "0" if k == 1 else r4(RD)))
        A("v_or3_b32 v40, v40, v41, v42\nv_or3_b32 v43, v43, v44, v45\nv_or3_b32 v40, v40, v46, v47\nv_or_b32 v40, v40, v43\nv_and_b32 v40, 1, v40\nv_cmp_ne_u32 vcc, 0, v40\ns_nop 0")
        A("s_cbranch_vccnz L_c_r1")
    else:
        spaced(work, rg[0]); rloads(0); stamp("ri")
        if len(rg) > 1: spaced(work, rg[1]); rloads(1)
        rproc(0)
        A("s_cbranch_vccnz L_c_r1")
    A("L_c_rok:")
    A("v_cndmask_b32 v20, v60, v62, %s\nv_cndmask_b32 v21, v61, v63, %s" % (HM, HM))
    if x16:
        A("v_cvt_pk_bf16_f32 v22, v20, v21\nv_and_or_b32 v22, v22, -2, s%d\nbuffer_store_dword v22, v%d, %s, s%d offen sc1" % (s_e, v_xo, WS, o_xs))
    else:
        for k in range(2): A("v_and_or_b32 v%d, v%d, -2, s%d" % (20 + k, 20 + k, s_e))
        A("buffer_store_dwordx2 v[20:21], v%d, %s, s%d offen sc1" % (v_xo, WS, o_xs))
    stamp(8)
    xat = lambda r: "buffer_atomic_add_x2 %s, v%d, %s, s%d offen sc0" % (r2(XP[r]), v_xo, WS, o_xr)
    if x16: xat = lambda r: "buffer_atomic_add v%d, v%d, %s, s%d offen sc0" % (XP[r], v_xo, WS, o_xr)
    work = grab(book)
    order = []
    def spaced2(gap):
        for _ in range(gap):
            if not work: break
            x = work.pop(0)
            if x == "BAR": x = "s_waitcnt vmcnt(%d)\ns_barrier" % (len(order) + 1)
            A(x); gap -= 1
            if x.startswith("buffer_"): order.append("s")
        nop(a, gap)
    work += ["BAR"] + grab(prep) + ppoison
    for r in range(NXP):
        spaced2(xg[r]); A(xat(r)); order.append(r)
    spaced2(len(work))
    stamp("xw")
    def xuse(r):
        x = XP[r]
        k = order.index(r)
        A("s_waitcnt vmcnt(%d)" % (len(order) - 1 - k)); del order[:k + 1]
        if x16:
            A("v_and_b32 v42, 1, v%d\nv_cmp_ne_u32 vcc, s%d, v42\nv_and_b32 v%d, 0xffff0000, v%d\nv_lshlrev_b32 v%d, 16, v%d" % (x, s_e, x + 1, x, x, x))
        else: A("v_bitop3_b32 v42, v%d, v%d, s%d bitop3:0x7e\nv_and_b32 v42, 1, v42\nv_cmp_ne_u32 vcc, 0, v42" % (x, x + 1, s_e))
        A("v_pk_add_f32 v[48:49], v[20:21], %s\nv_cvt_pk_bf16_f32 v46, v48, v49\ns_cbranch_vccz L_c_xok" % r2(x))
    for r in range(NXP):
        xuse(r)
        cnt(2)
        if r >= xre:
            A(z(XP[r]) + "\n" + xat(r)); order.append(r)
    A("L_c_xl:")
    order[:] = [o for o in order if o != "s"]
    for r in range(xre, NXP):
        xuse(r)
        cnt(2)
        A(z(XP[r]) + "\n" + xat(r)); order.append(r)
    A("s_sub_u32 s%d, s%d, 1\ns_cbranch_scc0 L_c_xl\ns_branch L_c_fail" % (s_spin, s_spin))
    A("L_c_r1:")
    if rf:
        r4l(); cnt(0); nop(a, rf[-1])
        A("s_waitcnt vmcnt(24)\ns_sub_u32 s%d, s%d, 1\ns_cbranch_scc0 L_c_rl\ns_branch L_c_fail" % (s_spin, s_spin))
    for st in range(0 if rf else len(rg)):
        cnt(0)
        rloads(st)
        rproc((st + 1) % len(rg))
        A("s_cbranch_vccz L_c_rok")
    if not rf: A("s_sub_u32 s%d, s%d, 1\ns_cbranch_scc0 L_c_r1\ns_branch L_c_fail" % (s_spin, s_spin))
    A("L_c_idle:")
    book()
    A("s_waitcnt vmcnt(0)\ns_barrier")
    A("s_cmp_lg_u32 s%d, 3\ns_cbranch_scc1 L_c_idle3" % s_w)
    signal("s%d" % s_step)
    A("s_add_u32 s%d, s%d, 1\ns_and_b32 s%d, s%d, 7\ns_cbranch_scc1 L_c_idle3\ns_cmp_ge_u32 s%d, 64\ns_cbranch_scc1 L_c_idle3" % (s_t1, s_step, s_t0, s_t1, s_t1))
    A("s_lshl_b32 s%d, s%d, 8\ns_add_u32 s%d, s%d, s%d" % (s_t0, s_t1, s_t0, s_t0, s_cnt))
    wait_kv("n", s_t0)
    A("L_c_idle3:")
    prep()
    for x in (ppoison[0], ppoison[2], ppoison[3]): A(x)
    A("s_cmp_lg_u32 s%d, 2\ns_cbranch_scc1 L_c_b0" % s_w)
    fetch_pre()
    A("v_mov_b32 v46, 0")
    if f16: A("s_mul_i32 s%d, s%d, 0x01010101\ns_mov_b64 exec, 0xffff" % (s_t2, s_tag))
    if pbar: A("s_barrier")
    A("L_c_fp:")
    A("s_waitcnt vmcnt(%d)" % fdepth)
    for k in range(fun):
        A("buffer_load_dword v46, v%d, %s, s%d offen sc1" % (v_flag, WS, s_tagl))
        for _ in range(fchk): A("v_cmp_ne_u32 vcc, s%d, v46\ns_cbranch_vccz L_c_b0x" % s_t2)
    cnt(1)
    A("s_sub_u32 s%d, s%d, 1\ns_cbranch_scc0 L_c_fp\ns_branch L_c_fail" % (s_spin, s_spin))
    A("L_c_qretry:")
    A("s_waitcnt vmcnt(%d)\nds_write_b64 v%d, v[30:31]\n" % (len(pq) - 2 + vb, v_fpar) + chk(30) + "\ns_cbranch_vccz L_c_qgot")
    A("L_c_qr1:")
    A(ldq(M) + "\ns_waitcnt vmcnt(24)\n" + chk(M) + "\ns_cbranch_vccz L_c_qr2")
    cnt(3)
    A("s_sub_u32 s%d, s%d, 1\ns_cbranch_scc0 L_c_qr1\ns_branch L_c_fail" % (s_spin, s_spin))
    A("L_c_qr2:\nds_write_b64 v%d, %s\ns_branch L_c_qgot" % (v_fpar, r2(M)))
    A("L_c_vretry:")
    if v2:
        cnt(3)
        A("s_waitcnt vmcnt(0)\nv_mov_b64 v[38:39], v[16:17]\nv_cmp_ne_u32 vcc, s%d, v17\ns_cbranch_vccz L_c_vok" % s_tag)
    A("L_c_vr2:")
    A(ldv(38))
    cnt(3)
    A("s_sub_u32 s%d, s%d, 1\ns_cbranch_scc1 L_c_fail\ns_waitcnt vmcnt(0)\nv_cmp_ne_u32 vcc, s%d, v39\ns_cbranch_vccnz L_c_vr2\ns_branch L_c_vok" % (s_spin, s_spin, s_tag))
    A("L_c_nanq:")
    if stamps: A("s_add_u32 s97, s97, 0x10000")
    A("v_mov_b32 v34, -1")
    for f in range(16):
        A("ds_read_b128 v[20:23], v%d offset:%d\ns_waitcnt lgkmcnt(0)" % (v_l16, L_PL + f * 1024))
        for k in range(4): A("v_xor_b32 v%d, s%d, v%d" % (20 + k, s_sent, 20 + k))
        A("v_min3_u32 v34, v20, v21, v34\nv_min3_u32 v34, v22, v23, v34")
    A("v_cmp_eq_u32 vcc, 0, v34\ns_cbranch_vccz L_c_qok")
    A("s_sub_u32 s%d, s%d, 1\ns_cbranch_scc1 L_c_fail" % (s_spin, s_spin))
    for k in range(6): A(z(v_aq + 2 * k))
    fetch_pre()
    A("s_barrier")
    fetch()
    A("s_mov_b32 m0, s%d\ns_waitcnt vmcnt(0)\ns_branch L_c_b1" % m_kv)
    A("L_c_last:")
    A(km_store)
    A("s_waitcnt vmcnt(0)\ns_barrier\ns_cmp_lg_u32 s%d, 0\ns_cbranch_scc1 L_c_done" % s_w)
    signal("64")
    if wb: A("s_cmp_lg_u32 s%d, 0\ns_cbranch_scc1 L_c_done\nbuffer_wbl2 sc1" % s_i)
    A("s_branch L_c_done")
    A("L_c_fail:\ns_mov_b64 exec, -1")
    A("v_mov_b32 v40, 1\nv_mov_b32 v41, 96\nbuffer_atomic_add v40, v41, s[16:19], 0 offen")
    A("L_c_done:")
    A("s_waitcnt vmcnt(0)")
    if stamps:
        A("s_memtime s[60:61]\ns_memrealtime s[62:63]\ns_waitcnt lgkmcnt(0)\ns_sub_u32 s60, s60, s56\ns_sub_u32 s61, s62, s58")
        A("s_sub_u32 s62, s56, s94")
        A("s_lshl_b32 s%d, s%d, 5\ns_add_u32 s%d, s%d, s%d\ns_lshl_b32 s%d, s%d, 2\ns_add_u32 s%d, s%d, s%d\ns_lshl_b32 s%d, s%d, 7\ns_add_u32 s%d, s%d, %d" % (
            s_t0, s_x, s_t0, s_t0, s_i, s_t0, s_t0, s_t0, s_t0, s_w, s_t0, s_t0, s_t0, s_t0, FLAGS + MB))
        for k, sr in enumerate([60, 61, 62] + list(range(80, 90)) + [96, 97, 98, 99]): A("v_mov_b32 v%d, s%d" % (40 + k, sr))
        if stamps == 3:
            A("s_cmp_lg_u32 s%d, %d\ns_cbranch_scc1 L_c_notr" % (s_w, tw))
            A("s_lshl_b32 s%d, s%d, 5\ns_add_u32 s%d, s%d, s%d\ns_lshl_b32 s%d, s%d, 12\ns_add_u32 s%d, s%d, %d" % (s_t1, s_x, s_t1, s_t1, s_i, s_t1, s_t1, s_t1, s_t1, FLAGS + 2 * MB))
            A("v_add_u32 v64, %d, v%d" % (L_TR, v_l16))
            for k in range(4):
                A("ds_read_b128 v[68:71], v64 offset:%d\ns_waitcnt lgkmcnt(0)\nbuffer_store_dwordx4 v[68:71], v%d, %s, s%d offen offset:%d\ns_waitcnt vmcnt(0)" % (k * 1024, v_l16, WS, s_t1, k * 1024))
            A("L_c_notr:")
            A("v_mov_b32 v43, s56\nv_mov_b32 v44, s58")
        A("v_mov_b32 v60, 0\ns_mov_b64 exec, 1")
        for k in range(5): A("buffer_store_dwordx4 %s, v60, %s, s%d offen offset:%d" % (r4(40 + 4 * k), WS, s_t0, 16 * k))
        A("s_waitcnt vmcnt(0)")

def emit_role_prologue(a, nwg=256, early=None):
    a("""
    s_cmp_ge_u32 s2, {n}
    s_cbranch_scc1 L_end
    s_load_dwordx4 s[4:7], s[0:1], 96
    s_memtime s[94:95]
    s_getreg_b32 s{xcc}, hwreg(HW_REG_XCC_ID)
    s_and_b32 s{xcc}, s{xcc}, 15
    v_and_b32 v1, 63, v0
    v_lshrrev_b32 v2, 6, v0
    s_waitcnt lgkmcnt(0)
    """.format(n=nwg, xcc=s_xcc))
    srd(a, S_WS, 6, 7, WS_BYTES)
    srd(a, S_DBG, 4, 5, 256)
    if early: early()
    a("""
    v_readfirstlane_b32 s{w}, v2
    v_mov_b32 v3, 1
    s_lshl_b32 s{i}, s{xcc}, 2
    v_mov_b32 v4, s{i}
    v_mov_b32 v5, {misc}
    v_cmp_eq_u32 vcc, 0, v0
    s_and_saveexec_b64 s[48:49], vcc
    s_cbranch_execz L_skipt
    buffer_atomic_add v3, v4, s[16:19], 0 offen sc0
    s_waitcnt vmcnt(0)
    ds_write_b32 v5, v3
    s_waitcnt lgkmcnt(0)
    L_skipt:
    s_mov_b64 exec, s[48:49]
    s_barrier
    ds_read_b32 v3, v5
    s_waitcnt lgkmcnt(0)
    v_readfirstlane_b32 s{i}, v3
    s_barrier
    """.format(w=s_w, i=s_i, xcc=s_xcc, misc=L_MISC))
```

```python
import heapq
from layout import *
NX = 6
T_LN1, T_QA, T_KA, T_VA, T_KB, T_VB, T_SATT, T_SO, T_SLN, T_SGU, T_SD, T_SFIN, T_PF = range(13)
NAMES = "LN1 QA KA VA KB VB SATT SO SLN SGU SD SFIN PF".split()
C_LN1 = 0
C_Q = 8
C_NONE = 15
C_LNF = 144
C_HP = 16
ZERO_BYTES = 49152 + 131072 + 16384
PSLAB = 4 * MB
PART_O = PART; PART_D = PART + 4 * PSLAB
class Task:
    def __init__(s, typ, xcd, dur, prio, wait, target, sig, inc, p0=0, p1=0, p2=0, p3=0, tag=0):
        s.typ, s.xcd, s.dur, s.prio, s.wait, s.target, s.sig, s.inc, s.p, s.tag = typ, xcd, dur, prio, wait, target, sig, inc, (p0, p1, p2, p3), tag
def build(tau=2.2, t0=22.0, dA=24.0, dB=13.0, lead=8.0, natt=3, nrow=16, nfin=8, qlate=30.0, pf=0, defer=7, deferq=6, wpf=0, krot=1):
    T = []
    lnx = [k % NX for k in range(120)] + [0, 1, 2, 3] * 2
    for rg in range(128):
        T.append(Task(T_LN1, lnx[rg], 3.0, (0, rg), C_NONE, 0, C_LN1 + rg // 16, 1, rg))
    if pf:
        for k in range(64):
            T.append(Task(T_PF, (128 + k) % NX, 3.0, (0, 128 + k), C_NONE, 0, C_NONE, 0, k % 2, (k // 2) * 262144, 4))
    kvx = [0] * 5 + [1] * 5 + [2] * 5 + [3] * 5 + [4] * 6 + [5] * 6
    qx = [0] * 3 + [1] * 3 + [2] * 3 + [3] * 3 + [4] * 2 + [5] * 2
    need = lambda seg: t0 + seg * tau
    for b in range(8):
        for m in range(2):
            for ct in range(16):
                x = kvx[2 * ct + m]; base = (KX + b * 4 * MB + ct * 16384) if m == 0 else (VT + b * 4 * MB + ct * 32768)
                if b == 0:
                    for hf in range(2):
                        for rh in range(2):
                            T.append(Task(T_KB + m, x, dB, (need(0) - dB, rh), C_LN1 + b, 16, C_HP + 16 * b + ct, 1, XN + rh * (262144 + krot * 16384), ct * 512 + hf * 256 + rh * krot * 4 * MB,
                                          base + hf * (4096 if m == 0 else 16384) + rh * 2 * MB, rh, tag=b))
                else:
                    T.append(Task(T_KA + m, x, dA, (need(8 * b) - dA - lead, 0), C_LN1 + b, 16, C_HP + 16 * b + ct, 4, XN + b * 524288, ct * 512, base, tag=b))
        for ct in range(16):
            T.append(Task(T_QA, qx[ct], dA, (max(need(8 * b) - dA, qlate), 1), C_LN1 + b, 16, C_HP + 16 * b + ct, 0x4000, XN + b * 524288, ct * 512, QX + b * 2 * MB + ct * 8192, tag=b))
    big = sorted([t for t in T if t.typ in (T_QA, T_KA, T_VA)], key=lambda t: t.prio)
    jobs = [(m, o) for o in range(0, 7 * MB, 65536) for m in (1, 2)] + [(3, o) for o in range(0, 7 * MB, 65536)]
    if wpf:
        for k in range(0, len(jobs), 2):
            t = big[k // 2]; m, o = jobs[k]
            t.p = t.p[:3] + ((m << 28) | o,)
    for t in T:
        if t.typ in (T_QA, T_KA, T_VA) and t.tag >= (deferq if t.typ == T_QA else defer): t.late = True
    S = []
    p3 = lambda w, sg, tg: (w * 128) | ((sg * 128) << 11) | (tg << 22)
    for sp in range(4):
        for ct in range(8): S.append((T_SO, OA + sp * 32768, sp * 1024 * 2048 + ct * 256, PART_O + sp * PSLAB + ct * 4096, p3(sp, 4, 2)))
    for ct in range(56): S.append((T_SGU, HN, ct * 128, ACT + ct * 2048, p3(12, 6 + ct // 14, 1)))
    for sp in range(4):
        for ct in range(8): S.append((T_SD, ACT + sp * 28 * 1024, sp * 896 * 2048 + ct * 256, PART_D + sp * PSLAB + ct * 4096, p3(6 + sp, 10, 14)))
    L = []
    for r in range(natt):
        for q in range(8): L.append((T_SATT, r, natt, q, p3(0, q // 2, 0)))
    for r in range(nrow): L.append((T_SLN, r, nrow, 0, p3(4, 5, 32)))
    for r in range(nfin): L.append((T_SFIN, r, nfin, 0, p3(10, 11, 32)))
    serv = [[] for _ in range(NX)]
    rot = 0
    grp = {T_SO: [0] * 8 + [1] * 8 + [2] * 4 + [3] * 4 + [4] * 4 + [5] * 4, T_SD: [0] * 4 + [1] * 4 + [2] * 4 + [3] * 4 + [4] * 8 + [5] * 8,
           T_SGU: [0] * 8 + [1] * 8 + [2] * 12 + [3] * 12 + [4] * 8 + [5] * 8}
    for typ in (T_SO, T_SATT, T_SLN, T_SGU, T_SD, T_SFIN):
        G = [x for x in S + L if x[0] == typ]
        for k, x in enumerate(G):
            if typ in grp:
                g = grp[typ]; serv[g[k]].append(x + ((k - g.index(g[k])) | (g.count(g[k]) << 4),))
            else:
                serv[rot % NX].append(x + (0,)); rot += 1
    assert max(len(x) for x in serv) <= 32
    for x in range(NX):
        for k, (typ, *p) in enumerate(serv[x]):
            T.append(Task(typ, x, 1e6, (1e5, k), C_NONE, 0, C_NONE, 0, *p[:4])); T[-1].share = p[4]
    return T
def simulate(T, tau=2.2, t0=22.0, verbose=False, r3=5):
    cnt = [0] * 256
    lists = [[] for _ in range(NX)]
    free = [32] * NX
    ev = []
    pend = sorted([i for i in range(len(T)) if T[i].dur < 1e5 and not hasattr(T[i], 'late')], key=lambda i: T[i].prio)
    now = 1.0; seq = 0; end = 0
    while pend or ev:
        rest = []
        for i in pend:
            t = T[i]
            if free[t.xcd] and cnt[t.wait] >= t.target:
                free[t.xcd] -= 1; lists[t.xcd].append(i); t.start = now
                seq += 1; heapq.heappush(ev, (now + t.dur + 1.0, seq, i))
            else: rest.append(i)
        pend = rest
        now, _, d = heapq.heappop(ev)
        free[T[d].xcd] += 1; cnt[T[d].sig] += T[d].inc; end = now
    lists = [[i for i in l if T[i].typ != T_LN1] for l in lists]
    for x in range(NX):
        last = [i for i in lists[x] if T[i].start > 40]
        if verbose: print("third round", x, len(last))
        for i in last[r3:]:
            lists[x].remove(i); T[i].late = True
    for i in range(len(T)):
        if T[i].dur >= 1e5: lists[T[i].xcd].append(i)
    late = sorted([i for i in range(len(T)) if hasattr(T[i], 'late')], key=lambda i: T[i].prio)
    spare = [32 - sum(1 for t in T if t.dur >= 1e5 and t.xcd == x) for x in range(NX)]
    load = [0] * NX
    for i in late:
        x = min((x for x in range(NX) if spare[x]), key=lambda x: (load[x] + 1) / spare[x])
        load[x] += 1; T[i].xcd = x; lists[x].append(i)
    if verbose: print("spare", spare, "late", load)
    if verbose: print("end %.1f" % end, [len(l) for l in lists])
    return lists
if __name__ == "__main__":
    T = build(); simulate(T, verbose=True)
```

```python
from tasks import *
SEGC = FLAGS + 49152
SEGS = 2048
DLY = [0]
PROG = FLAGS + 32768
L_BC = 158720 + 512
s_n, s_pre, s_wait, s_tgt, s_sig, s_xseg, s_oseg, s_xcur, s_m0, s_spin = 43, 44, 41, 36, 35, 45, 46, 47, 40, 62

def poll(a, tag, off, tgt, sleep=2, vaddr=None, atomic=False):
    if vaddr is None: a("v_mov_b32 v4, 0"); vaddr = 4
    if atomic:
        a("s_mov_b64 exec, %d" % (3 if vaddr != 4 else 1))
        a("L_%s:\nv_mov_b32 v5, 0\nbuffer_atomic_add v5, v%d, %s, s%d offen sc0\ns_sub_u32 s%d, s%d, 1\ns_cbranch_scc1 L_w_fail\ns_waitcnt vmcnt(0)" % (tag, vaddr, WS, off, s_spin, s_spin))
        a("v_cmp_gt_u32 vcc, s%d, v5\ns_cbranch_vccz L_%s_ok\ns_sleep %d\ns_branch L_%s\nL_%s_ok:\ns_mov_b64 exec, -1" % (tgt, tag, sleep, tag, tag))
        return
    a("L_%s:\nbuffer_load_dword v5, v%d, %s, s%d offen sc1\ns_sub_u32 s%d, s%d, 1\ns_cbranch_scc1 L_w_fail\ns_waitcnt vmcnt(0)" % (tag, vaddr, WS, off, s_spin, s_spin))
    a("v_cmp_gt_u32 vcc, s%d, v5\ns_cbranch_vccz L_%s_ok\ns_sleep %d\ns_branch L_%s\nL_%s_ok:" % (tgt, tag, sleep, tag, tag))
def signal(a, off):
    a("s_mov_b64 exec, 1\nv_mov_b32 v4, 0\nv_mov_b32 v5, 1\nbuffer_atomic_add v5, v4, %s, s%d offen\ns_mov_b64 exec, -1" % (WS, off))

def unpack_p3(a):
    a("s_and_b32 s%d, s55, 2047\ns_add_u32 s%d, s%d, %d\ns_bfe_u32 s%d, s55, 0xb000b\ns_add_u32 s%d, s%d, %d\ns_lshr_b32 s%d, s55, 22" % (
        s_wait, s_wait, s_wait, SEGC, s_sig, s_sig, s_sig, SEGC, s_tgt))
def stampseg(a, slot, trace, clk=0):
    if not trace: return
    L = a.label("L_tr")
    a("s_cmp_lg_u32 s%d, 0\ns_cbranch_scc1 %s\n" % (s_w, L) + ("s_memtime" if clk else "s_memrealtime") + " s[92:93]\ns_lshl_b32 s96, s20, 5\ns_add_u32 s96, s96, s22\ns_lshl_b32 s96, s96, 10\ns_lshl_b32 s97, s%d, 4\ns_add_u32 s96, s96, s97" % s_n)
    a("s_add_u32 s96, s96, %d\ns_waitcnt lgkmcnt(0)\nv_mov_b32 v4, 0\nv_mov_b32 v5, s92\nbuffer_store_dword v5, v4, %s, s96 offen\n%s:" % (FLAGS + 6 * MB + 4 * slot, WS, L))

def serv_rows(a, name, fin, pbase, pstride, R=8, trace=0, osc=''):
    NS = 16 // R; NL = 8 // NS; U = 32 // R; lu = U.bit_length() - 1
    D, F, P, T_ = 16, 32, 64, 128
    a("L_%s:" % name)
    unpack_p3(a)
    a("v_and_b32 v10, %d, v%d\nv_bfe_u32 v11, v%d, %d, %d\nv_lshrrev_b32 v12, 4, v%d" % (R - 1, v_lane, v_lane, R.bit_length() - 1, NS.bit_length() - 1, v_lane))
    a("s_lshl_b32 s%d, s%d, 13\nv_lshlrev_b32 v8, 10, v11\nv_lshl_add_u32 v8, v12, 8, v8\nv_lshl_add_u32 v8, v10, 4, v8\nv_add_u32 v8, s%d, v8" % (t0, s_w, t0))
    a("v_lshlrev_b32 v9, 11, v10\nv_lshl_add_u32 v9, v11, 6, v9\nv_and_b32 v13, 1, v12\nv_lshl_add_u32 v9, v13, 5, v9\nv_lshrrev_b32 v13, 1, v12\nv_lshl_add_u32 v9, v13, 4, v9")
    a("s_lshl_b32 s%d, s%d, 9\nv_add_u32 v9, s%d, v9\nv_lshlrev_b32 v7, 4, v10\ns_lshl_b32 s%d, s%d, 2\nv_add_u32 v6, s%d, v7" % (t0, s_w, t0, t0, s_w, t0))
    a("s_cmp_eq_u32 s%d, 0\ns_cselect_b32 s%d, 0, 0x%x\nv_mov_b32 v15, 0x%x\nv_writelane_b32 v15, s%d, 0\nv_mov_b32 v14, 0" % (s_w, t0, OOB, OOB, t0))
    if fin: set_srd(a, 24, P_OUT, 4 * MB)
    def mem(op, Rg, base):
        a("s_add_u32 s%d, s37, %d\ns_add_u32 s%d, s%d, 4096" % (t0, base, t1, t0))
        out = []
        for k in range(NL):
            o = k * NS * 1024
            out.append("buffer_%s_dwordx4 %s, v8, %s, s%d offen offset:%d%s" % (op, r4(Rg + 4 * k), WS, t1 if o >= 4096 else t0, o % 4096, SC))
        return out
    a("L_%s_l:" % name)
    a("s_lshr_b32 s%d, s52, %d\ns_lshl_b32 s38, s%d, 11\ns_lshr_b32 s37, s52, %d\ns_lshl_b32 s37, s37, 15\ns_and_b32 s%d, s52, %d\ns_mul_i32 s%d, s%d, %d\ns_add_u32 s37, s37, s%d" % (
        s_n, lu, s_n, lu - 1, t0, NS - 1, t0, t0, R * 16, t0))
    a("s_add_u32 s39, s38, s%d\ns_mov_b32 s%d, 1\ns_cmp_lg_u32 s%d, 0\ns_cbranch_scc1 L_%s_w0" % (s_wait, s_pre, s_w, name))
    a("v_readfirstlane_b32 s%d, v14\ns_cmp_ge_u32 s%d, s%d\ns_cbranch_scc1 L_%s_w0\ns_mov_b32 s%d, 0" % (t0, t0, s_tgt, name, s_pre))
    if fin:
        a("s_add_u32 s40, s38, %d\ns_mov_b32 s42, 1" % (SEGC + 128 * 12))
        poll(a, name + "_f", 40, 42, sleep=20)
    else:
        a("s_add_u32 s40, s%d, %d\ns_add_u32 s42, s%d, 1" % (s_near, PROG, s_n))
        poll(a, name + "_f", 40, 42, sleep=20, atomic=True)
    a("L_%s_w0:\ns_barrier" % name)
    for x in mem("load", D, HB if fin else XT): a(x)
    a("s_cmp_lg_u32 s%d, 0\ns_cbranch_scc1 L_%s_w" % (s_pre, name))
    poll(a, name + "_p", 39, s_tgt, sleep=1, atomic=True)
    a("L_%s_w:\ns_barrier" % name)
    stampseg(a, 0, trace)
    a("s_add_u32 s%d, s52, s53\ns_lshr_b32 s%d, s%d, %d\ns_lshl_b32 s%d, s%d, 11\ns_add_u32 s%d, s%d, s%d\nv_mov_b32 v14, 0\nbuffer_atomic_add v14, v15, %s, s%d offen sc0" % (
        t0, t0, t0, lu, t0, t0, t0, t0, s_wait, WS, t0))
    for sp in range(4):
        for x in mem("load", P + 4 * NL * sp, pbase + sp * pstride): a(x)
    a("s_waitcnt vmcnt(%d)" % (4 * NL))
    for k in range(NL): unpack(a, F + 8 * k, D + 4 * k)
    for sp in range(4):
        for k in range(NL):
            a("s_waitcnt vmcnt(%d)" % (NL * (4 - sp) - 1 - k))
            u = T_ + 8 * (k % 2)
            unpack(a, u, P + 4 * NL * sp + 4 * k)
            for j in range(0, 8, 2): a("v_pk_add_f32 %s, %s, %s" % (r2(F + 8 * k + j), r2(F + 8 * k + j), r2(u + j)))
    NF = 8 * NL
    def pack():
        for k in range(NL):
            for r in range(4): a("v_cvt_pk_bf16_f32 v%d, v%d, v%d" % (D + 4 * k + r, F + 8 * k + 2 * r, F + 8 * k + 2 * r + 1))
    pack()
    if fin:
        a("s_mul_i32 s%d, s52, %d" % (t2, R * 2048))
        for k in range(NL): swap16(a, D + 4 * k)
        for k in range(NL): a("buffer_store_dwordx4 %s, v9, %s, s%d offen offset:%d%s" % (r4(D + 4 * k), XSRD, t2, k * NS * 64, osc))
        stampseg(a, 1, trace)
    else:
        for x in mem("store", D, HB): a(x)
        for k in range(NL): unpack(a, F + 8 * k, D + 4 * k)
        S, T = 144, 148
        def total(slot):
            a("v_add_f32 v%d, v%d, v%d" % (S, S, S + 1))
            for ror in (4, 8)[-(NS.bit_length() - 1):]: a("s_nop 1\nv_add_f32_dpp v%d, v%d, v%d row_ror:%d row_mask:0xf bank_mask:0xf" % (S, S, S, ror))
            rowsum(a, S, T, slot)
        a("v_pk_add_f32 %s, %s, %s" % (r2(S), r2(F), r2(F + 2)))
        for k in range(4, NF, 2): a("v_pk_add_f32 %s, %s, %s" % (r2(S), r2(S), r2(F + k)))
        total(0)
        a("v_mul_f32 v%d, %s, v%d" % (S, f32(-1.0 / 1024), S))
        for k in range(0, NF, 2): a("v_pk_add_f32 %s, %s, %s op_sel_hi:[1,0]" % (r2(F + k), r2(F + k), r2(S)))
        a("v_pk_mul_f32 %s, %s, %s" % (r2(S), r2(F), r2(F)))
        for k in range(2, NF, 2): a("v_pk_fma_f32 %s, %s, %s, %s" % (r2(S), r2(F + k), r2(F + k), r2(S)))
        total(1)
        a("v_mov_b32 v%d, %s\nv_fmac_f32 v%d, %s, v%d\nv_rsq_f32 v%d, v%d\ns_nop 0" % (T, f32(1e-5), T, f32(1.0 / 1024), S, S, T))
        for k in range(0, NF, 2): a("v_pk_mul_f32 %s, %s, %s op_sel_hi:[1,0]" % (r2(F + k), r2(F + k), r2(S)))
        pack()
        for x in mem("store", D, HN): a(x)
        a("s_waitcnt vmcnt(0)\ns_barrier\ns_add_u32 s39, s38, s%d\ns_cmp_lg_u32 s%d, 0\ns_cbranch_scc1 L_%s_s" % (s_sig, s_w, name))
        a("s_mov_b64 exec, 1\nv_mov_b32 v4, 0\nv_mov_b32 v5, 1\nbuffer_atomic_add v5, v4, %s, s39 offen sc0\ns_waitcnt vmcnt(0)\nv_cmp_eq_u32 vcc, %d, v5\ns_cbranch_vccz L_%s_s1" % (WS, U - 1, name))
        a("s_add_u32 s39, s38, %d\nv_mov_b32 v5, 1\nbuffer_store_dword v5, v4, %s, s39 offen sc1\nL_%s_s1:\ns_mov_b64 exec, -1\nL_%s_s:" % (SEGC + 128 * 12, WS, name, name))
        stampseg(a, 1, trace)
    a("s_add_u32 s52, s52, s53\ns_cmp_lt_u32 s52, %d\ns_cbranch_scc1 L_%s_l\ns_branch L_w_done" % (64 * U, name))

def serv_att(a, c_hp, trace=0):
    a("L_satt:")
    unpack_p3(a)
    att_setup(a)
    a("s_lshl_b32 s44, s54, 2\ns_add_u32 s44, s44, s%d\ns_mov_b32 s%d, s52" % (s_w, s_n))
    a("v_lshlrev_b32 v16, 7, v%d\ns_lshl_b32 s45, s54, 10\ns_add_u32 s45, s45, %d\ns_add_u32 s45, s45, s%d\ns_mov_b32 s37, 0x4008" % (v_lane, PROG, s_near))
    a("L_satt_l:")
    a("s_lshr_b32 s38, s%d, 3\ns_lshl_b32 s38, s38, 4\ns_lshr_b32 s39, s44, 1\ns_add_u32 s38, s38, s39\ns_lshl_b32 s38, s38, 7\ns_add_u32 s38, s38, %d" % (s_n, FLAGS + 128 * c_hp))
    poll(a, "satt_q", 38, 37, sleep=8)
    def mid():
        a("""
        s_cmp_lg_u32 s{w}, 0
        s_cbranch_scc1 L_satt_go
        s_mov_b64 exec, 1
        L_satt_far:
        v_mov_b32 v5, 0
        buffer_atomic_add v5, v16, {WS}, s45 offen sc0
        s_sub_u32 s{sp}, s{sp}, 1
        s_cbranch_scc1 L_w_fail
        s_waitcnt vmcnt(0)
        v_cmp_gt_u32 vcc, s{n}, v5
        s_cbranch_vccz L_satt_near
        s_sleep 40
        s_branch L_satt_far
        L_satt_near:
        s_mov_b64 exec, 0xff
        L_satt_c:
        v_mov_b32 v5, 0
        buffer_atomic_add v5, v16, {WS}, s45 offen sc0
        s_sub_u32 s{sp}, s{sp}, 1
        s_cbranch_scc1 L_w_fail
        s_waitcnt vmcnt(0)
        v_cmp_ge_u32 vcc, s{n}, v5
        s_cbranch_vccnz L_satt_c
        s_mov_b64 exec, -1
        L_satt_go:
        s_barrier
        """.format(w=s_w, WS=WS, sp=s_spin, n=s_n))
        stampseg(a, 0, trace)
    task_att(a, s_n, 44, mid)
    a("s_waitcnt vmcnt(0)\ns_barrier\ns_lshl_b32 s38, s%d, 11\ns_add_u32 s39, s38, s%d\ns_cmp_lg_u32 s%d, 0\ns_cbranch_scc1 L_satt_s" % (s_n, s_sig, s_w))
    signal(a, 39)
    a("L_satt_s:")
    stampseg(a, 1, trace)
    a("s_add_u32 s%d, s%d, s53\ns_cmp_lt_u32 s%d, 64\ns_cbranch_scc1 L_satt_l\ns_branch L_w_done" % (s_n, s_n, s_n))

class WS_:
    def __init__(s, name, nk, x64, gu):
        s.name, s.nk, s.x64, s.gu = name, nk, x64, gu
        s.nc = nk // 4
    def emit(s, a, trace=0, dsp=3, wnt='', warm=1, d0=0, ahead2=0):
        n, nk, nc = s.name, s.nk, s.nc
        v_ws, v_r0, v_r1, v_xs, v_xr, v_fl, v_l8 = 8, 9, 10, 11, 12, 13, 14
        XF, AC, TM_ = 16, 64, 80
        a("L_%s:" % n)
        unpack_p3(a)
        a("s_sleep 100\n" * DLY[0])
        a("v_lshrrev_b32 v4, 3, v%d\nv_mul_lo_u32 v4, v4, s%d\nv_and_b32 v5, 7, v%d\nv_lshl_add_u32 v%d, v5, 4, v4" % (v_lane, s_ldw, v_lane, v_ws))
        a("s_and_b32 s%d, s%d, 1\ns_lshl_b32 s%d, s%d, 6\ns_mul_i32 s%d, s%d, s%d\ns_add_u32 s%d, s%d, s%d" % (t2, s_w, t0, t2, t0, t0, s_ldw, s_woff, s_woff, t0))
        a("v_lshrrev_b32 v4, 2, v%d\nv_lshlrev_b32 v4, 7, v4\nv_and_b32 v5, 3, v%d\nv_lshl_add_u32 v4, v5, 3, v4" % (v_lane, v_lane))
        if s.gu: a("s_lshl_b32 s%d, s%d, 5\ns_add_u32 s%d, s%d, 16384" % (t0, s_w, t1, t0))
        else: a("s_lshr_b32 s%d, s%d, 1\ns_lshl_b32 s%d, s%d, 14\ns_lshl_b32 s%d, s%d, 6\ns_add_u32 s%d, s%d, s%d\ns_add_u32 s%d, s%d, 32" % (t0, s_w, t0, t0, t1, t2, t0, t0, t1, t1, t0))
        a("v_add_u32 v%d, s%d, v4\nv_add_u32 v%d, s%d, v4" % (v_r0, t0, v_r1, t1))
        a("s_lshl_b32 s%d, s%d, 13\ns_lshl_b32 s%d, s%d, 3\ns_mul_i32 s%d, s%d, 72" % (s_m0, s_w, s_wadv, s_ldw, t3, s_ldw))
        nch = nk // 4
        def wissue(c):
            for j in range(8):
                a("s_add_u32 m0, s%d, %d\ns_nop 0\nbuffer_load_dwordx4 v%d, %s, s%d offen%s lds" % (s_m0, (c % 4) * 32768 + j * 1024, v_ws, WSRD, s_woff, wnt))
                a("s_add_u32 s%d, s%d, s%d" % (s_woff, s_woff, s_wadv if j < 7 else t3))
        for c in range(4): wissue(c)
        for c in range(nch):
            a("s_waitcnt vmcnt(%d)\ns_barrier" % (8 * (min(c + 4, nch) - c - 1)))
            a("v_add_u32 v4, %d, v%d\nv_add_u32 v5, %d, v%d" % ((c % 4) * 32768, v_r0, (c % 4) * 32768, v_r1))
            for kk in range(4):
                for t in range(2):
                    for hf in range(2):
                        d = ((4 * c + kk) * 2 + t) * 4 + 2 * hf
                        a("ds_read_b64_tr_b16 a[%d:%d], v%d offset:%d" % (d, d + 1, 4 + t, (32 * kk + 16 * hf) * 128))
            a("s_waitcnt lgkmcnt(0)\ns_barrier")
            if c + 4 < nch: wissue(c + 4)
        a("s_mul_i32 s%d, s%d, s%d\ns_lshr_b32 s%d, s%d, 1\ns_lshl_b32 s%d, s%d, 10\ns_add_u32 s%d, s%d, s%d\nv_add_u32 v%d, s%d, v%d" % (t0, t2, s_xrs, t1, s_w, t1, t1, t0, t0, t1, v_xs, t0, v_l16))
        a("s_lshl_b32 s%d, s%d, 10" % (s_m0, s_w))
        a("v_lshlrev_b32 v%d, 3, v%d\nv_mov_b32 v%d, v%d\nv_mov_b32 v%d, %d" % (v_l8, v_lane, v_xr, v_l8 if s.x64 else v_l16, v_fl, L_BC))
        a("s_lshl_b32 s%d, s%d, 1\ns_lshl_b32 s%d, s%d, 1" % (s_xseg, s_xrs, s_oseg, s_ors))
        a("s_lshl_b32 s%d, s%d, %d\ns_add_u32 s%d, s%d, s%d" % (t0, s_w, 9 if s.gu else 10, s_obase, s_obase, t0))
        a("s_mov_b32 s%d, 0" % s_n)
        a("s_cmp_eq_u32 s%d, 0\ns_cselect_b32 s%d, 0, 0x%x\nv_mov_b32 v15, 0x%x\nv_writelane_b32 v15, s%d, 0\ns_add_u32 s%d, s%d, %d\nv_writelane_b32 v15, s%d, 1" % (s_w, t0, OOB, OOB, t0, t0, t0, SEGS, t0))
        a("v_lshl_add_u32 v%d, v%d, 2, v%d" % (v_fl, v_lane, v_fl))
        nd = nk // 2
        a("s_and_b32 s%d, s49, 15\ns_lshr_b32 s%d, s49, 4\ns_mul_i32 s%d, s%d, s%d\ns_add_u32 s%d, s%d, s%d\ns_sub_u32 s%d, %d, s%d\ns_cselect_b32 s%d, 0x%x, 0\ns_lshl_b32 s%d, s%d, 11\ns_and_b32 s%d, s%d, 0xffff\ns_or_b32 s%d, s%d, s%d" % (
            t0, t1, t1, t1, s_w, t0, t0, t1, t0, nd - 1, t0, t1, OOB, t0, t0, t0, t0, t0, t0, t1))
        a("v_and_b32 v4, 15, v%d\nv_lshlrev_b32 v4, 6, v4\nv_lshrrev_b32 v5, 5, v%d\nv_lshl_add_u32 v4, v5, 10, v4\nv_bfe_u32 v5, v%d, 4, 1\nv_mul_lo_u32 v5, v5, s%d\nv_add3_u32 v3, v4, v5, s%d" % (v_lane, v_lane, v_lane, s_xrs, t0))
        def dma():
            g = []
            for j in range(nd):
                g.append(["s_add_u32 m0, s%d, %d" % (s_m0, j * 4096), "s_add_u32 s%d, s%d, %d" % (s_xcur, s_xoff, j * 2048),
                          "buffer_load_dwordx4 v%d, %s, s%d offen%s lds" % (v_xs, WS, s_xcur, SC)])
            if warm: g[0] = ["buffer_load_dword v120, v3, %s, s%d offen%s" % (WS, s_xoff, SC)] + g[0]
            g[-1] += ["s_xor_b32 s%d, s%d, 65536" % (s_m0, s_m0), "s_add_u32 s%d, s%d, s%d" % (s_xoff, s_xoff, s_xseg)]
            return g
        NRING = 12
        def rd(i):
            d = XF + 4 * (i % NRING)
            if s.x64: return ["ds_read_b64 %s, v%d offset:%d" % (r2(d), v_xr, i * 1024), "ds_read_b64 %s, v%d offset:%d" % (r2(d + 2), v_xr, i * 1024 + 512)]
            return ["ds_read_b128 %s, v%d offset:%d" % (r4(d), v_xr, i * 1024)]
        per = 2 if s.x64 else 1
        def compute(sync, fill):
            ahead = 6
            nb = 2 * nk; issued = 0
            def issue_to(m):
                nonlocal issued
                while issued < min(m, nb):
                    if issued % (2 * nc) == 0: sync(issued // (2 * nc))
                    for x in rd(issued): a(x)
                    issued += 1
            issue_to(ahead)
            for i in range(nb):
                kb, rt = i >> 1, i & 1
                a("s_waitcnt lgkmcnt(%d)" % (per * (issued - i - 1)))
                for t in range(2):
                    c = r4(AC + 4 * (2 * rt + t)); w = (kb * 2 + t) * 4
                    a("v_mfma_f32_16x16x32_bf16 %s, a[%d:%d], %s, %s" % (c, w, w + 3, r4(XF + 4 * (i % NRING)), "0" if kb == 0 else c))
                    if t == 0: issue_to(i + 1 + ahead)
                for x in fill.get(i, []): a(x)
        def flag_load(k=1):
            a("s_add_u32 s%d, s%d, %d" % (t0, s_wait, k * SEGS))
            if s.gu: a("buffer_load_dword v6, v15, %s, s%d offen sc1" % (WS, t0))
            else: a("v_mov_b32 v6, 0\nbuffer_atomic_add v6, v15, %s, s%d offen sc0" % (WS, t0))
        def bcast_put():
            L = a.label("L_bp")
            a("s_cmp_lg_u32 s%d, 0\ns_cbranch_scc1 %s\ns_mov_b64 exec, 3\nds_write_b32 v%d, v6\ns_mov_b64 exec, -1\ns_waitcnt lgkmcnt(0)\n%s:" % (s_w, L, v_fl, L))
        def bcast_get(last):
            a("ds_read_b32 v7, v%d\nv_xor_b32 v13, 256, v13\ns_waitcnt lgkmcnt(0)\nv_readlane_b32 s%d, v7, 0\nv_readlane_b32 s%d, v7, 1" % (v_fl, t0, t1))
            a("s_cmp_ge_u32 s%d, s%d\ns_cselect_b32 s%d, 1, 0\ns_cmp_ge_u32 s%d, %d\ns_cselect_b32 s%d, 0, s%d\ns_cmp_ge_u32 s%d, s%d\ns_cselect_b32 s39, 1, 0" % (
                t0, s_tgt, s_pre, s_n, last, s_pre, s_pre, t1, s_tgt))
        nst = 2
        def epilogue():
            a("v_xor_b32 v%d, 65536, v%d" % (v_xr, v_xr))
            nop(a, 7)
            for rt in range(2):
                c = AC + 8 * rt; t = TM_ + 16 * rt
                if rt: a("s_add_u32 s%d, s%d, s%d" % (t1, s_obase, s_ors))
                so = t1 if rt else s_obase
                if s.gu:
                    for r in range(4): a("v_mul_f32 v%d, %s, v%d" % (t + r, f32(-math.log2(math.e)), c + r))
                    for r in range(4): a("v_exp_f32 v%d, v%d" % (t + r, t + r))
                    a("v_pk_mul_f32 %s, %s, %s\nv_pk_mul_f32 %s, %s, %s" % (r2(c), r2(c), r2(c + 4), r2(c + 2), r2(c + 2), r2(c + 6)))
                    for r in range(4): a("v_add_f32 v%d, 1.0, v%d" % (t + r, t + r))
                    for r in range(4): a("v_rcp_f32 v%d, v%d" % (t + r, t + r))
                    a("s_nop 0\nv_pk_mul_f32 %s, %s, %s\nv_pk_mul_f32 %s, %s, %s" % (r2(c), r2(c), r2(t), r2(c + 2), r2(c + 2), r2(t + 2)))
                    a("v_cvt_pk_bf16_f32 v%d, v%d, v%d\nv_cvt_pk_bf16_f32 v%d, v%d, v%d" % (t + 4, c, c + 1, t + 5, c + 2, c + 3))
                    a("buffer_store_dwordx2 %s, v%d, %s, s%d offen%s" % (r2(t + 4), v_l8, WS, so, SC))
                else:
                    for r in range(4): a("v_cvt_pk_bf16_f32 v%d, v%d, v%d" % (t + r, c + 2 * r, c + 2 * r + 1))
                    a("buffer_store_dwordx4 %s, v%d, %s, s%d offen%s" % (r4(t), v_l16, WS, so, SC))
            a("s_add_u32 s%d, s%d, s%d" % (s_obase, s_obase, s_oseg))
        def sig(tag):
            a("s_cmp_lg_u32 s%d, 0\ns_cbranch_scc1 L_%s_%s" % (s_w, n, tag)); signal(a, s_sig); a("L_%s_%s:\ns_add_u32 s%d, s%d, %d" % (n, tag, s_sig, s_sig, SEGS))
        a("L_%s_L:" % n)
        a("s_cmp_lg_u32 s%d, 0\ns_cbranch_scc1 L_%s_Lw" % (s_w, n))
        poll(a, n + "_p", s_wait, s_tgt, sleep=1, atomic=not s.gu)
        a("L_%s_Lw:\ns_barrier" % n)
        stampseg(a, 0, trace)
        for g in dma():
            for x in g: a(x)
        a("L_%s_L2:" % n)
        def syncL(c):
            done = -(-(c + 1) * nc // 2)
            a("s_waitcnt vmcnt(%d)\ns_barrier" % (nd - done))
            if c == 3: flag_load()
        compute(syncL, {})
        a("L_%s_T:" % n)
        a("s_add_u32 s%d, s%d, 1\ns_add_u32 s%d, s%d, %d" % (s_n, s_n, s_wait, s_wait, SEGS))
        epilogue()
        a("s_waitcnt vmcnt(%d)" % nst); bcast_put(); a("s_barrier")
        bcast_get(64)
        a("s_cmp_lg_u32 s%d, 0\ns_cbranch_scc1 L_%s_T1" % (s_pre, n))
        a("s_waitcnt vmcnt(0)\ns_barrier")
        sig("s1")
        stampseg(a, 2, trace)
        a("s_cmp_lt_u32 s%d, 64\ns_cbranch_scc1 L_%s_L\ns_branch L_w_done" % (s_n, n))
        a("L_%s_T1:" % n)
        for g in dma():
            for x in g: a(x)
        a("s_cmp_lg_u32 s39, 0\ns_cbranch_scc1 L_%s_T2" % n)
        a("s_waitcnt vmcnt(%d)\ns_barrier" % (nd + warm))
        a("s_cmp_lg_u32 s%d, 3\ns_cbranch_scc1 L_%s_s4" % (s_w, n)); signal(a, s_sig); a("L_%s_s4:\ns_add_u32 s%d, s%d, %d" % (n, s_sig, s_sig, SEGS))
        a("s_branch L_%s_L2" % n)
        a("L_%s_T2:" % n)
        flag_load()
        a("s_waitcnt vmcnt(0)\ns_branch L_%s_B1" % n)
        a("L_%s_E:" % n)
        a("s_add_u32 s%d, s%d, 1\ns_add_u32 s%d, s%d, %d" % (s_n, s_n, s_wait, s_wait, SEGS))
        epilogue()
        a("s_waitcnt vmcnt(%d)" % nst)
        a("L_%s_B1:" % n)
        bcast_put(); a("s_barrier"); bcast_get(63)
        a("s_cmp_eq_u32 s%d, 0\ns_cbranch_scc1 L_%s_B0" % (s_pre, n))
        fill = {}
        for j, g in enumerate(dma()): fill[d0 + dsp * j] = g
        if ahead2:
            a("s_add_u32 s%d, s%d, s%d\ns_cmp_lg_u32 s39, 0\ns_cselect_b32 s%d, s%d, 0x40000000\nbuffer_load_dword v120, v3, %s, s%d offen%s" % (t0, s_xoff, s_xseg, t0, t0, WS, t0, SC))
        class Cap:
            def __init__(q): q.l = []
            def __call__(q, x): q.l.append(x)
        def late(tag, cnt):
            nonlocal a
            keep = a; a = Cap(); a("s_waitcnt vmcnt(%d)\ns_barrier" % cnt); sig(tag); out = a.l; a = keep
            return out
        fill[d0 + dsp * 2 + 1] = late("s2", 3 + warm + ahead2)
        compute(lambda c: flag_load(2) if c == 3 else None, fill)
        a("s_branch L_%s_E" % n)
        a("L_%s_B0:" % n)
        compute(lambda c: flag_load() if c == 3 else None, {nk // 4: late("s3", 0)})
        a("s_branch L_%s_T" % n)
```

```python
import struct, math
from asmlib import *
from layout import *

def nop(a, n):
    while n > 0:
        k = min(n, 16); a("s_nop %d" % (k - 1)); n -= k
def r4(v, p="v"): return "%s[%d:%d]" % (p, v, v + 3)
def r2(v): return "v[%d:%d]" % (v, v + 1)
def f32(x): return "0x%08x" % struct.unpack("<I", struct.pack("<f", x))[0]
WS = "s[8:11]"; WSRD = "s[12:15]"; XSRD = "s[24:27]"
OOB = 0x80000000
s_w = 21
P_X, P_WQ, P_WK, P_WV, P_WO, P_WG, P_WU, P_WD, P_OUT = 64, 68, 70, 72, 74, 80, 82, 84, 86
s_xoff, s_woff, s_xrs, s_ldw, s_wadv, s_ngrp, s_epi, s_obase, s_ors, s_m0x, s_m0w, s_ohalf = range(30, 42)
t0, t1, t2, t3 = 4, 5, 6, 7
s_near = 63
v_lane, v_l16 = 1, 2
SC = " sc1"

def load_ptrs(a):
    a("s_load_dwordx16 s[64:79], s[0:1], 0\ns_load_dwordx8 s[80:87], s[0:1], 64\ns_waitcnt lgkmcnt(0)")
    a("v_lshlrev_b32 v%d, 4, v%d" % (v_l16, v_lane))

def set_srd(a, d, p, nbytes):
    a("s_mov_b32 s%d, s%d\ns_mov_b32 s%d, s%d\ns_mov_b32 s%d, 0x%x\ns_mov_b32 s%d, 0x00020000" % (d, p, d + 1, p + 1, d + 2, nbytes, d + 3))

def set_w(a, pa, pb, nbytes):
    if pa == pb: set_srd(a, 12, pa, nbytes); return
    a("s_cmp_lt_u32 s%d, 2\ns_cselect_b32 s12, s%d, s%d\ns_cselect_b32 s13, s%d, s%d\ns_mov_b32 s14, 0x%x\ns_mov_b32 s15, 0x00020000" % (s_w, pa, pb, pa + 1, pb + 1, nbytes))

class Gemm:
    def __init__(self, name, TM, TN, NST, swap=False):
        self.name = name; self.TM = TM; self.TN = TN; self.NST = NST; self.swap = swap
        self.BM = 32 * TM; self.BN = 32 * TN
        self.xbytes = self.BM * 64; self.wbytes = self.BN * 64; self.stage = self.xbytes + self.wbytes
        self.nx = self.xbytes // 4096; self.nw = self.wbytes // 4096
        self.pitch = self.BN
        v = 8
        self.v_xsrc = v; v += self.nx
        self.v_wsrc = v; v += self.nw
        self.nhi = (self.stage * NST + 65535) // 65536
        self.v_xrd = v; v += self.nhi
        self.v_wrd = v; v += self.nhi * (TN // 2)
        v = (v + 3) // 4 * 4
        self.v_frag = v; v += 8 * (TM + TN)
        self.vend = v
    def wfrag(self, buf, tn): return self.v_frag + buf * 4 * (self.TM + self.TN) + 4 * tn
    def xfrag(self, buf, tm): return self.v_frag + buf * 4 * (self.TM + self.TN) + 4 * self.TN + 4 * tm
    def acc(self, tn, tm): return (tn * self.TM + tm) * 4
    def swz(self, a, dst, k):
        U = self.pitch // 32
        if U >= 8: a("v_and_b32 v%d, 7, v%d" % (dst, k))
        elif U == 4: a("v_bfe_u32 v%d, v%d, 1, 2" % (dst, k))
        else: a("v_bfe_u32 v%d, v%d, 2, 1" % (dst, k))
    def setup(self, a):
        TM, TN = self.TM, self.TN; vt = 4
        a("s_mul_i32 s%d, s%d, %d\ns_mul_i32 s%d, s%d, s%d" % (t0, s_w, self.nx, t0, t0, s_xrs))
        a("s_sub_u32 s%d, s%d, 1024" % (t1, s_xrs))
        for j in range(self.nx):
            a("v_add_u32 v%d, s%d, v%d" % (self.v_xsrc + j, t0, v_l16))
            if j < self.nx - 1: a("s_add_u32 s%d, s%d, s%d" % (t0, t0, t1))
        cpr = self.pitch // 16; rpi = 64 // cpr; sh = cpr.bit_length() - 1
        a("v_lshrrev_b32 v%d, %d, v%d\nv_and_b32 v%d, %d, v%d" % (vt, sh, v_lane, vt + 1, cpr - 1, v_lane))
        a("s_and_b32 s%d, s%d, 1\ns_lshl_b32 s%d, s%d, 4" % (t2, s_w, t0, t2))
        for j in range(self.nw):
            a("s_add_u32 s%d, s%d, %d\nv_add_u32 v%d, s%d, v%d" % (t1, t0, j * rpi, vt + 2, t1, vt))
            self.swz(a, vt + 3, vt + 2)
            a("v_lshlrev_b32 v%d, 1, v%d\nv_xor_b32 v%d, v%d, v%d\nv_lshlrev_b32 v%d, 4, v%d" % (vt + 3, vt + 3, vt + 3, vt + 3, vt + 1, vt + 3, vt + 3))
            a("v_mul_lo_u32 v%d, v%d, s%d\nv_add_u32 v%d, v%d, v%d" % (vt + 2, vt + 2, s_ldw, vt + 2, vt + 2, vt + 3))
            a("v_subrev_u32 v%d, %d, v%d" % (self.v_wsrc + j, j * 1024, vt + 2))
        a("s_lshr_b32 s%d, s%d, 1\ns_mul_i32 s%d, s%d, %d" % (t3, s_w, t0, t3, TM * 1024))
        for h in range(self.nhi):
            a("s_add_u32 s%d, s%d, %d\nv_add_u32 v%d, s%d, v%d" % (t1, t0, h * 65536, self.v_xrd + h, t1, v_l16))
        a("v_lshrrev_b32 v%d, 2, v%d" % (vt + 1, v_lane))
        self.swz(a, vt, vt + 1)
        a("v_mul_u32_u24 v%d, %d, v%d\nv_and_b32 v%d, 3, v%d\nv_lshl_add_u32 v%d, v%d, 3, v%d" % (vt + 1, self.pitch, vt + 1, vt + 2, v_lane, vt + 1, vt + 2, vt + 1))
        for tn in range(TN // 2):
            a("s_mul_i32 s%d, s%d, %d\ns_add_u32 s%d, s%d, %d" % (t0, t2, TN // 2, t0, t0, tn))
            a("v_xor_b32 v%d, s%d, v%d\nv_lshl_add_u32 v%d, v%d, 5, v%d" % (vt + 2, t0, vt, vt + 2, vt + 2, vt + 1))
            for h in range(self.nhi):
                a("v_add_u32 v%d, %d, v%d" % (self.v_wrd + h * (TN // 2) + tn, self.xbytes + h * 65536, vt + 2))
        a("s_mul_i32 s%d, s%d, %d" % (s_m0x, s_w, self.nx * 1024))
        a("s_mul_i32 s%d, s%d, %d\ns_add_u32 s%d, s%d, %d" % (s_m0w, s_w, self.nw * 1024, s_m0w, s_m0w, self.xbytes))
        a("s_lshl_b32 s%d, s%d, 5" % (s_wadv, s_ldw))
    def dma(self, st):
        g = []
        for j in range(self.nx):
            x = ["buffer_load_dwordx4 v%d, %s, s%d offen offset:%d%s lds" % (self.v_xsrc + j, WS, s_xoff, j * 1024, SC)]
            if j == 0: x = ["s_add_u32 m0, s%d, %d" % (s_m0x, st * self.stage), "s_nop 0"] + x
            g.append(x)
        for j in range(self.nw):
            x = ["buffer_load_dwordx4 v%d, %s, s%d offen offset:%d lds" % (self.v_wsrc + j, WSRD, s_woff, j * 1024)]
            if j == 0: x = ["s_add_u32 m0, s%d, %d" % (s_m0w, st * self.stage), "s_add_u32 s%d, s%d, 1024" % (s_xoff, s_xoff)] + x
            g.append(x)
        g[-1] = g[-1] + ["s_add_u32 s%d, s%d, s%d" % (s_woff, s_woff, s_wadv)]
        return g
    def reads(self, st, buf):
        out = []; base = st * self.stage; H = self.TN // 2
        for i in range(max(self.TM, self.TN)):
            if i < self.TN:
                f = self.wfrag(buf, i)
                for hf in range(2):
                    off = base + (i // H) * (self.wbytes // 2) + 16 * hf * self.pitch
                    out.append("ds_read_b64_tr_b16 %s, v%d offset:%d" % (r2(f + 2 * hf), self.v_wrd + (off // 65536) * H + i % H, off % 65536))
            if i < self.TM:
                off = base + i * 1024
                out.append("ds_read_b128 %s, v%d offset:%d" % (r4(self.xfrag(buf, i)), self.v_xrd + off // 65536, off % 65536))
        return out
    def mfmas(self, buf, first):
        out = []
        for tn in range(self.TN):
            for tm in range(self.TM):
                c = r4(self.acc(tn, tm), "a"); w = r4(self.wfrag(buf, tn)); x = r4(self.xfrag(buf, tm))
                if self.swap: w, x = x, w
                out.append("v_mfma_f32_16x16x32_bf16 %s, %s, %s, %s" % (c, w, x, "0" if first else c))
        return out
    def step(self, a, st, first=False):
        nd = self.nx + self.nw; nm = self.TM * self.TN; buf = st % 2
        a("s_waitcnt lgkmcnt(0)")
        mf = self.mfmas(buf, first); rd = self.reads((st + 1) % self.NST, buf ^ 1); dm = self.dma(st)
        gaps = [[] for _ in range(nm)]
        gaps[0].append("s_waitcnt vmcnt(%d)\ns_barrier" % (nd * (self.NST - 2)))
        dpos = [((2 * j + 1) * nm) // (2 * len(dm)) for j in range(len(dm))]
        for j, p in enumerate(dpos): gaps[p] += dm[j]
        free = [i for i in range(nm) if i not in dpos]
        for k, x in enumerate(rd): gaps[free[k] if k < len(free) else k % nm].append(x)
        for i in range(nm):
            a(mf[i])
            for x in gaps[i]: a(x)
    def body(self, a, rot=0):
        n = self.name; nd = self.nx + self.nw
        self.setup(a)
        for st in range(self.NST):
            for g in self.dma(st):
                for x in g: a(x)
        a("s_waitcnt vmcnt(%d)\ns_barrier" % (nd * (self.NST - 1)))
        for x in self.reads(0, 0): a(x)
        self.step(a, 0, True)
        a("s_branch L_%s_s1" % n)
        a("L_%s_loop:" % n)
        if rot:
            a("s_cmp_eq_u32 s%d, 3\ns_cselect_b32 s%d, s55, 0\ns_lshl_b32 s%d, s%d, 15\ns_sub_u32 s%d, s%d, s%d\ns_lshl_b32 s%d, s%d, 23\ns_sub_u32 s%d, s%d, s%d" % (
                s_ngrp, t0, t1, t0, s_xoff, s_xoff, t1, t1, t0, s_woff, s_woff, t1))
        a("s_cmp_eq_u32 s%d, 1\ns_cselect_b32 s%d, 0x%x, s%d\ns_cselect_b32 s%d, 0x%x, s%d" % (s_ngrp, s_xoff, OOB, s_xoff, s_woff, OOB, s_woff))
        self.step(a, 0)
        a("L_%s_s1:" % n)
        for st in range(1, self.NST): self.step(a, st)
        a("s_sub_u32 s%d, s%d, 1\ns_cmp_lg_u32 s%d, 0\ns_cbranch_scc1 L_%s_loop" % (s_ngrp, s_ngrp, s_ngrp, n))
        a("s_waitcnt lgkmcnt(0)")
        nop(a, 8)
    def wave_base(self, a, rows_mul, col_bytes):
        a("s_lshr_b32 s%d, s%d, 1\ns_mul_i32 s%d, s%d, %d\ns_mul_i32 s%d, s%d, s%d\ns_add_u32 s%d, s%d, s%d" % (t0, s_w, t0, t0, rows_mul, t0, t0, s_ors, t0, t0, s_obase))
        a("s_and_b32 s%d, s%d, 1\ns_mul_i32 s%d, s%d, %d\ns_add_u32 s%d, s%d, s%d" % (t1, s_w, t1, t1, col_bytes, t0, t0, t1))
    def pack(self, a, t, accs):
        for r, c in enumerate(accs): a("v_accvgpr_read_b32 v%d, a%d" % (t + 4 + r, c))
        for r in range(4): a("v_cvt_pk_bf16_f32 v%d, v%d, v%d" % (t + r, t + 4 + 2 * r, t + 5 + 2 * r))
    def epi_t16(self, a):
        H = self.TN // 2
        self.wave_base(a, self.TM, (H // 2) * 1024)
        k = 0
        for tm in range(self.TM):
            a("s_add_u32 s%d, s%d, s%d" % (t1, t0, s_ohalf))
            for tp in range(self.TN // 2):
                t = self.v_frag + (k % 4) * 12; k += 1
                self.pack(a, t, [self.acc(2 * tp + r // 4, tm) + r % 4 for r in range(8)])
                half, p = (2 * tp) // H, ((2 * tp) % H) // 2
                a("buffer_store_dwordx4 %s, v%d, %s, s%d offen offset:%d%s" % (r4(t), v_l16, WS, t1 if half else t0, p * 1024, SC))
            a("s_add_u32 s%d, s%d, s%d" % (t0, t0, s_ors))
    def epi_vt(self, a):
        H = self.TN // 2
        self.wave_base(a, self.TM // 2, H * 1024)
        k = 0
        for sp in range(self.TM // 2):
            a("s_add_u32 s%d, s%d, s%d" % (t1, t0, s_ohalf))
            for tn in range(self.TN):
                t = self.v_frag + (k % 4) * 12; k += 1
                self.pack(a, t, [self.acc(tn, 2 * sp + r // 4) + r % 4 for r in range(8)])
                a("buffer_store_dwordx4 %s, v%d, %s, s%d offen offset:%d%s" % (r4(t), v_l16, WS, t1 if tn // H else t0, (tn % H) * 1024, SC))
            a("s_add_u32 s%d, s%d, s%d" % (t0, t0, s_ors))
    def epi_f32(self, a):
        H = self.TN // 2
        self.wave_base(a, self.TM, H * 1024)
        for tm in range(self.TM):
            a("s_add_u32 s%d, s%d, s%d" % (t1, t0, s_ohalf))
            for tn in range(self.TN):
                a("buffer_store_dwordx4 %s, v%d, %s, s%d offen offset:%d%s" % (r4(self.acc(tn, tm), "a"), v_l16, WS, t1 if tn // H else t0, (tn % H) * 1024, SC))
            a("s_add_u32 s%d, s%d, s%d" % (t0, t0, s_ors))
    def epi_gu(self, a):
        H = self.TN // 2
        self.wave_base(a, self.TM, (H // 2) * 1024)
        a("s_mov_b32 s%d, %s" % (t2, f32(-math.log2(math.e))))
        k = 0
        for tm in range(self.TM):
            for p in range(H // 2):
                t = self.v_frag + (k % 2) * 28; k += 1
                G, U, E = t + 4, t + 12, t + 20
                for r in range(8): a("v_accvgpr_read_b32 v%d, a%d" % (G + r, self.acc(2 * p + r // 4, tm) + r % 4))
                for r in range(8): a("v_mul_f32 v%d, s%d, v%d" % (E + r, t2, G + r))
                for r in range(8): a("v_exp_f32 v%d, v%d" % (E + r, E + r))
                for r in range(8): a("v_accvgpr_read_b32 v%d, a%d" % (U + r, self.acc(H + 2 * p + r // 4, tm) + r % 4))
                for r in range(8): a("v_add_f32 v%d, 1.0, v%d" % (E + r, E + r))
                for r in range(8): a("v_rcp_f32 v%d, v%d" % (E + r, E + r))
                for r in range(0, 8, 2): a("v_pk_mul_f32 %s, %s, %s" % (r2(G + r), r2(G + r), r2(U + r)))
                for r in range(0, 8, 2): a("v_pk_mul_f32 %s, %s, %s" % (r2(G + r), r2(G + r), r2(E + r)))
                for r in range(4): a("v_cvt_pk_bf16_f32 v%d, v%d, v%d" % (t + r, G + 2 * r, G + 2 * r + 1))
                a("buffer_store_dwordx4 %s, v%d, %s, s%d offen offset:%d%s" % (r4(t), v_l16, WS, t0, p * 1024, SC))
            a("s_add_u32 s%d, s%d, s%d" % (t0, t0, s_ors))

XT = HB + 4 * MB
L_RED = 0
def row_addr(a, v):
    a("v_and_b32 v%d, 15, v%d\nv_lshlrev_b32 v%d, 11, v%d" % (v, v_lane, v, v))
    a("v_bfe_u32 v4, v%d, 4, 1\nv_lshl_add_u32 v%d, v4, 5, v%d\nv_lshrrev_b32 v4, 5, v%d\nv_lshl_add_u32 v%d, v4, 4, v%d" % (v_lane, v, v, v_lane, v, v))
    a("s_lshl_b32 s%d, s%d, 9\nv_add_u32 v%d, s%d, v%d" % (t0, s_w, v, t0, v))
def swap16(a, d):
    a("v_permlane16_swap_b32 v%d, v%d\nv_permlane16_swap_b32 v%d, v%d" % (d, d + 2, d + 1, d + 3))
def unpack(a, F, d):
    for r in range(4): a("v_lshlrev_b32 v%d, 16, v%d\nv_and_b32 v%d, 0xffff0000, v%d" % (F + 2 * r, d + r, F + 2 * r + 1, d + r))
def rowsum(a, v, tmp, slot):
    for sw in ("v_permlane32_swap_b32", "v_permlane16_swap_b32"):
        a("v_mov_b32 v%d, v%d\ns_nop 1\n%s v%d, v%d\nv_add_f32 v%d, v%d, v%d" % (tmp, v, sw, v, tmp, v, v, tmp))
    a("ds_write_b32 v6, v%d offset:%d\ns_waitcnt lgkmcnt(0)\ns_barrier\nds_read_b128 %s, v7 offset:%d\ns_waitcnt lgkmcnt(0)" % (v, slot * 256, r4(tmp), slot * 256))
    a("v_add_f32 v%d, v%d, v%d\nv_add_f32 v%d, v%d, v%d\nv_add_f32 v%d, v%d, v%d" % (tmp, tmp, tmp + 1, tmp + 2, tmp + 2, tmp + 3, v, tmp, tmp + 2))
def layernorm_store(a, F, D, s_dst):
    a("v_and_b32 v7, 15, v%d\nv_lshlrev_b32 v7, 4, v7\ns_lshl_b32 s%d, s%d, 2\nv_add_u32 v6, s%d, v7" % (v_lane, t0, s_w, t0))
    S, T = 8, 12
    a("v_pk_add_f32 %s, %s, %s" % (r2(S), r2(F), r2(F + 2)))
    for k in range(4, 64, 2): a("v_pk_add_f32 %s, %s, %s" % (r2(S), r2(S), r2(F + k)))
    a("v_add_f32 v%d, v%d, v%d" % (S, S, S + 1))
    rowsum(a, S, T, 0)
    a("v_mul_f32 v%d, %s, v%d" % (S, f32(-1.0 / 1024), S))
    for k in range(0, 64, 2): a("v_pk_add_f32 %s, %s, %s op_sel_hi:[1,0]" % (r2(F + k), r2(F + k), r2(S)))
    a("v_pk_mul_f32 %s, %s, %s" % (r2(S), r2(F), r2(F)))
    for k in range(2, 64, 2): a("v_pk_fma_f32 %s, %s, %s, %s" % (r2(S), r2(F + k), r2(F + k), r2(S)))
    a("v_add_f32 v%d, v%d, v%d" % (S, S, S + 1))
    rowsum(a, S, T, 1)
    a("v_mov_b32 v%d, %s\nv_fmac_f32 v%d, %s, v%d\nv_rsq_f32 v%d, v%d\ns_nop 0" % (T, f32(1e-5), T, f32(1.0 / 1024), S, S, T))
    a("s_lshl_b32 s%d, s%d, 13\ns_add_u32 s%d, s%d, s%d\ns_add_u32 s%d, s%d, 4096" % (t0, s_w, t0, t0, s_dst, t1, t0))
    for p in range(8):
        for k in range(0, 8, 2): a("v_pk_mul_f32 %s, %s, %s op_sel_hi:[1,0]" % (r2(F + 8 * p + k), r2(F + 8 * p + k), r2(S)))
        for r in range(4): a("v_cvt_pk_bf16_f32 v%d, v%d, v%d" % (D + 4 * p + r, F + 8 * p + 2 * r, F + 8 * p + 2 * r + 1))
        a("buffer_store_dwordx4 %s, v%d, %s, s%d offen offset:%d%s" % (r4(D + 4 * p), v_l16, WS, t1 if p >= 4 else t0, (p % 4) * 1024, SC))

def task_ln1(a, s_rg):
    D, F = 16, 48
    set_srd(a, 24, P_X, 4 * MB)
    row_addr(a, 5)
    a("s_lshl_b32 s%d, s%d, 15" % (t2, s_rg))
    for p in range(8): a("buffer_load_dwordx4 %s, v5, %s, s%d offen offset:%d" % (r4(D + 4 * p), XSRD, t2, p * 64))
    a("s_lshl_b32 s%d, s%d, 13\ns_add_u32 s%d, s%d, s%d\ns_add_u32 s%d, s%d, %d\ns_add_u32 s%d, s%d, 4096" % (t0, s_w, t0, t0, t2, t0, t0, XT, t1, t0))
    for p in range(8):
        a("s_waitcnt vmcnt(7)")
        swap16(a, D + 4 * p)
        a("buffer_store_dwordx4 %s, v%d, %s, s%d offen offset:%d%s" % (r4(D + 4 * p), v_l16, WS, t1 if p >= 4 else t0, (p % 4) * 1024, SC))
        unpack(a, F + 8 * p, D + 4 * p)
    a("s_add_u32 s%d, s%d, %d" % (t2, t2, XN))
    layernorm_store(a, F, D, t2)

def sum_partials(a, tag, s_rg, s_n, F, D, pbase, pstride, res_base):
    P, U = 112, 240
    a("s_lshl_b32 s%d, s%d, 15\ns_lshl_b32 s%d, s%d, 13\ns_add_u32 s%d, s%d, s%d" % (t2, s_rg, t0, s_w, t3, t0, t2))
    def issue(R, base, sp=None):
        a("s_add_u32 s%d, s%d, %d" % (t0, t3, base))
        if sp is not None: a("s_cmp_gt_u32 s%d, %d\ns_cselect_b32 s%d, s%d, 0x%x" % (s_n, sp, t0, t0, OOB))
        a("s_add_u32 s%d, s%d, 4096" % (t1, t0))
        for p in range(8): a("buffer_load_dwordx4 %s, v%d, %s, s%d offen offset:%d%s" % (r4(R + 4 * p), v_l16, WS, t1 if p >= 4 else t0, (p % 4) * 1024, SC))
    issue(D, res_base)
    for sp in range(4): issue(P + 32 * sp, pbase + sp * pstride)
    a("s_waitcnt vmcnt(32)")
    for p in range(8): unpack(a, F + 8 * p, D + 4 * p)
    for sp in range(8):
        if sp == 4: a("s_cmp_eq_u32 s%d, 4\ns_cbranch_scc1 L_%s_sum" % (s_n, tag))
        a("s_waitcnt vmcnt(%d)" % (24 if sp < 4 else 8 * (7 - sp)))
        for p in range(8):
            u = U + 8 * (p % 2)
            unpack(a, u, P + 32 * (sp % 4) + 4 * p)
            for k in range(0, 8, 2): a("v_pk_add_f32 %s, %s, %s" % (r2(F + 8 * p + k), r2(F + 8 * p + k), r2(u + k)))
        if sp < 4: issue(P + 32 * sp, pbase + (sp + 4) * pstride, sp + 4)
    a("L_%s_sum:" % tag)

def task_ln2(a, s_rg, s_n, pbase, pstride):
    D, F = 16, 48
    sum_partials(a, "ln2", s_rg, s_n, F, D, pbase, pstride, XT)
    a("s_add_u32 s%d, s%d, %d\ns_add_u32 s%d, s%d, 4096" % (t0, t3, HB, t1, t0))
    for p in range(8):
        for r in range(4): a("v_cvt_pk_bf16_f32 v%d, v%d, v%d" % (D + 4 * p + r, F + 8 * p + 2 * r, F + 8 * p + 2 * r + 1))
        a("buffer_store_dwordx4 %s, v%d, %s, s%d offen offset:%d%s" % (r4(D + 4 * p), v_l16, WS, t1 if p >= 4 else t0, (p % 4) * 1024, SC))
        unpack(a, F + 8 * p, D + 4 * p)
    a("s_add_u32 s%d, s%d, %d" % (t2, t2, HN))
    layernorm_store(a, F, D, t2)

def task_fin(a, s_rg, s_n, pbase, pstride):
    D, F = 16, 48
    sum_partials(a, "fin", s_rg, s_n, F, D, pbase, pstride, HB)
    set_srd(a, 24, P_OUT, 4 * MB)
    row_addr(a, 5)
    for p in range(8):
        for r in range(4): a("v_cvt_pk_bf16_f32 v%d, v%d, v%d" % (D + 4 * p + r, F + 8 * p + 2 * r, F + 8 * p + 2 * r + 1))
        a("s_nop 1")
        swap16(a, D + 4 * p)
        a("buffer_store_dwordx4 %s, v5, %s, s%d offen offset:%d" % (r4(D + 4 * p), XSRD, t2, p * 64))

def att_setup(a):
    a("v_and_b32 v4, 15, v%d\nv_lshrrev_b32 v5, 4, v%d\nv_lshlrev_b32 v6, 2, v5\nv_mov_b32 v7, 0xff000000\nv_mov_b32 v9, 0" % (v_lane, v_lane))
    for r in range(4):
        a("v_add_u32 v10, %d, v6\nv_cmp_gt_u32 vcc, v10, v4\ns_nop 1\nv_cndmask_b32 v%d, v9, v7, vcc\nv_mov_b32 v%d, 0x3f803f80" % (r, 12 + r, 20 + r))
    a("v_mov_b64 v[152:153], 0\nv_lshlrev_b32 v8, 3, v%d\ns_lshl_b32 s%d, s%d, 12\nv_add_u32 v17, s%d, v8" % (v_lane, t0, s_w, t0))
    a("v_lshlrev_b32 v18, 5, v4\nv_lshl_add_u32 v18, v5, 3, v18\nv_add_u32 v18, s%d, v18" % t0)
    a("s_mov_b32 s42, %s" % f32(128 ** -0.5 * math.log2(math.e)))

def task_att(a, s_seg, s_head, mid=None):
    Q, K, V, KMr, VMr = 24, 56, 88, 120, 136
    a("s_lshl_b32 s%d, s%d, 18\ns_lshl_b32 s%d, s%d, 12\ns_add_u32 s%d, s%d, s%d" % (t2, s_seg, t3, s_head, t2, t2, t3))
    a("s_lshl_b32 s%d, s%d, 11\ns_xor_b32 s%d, s%d, s%d\ns_and_b32 s%d, s%d, 8192\ns_lshl_b32 s%d, s%d, 19\ns_add_u32 s%d, s%d, s%d" % (t1, s_seg, t1, t1, s_near, t1, t1, t0, s_seg, t1, t1, t0))
    a("s_lshr_b32 s%d, s%d, 1\ns_lshl_b32 s%d, s%d, 14\ns_and_b32 s%d, s%d, 4096\ns_add_u32 s%d, s%d, s%d\ns_add_u32 s%d, s%d, s%d" % (t0, s_head, t0, t0, t3, t3, t3, t3, t0, t3, t3, t1))
    for base, R, src, st in ((KX, K, t3, 262144), (QX, Q, t2, 131072)):
        for tb in range(2):
            a("s_add_u32 s%d, s%d, %d" % (t0, src, base + tb * st))
            for kp in range(4): a("buffer_load_dwordx4 %s, v%d, %s, s%d offen offset:%d%s" % (r4(R + 16 * tb + 4 * kp), v_l16, WS, t0, kp * 1024, SC))
    a("s_lshl_b32 s%d, s%d, 14\ns_add_u32 s%d, s%d, s%d" % (t0, s_head, t1, t1, t0))
    a("s_add_u32 s%d, s%d, %d" % (t0, t1, VT))
    for T in range(8):
        a("buffer_load_dwordx4 %s, v%d, %s, s%d offen offset:%d%s" % (r4(V + 4 * T), v_l16, WS, t0, (T % 4) * 1024, SC))
        if T == 3: a("s_add_u32 s%d, s%d, 4096" % (t0, t0))
    if mid: mid()
    a("s_add_u32 s%d, s%d, %d" % (t0, t1, KM))
    for T in range(8): a("buffer_load_dwordx2 %s, v8, %s, s%d offen offset:%d%s" % (r2(VMr + 2 * T), WS, t0, T * 512, SC))
    S = 156
    tiles = [(S, KMr, 0, "0"), (S + 4, K, 0, "v[12:15]"), (S + 12, KMr, 1, "0"), (S + 16, K, 1, "0"), (S + 20, K + 16, 1, "v[12:15]")]
    a("s_waitcnt vmcnt(8)")
    for kp in range(4):
        for D, Aop, qt, C in tiles:
            if Aop != KMr: a("v_mfma_f32_16x16x32_bf16 %s, %s, %s, %s" % (r4(D), r4(Aop + 4 * kp), r4(Q + 16 * qt + 4 * kp), C if kp == 0 else r4(D)))
    for T in range(8): a("s_waitcnt vmcnt(%d)\nds_write_b64 v18, %s offset:%d" % (7 - T, r2(VMr + 2 * T), T * 512))
    a("s_waitcnt lgkmcnt(0)")
    for T in range(8): a("ds_read_b64_tr_b16 %s, v17 offset:%d" % (r2(KMr + 2 * T), T * 512))
    a("s_waitcnt lgkmcnt(0)")
    for kp in range(4):
        for D, Aop, qt, C in tiles:
            if Aop != KMr: continue
            a("v_mfma_f32_16x16x32_bf16 %s, %s, %s, %s" % (r4(D), r4(Aop + 4 * kp), r4(Q + 16 * qt + 4 * kp), C if kp == 0 else r4(D)))
    nop(a, 8)
    PX, PZ = 180, 188
    for qt in range(2):
        b = S + 12 * qt; M = 200
        val = [b, b + 1] + list(range(b + 4, b + 8 + 4 * qt))
        a("v_max_f32 v%d, v%d, v%d" % (M, val[0], val[1]))
        for k in range(2, len(val), 2): a("v_max3_f32 v%d, v%d, v%d, v%d" % (M, val[k], val[k + 1], M))
        for sw in ("v_permlane32_swap_b32", "v_permlane16_swap_b32"):
            a("v_mov_b32 v%d, v%d\ns_nop 1\n%s v%d, v%d\nv_max_f32 v%d, v%d, v%d" % (M + 1, M, sw, M, M + 1, M, M, M + 1))
        a("v_mul_f32 v%d, s42, v%d" % (M, M))
        for r in val: a("v_fma_f32 v%d, v%d, s42, -v%d" % (r, r, M))
        for r in val: a("v_exp_f32 v%d, v%d" % (r, r))
        px, pz = PX + 4 * qt, PZ + 4 * qt
        a("v_mov_b32 v%d, 0\nv_mov_b64 %s, 0" % (pz, r2(pz + 2)))
        a("v_cvt_pk_bf16_f32 v%d, v%d, v%d" % (pz + 1, b, b + 1))
        a("v_cvt_pk_bf16_f32 v%d, v%d, v%d\nv_cvt_pk_bf16_f32 v%d, v%d, v%d" % (px, b + 4, b + 5, px + 1, b + 6, b + 7))
        if qt: a("v_cvt_pk_bf16_f32 v%d, v%d, v%d\nv_cvt_pk_bf16_f32 v%d, v%d, v%d" % (px + 2, b + 8, b + 9, px + 3, b + 10, b + 11))
        else: a("v_mov_b64 %s, 0" % r2(px + 2))
    a("s_waitcnt vmcnt(0)")
    O, L = 24, 156
    for qt in range(2):
        px, pz = PX + 4 * qt, PZ + 4 * qt
        a("v_mfma_f32_16x16x32_bf16 %s, v[20:23], %s, 0" % (r4(L + 4 * qt), r4(px)))
        a("v_mfma_f32_16x16x32_bf16 %s, v[20:23], %s, %s" % (r4(L + 4 * qt), r4(pz), r4(L + 4 * qt)))
        for T in range(8):
            o = r4(O + 32 * qt + 4 * T)
            a("v_mfma_f32_16x16x32_bf16 %s, %s, %s, 0" % (o, r4(V + 4 * T), r4(px)))
            a("v_mfma_f32_16x16x32_bf16 %s, %s, %s, %s" % (o, r4(VMr + 2 * T), r4(pz), o))
    a("v_rcp_f32 v200, v%d\nv_rcp_f32 v202, v%d" % (L, L + 4))
    nop(a, 6)
    for qt in range(2):
        a("s_add_u32 s%d, s%d, %d" % (t0, t2, OA + qt * 131072))
        for p in range(4):
            o = O + 32 * qt + 8 * p; d = 164 + 4 * (p % 4)
            for k in range(0, 8, 2): a("v_pk_mul_f32 %s, %s, %s op_sel_hi:[1,0]" % (r2(o + k), r2(o + k), r2(200 + 2 * qt)))
            for r in range(4): a("v_cvt_pk_bf16_f32 v%d, v%d, v%d" % (d + r, o + 2 * r, o + 2 * r + 1))
            a("buffer_store_dwordx4 %s, v%d, %s, s%d offen offset:%d%s" % (r4(d), v_l16, WS, t0, p * 1024, SC))
```

```python
import sys
from asmlib import *
from layout import *
from tasks import *
import chain2 as CH
import sched as SC_
from sched import *
from serv import *
NAME = "sequential_preLN__memory_aug_recurrent_mem_tr__swiglu_ffn__prompt_kernel"
SPINW = 200000
def gen(tau=2.6, t0=22.0, ckw={}, trace=0, skw={}, dsp=2, wnt=' nt', lead=1, cpf=0, RL=4, RF=8, warm=0, krot=0, osc='', d0=8, ahead2=0, r3=5):
    T = build(tau, t0, krot=krot, **skw); lists = simulate(T, tau, t0, r3=r3)
    a = Asm()
    a("; @launch grid=(256,1,1) block=(256,1,1) lds=%d" % CH.LDS_BYTES)
    a('.amdgcn_target "amdgcn-amd-amdhsa--gfx950"')
    kernel_begin(a, NAME)
    a("s_cmp_ge_u32 s2, 256\ns_cbranch_scc1 L_end\ns_load_dwordx4 s[4:7], s[0:1], 96\ns_memtime s[94:95]")
    if trace: a("s_memrealtime s[98:99]")
    a("s_getreg_b32 s20, hwreg(HW_REG_XCC_ID)\ns_and_b32 s20, s20, 15\nv_and_b32 v1, 63, v0\nv_lshrrev_b32 v3, 6, v0")
    load_ptrs(a)
    a("v_readfirstlane_b32 s21, v3\ns_mov_b32 s62, %d" % SPINW)
    set_srd(a, 8, 6, WS_BYTES); set_srd(a, 16, 4, 256)
    def ticket(): a("v_mov_b32 v3, 1\ns_lshl_b32 s22, s20, 2\nv_mov_b32 v4, s22\nbuffer_atomic_add v3, v4, s[16:19], 0 offen sc0")
    a("s_mov_b32 s52, -1\ns_and_b32 s4, s2, 7\ns_cmp_lt_u32 s4, 2\ns_cbranch_scc1 L_e_tk\ns_lshr_b32 s52, s2, 3\ns_mul_i32 s52, s52, 6\ns_add_u32 s52, s52, s4\ns_sub_u32 s52, s52, 2")
    a("s_cmp_ge_u32 s52, 128\ns_cbranch_scc1 L_e_nl")
    task_ln1(a, 52)
    a("""
    s_cmp_lg_u32 s21, 0
    s_cbranch_scc1 L_e_l1
    v_mov_b32 v4, 128
    L_e_l0:
    buffer_load_dword v5, v4, s[16:19], 0 offen sc1
    s_sub_u32 s62, s62, 1
    s_cbranch_scc1 L_e_l1
    s_waitcnt vmcnt(0)
    v_cmp_gt_u32 vcc, 4, v5
    s_cbranch_vccnz L_e_l0
    L_e_l1:
    s_waitcnt vmcnt(0)
    s_barrier
    s_cmp_lg_u32 s21, 0
    s_cbranch_scc1 L_e_bc
    s_mov_b64 exec, 1
    s_lshr_b32 s5, s52, 4
    s_lshl_b32 s5, s5, 7
    s_add_u32 s5, s5, %d
    v_mov_b32 v6, 0
    v_mov_b32 v5, 1
    buffer_atomic_add v5, v6, s[8:11], s5 offen sc0
    """ % (FLAGS + 128 * C_LN1))
    ticket()
    a("s_waitcnt vmcnt(1)\nv_cmp_eq_u32 vcc, 15, v5\ns_cbranch_vccz L_e_l2\nv_mov_b32 v5, 16\ns_add_u32 s5, s5, %d\nbuffer_store_dword v5, v6, s[8:11], s5 offen sc1\ns_waitcnt vmcnt(1)\ns_branch L_e_put" % (128 * C_LNF))
    a("L_e_l2:\ns_waitcnt vmcnt(0)\ns_branch L_e_put")
    a("L_e_nl:\ns_cmp_ge_u32 s52, 132\ns_cbranch_scc1 L_e_tk\ns_sub_u32 s30, s52, 128")
    a("v_lshlrev_b32 v3, 4, v0\nv_mov_b32 v4, 0\nv_mov_b32 v5, 0\nv_mov_b32 v6, 0\nv_mov_b32 v7, 0\ns_mul_i32 s30, s30, %d\ns_add_u32 s30, s30, %d" % (ZERO_BYTES // 4, FLAGS))
    for k in range(ZERO_BYTES // 16384):
        a("buffer_store_dwordx4 v[4:7], v3, s[8:11], s30 offen sc1\ns_add_u32 s30, s30, 4096")
    a("s_waitcnt vmcnt(0)\ns_barrier\nv_mov_b32 v4, 1\nv_lshlrev_b32 v5, 6, v0\nv_add_u32 v5, 64, v5")
    a("v_cmp_gt_u32 vcc, 2, v0\ns_and_saveexec_b64 s[48:49], vcc\ns_cbranch_execz L_ini2\nbuffer_atomic_add v4, v5, s[16:19], 0 offen\nL_ini2:\ns_mov_b64 exec, s[48:49]")
    a("L_e_tk:")
    a("s_sub_u32 s4, s52, 132\ns_cmp_ge_u32 s4, 32\ns_cbranch_scc1 L_e_nt")
    a("s_lshl_b32 s4, s4, 18\nv_lshlrev_b32 v4, 10, v0\nv_or_b32 v5, 0x1f80, v4")
    for p in (P_WO, P_WQ, P_WK, P_WV):
        set_srd(a, 12, p, 8 * MB)
        a("buffer_load_dwordx2 v[124:125], v4, s[12:15], s4 offen offset:%d\nbuffer_load_dwordx2 v[124:125], v5, s[12:15], s4 offen offset:60" % (3 * 128 + 60))
    a("s_waitcnt vmcnt(0)\ns_barrier")
    a("L_e_nt:\ns_cmp_lg_u32 s21, 0\ns_cbranch_scc1 L_e_t1\ns_mov_b64 exec, 1")
    ticket()
    a("s_mov_b64 exec, -1\nL_e_t1:\ns_barrier")
    nside = 8
    a("s_cmp_ge_u32 s20, 2\ns_cbranch_scc1 L_e_w0")
    set_srd(a, 12, P_WO, 8 * MB)
    a("s_lshr_b32 s4, s2, 3\ns_and_b32 s5, s4, 1\ns_lshl_b32 s5, s5, 10\ns_lshr_b32 s4, s4, 1\ns_lshl_b32 s6, s20, 4\ns_add_u32 s4, s4, s6\ns_lshl_b32 s4, s4, 18\ns_add_u32 s4, s4, s5")
    a("s_lshr_b32 s5, s21, 1\ns_lshl_b32 s5, s5, 17\ns_add_u32 s4, s4, s5\ns_and_b32 s5, s21, 1\ns_lshl_b32 s5, s5, 14\ns_add_u32 s4, s4, s5")
    for k in range(8):
        a("buffer_load_dwordx4 v[124:127], v2, s[12:15], s4 offen" + ("\ns_add_u32 s4, s4, 2048" if k < 7 else ""))
    a("L_e_w8:\ns_waitcnt vmcnt(8)\ns_branch L_e_w\nL_e_w0:\ns_waitcnt vmcnt(0)\nL_e_w:\ns_cmp_lg_u32 s21, 0\ns_cbranch_scc1 L_e_bc\ns_mov_b64 exec, 1")
    a("""
    L_e_put:
    v_mov_b32 v5, %d
    ds_write_b32 v5, v3
    s_waitcnt lgkmcnt(0)
    s_mov_b64 exec, -1
    L_e_bc:
    s_barrier
    v_mov_b32 v5, %d
    ds_read_b32 v3, v5
    s_waitcnt lgkmcnt(0)
    v_readfirstlane_b32 s22, v3
    s_barrier
    """ % (CH.L_MISC, CH.L_MISC))
    a("s_cmp_ge_u32 s%d, 32\ns_cbranch_scc1 L_end\ns_cmp_ge_u32 s%d, 8\ns_cbranch_scc1 L_end" % (CH.s_i, CH.s_xcc))
    a("s_cmp_ge_u32 s%d, 2\ns_cbranch_scc1 L_worker\ns_mov_b32 s%d, s%d" % (CH.s_xcc, CH.s_x, CH.s_xcc))
    CH.emit_chain(a, **ckw)
    a("s_endpgm")
    a("L_worker:")
    a("s_getpc_b64 s[56:57]\ns_add_u32 s56, s56, task_table@rel32@lo+4\ns_addc_u32 s57, s57, task_table@rel32@hi+12")
    a("s_sub_u32 s20, s20, 2\ns_lshl_b32 s4, s20, 3\ns_load_dwordx2 s[58:59], s[56:57], s4")
    a("s_lshl_b32 s60, s20, 7\ns_add_u32 s60, s60, %d" % (FLAGS + 128 * C_Q))
    a("s_mov_b32 s61, s22\ns_mov_b32 s62, %d\ns_mov_b32 s63, -1" % SPINW)
    a("s_cmp_ge_u32 s20, 2\ns_cbranch_scc1 L_w_nov\ns_cmp_ge_u32 s22, 4\ns_cbranch_scc1 L_w_nov\ns_cmp_lg_u32 s21, 0\ns_cbranch_scc1 L_w_nov")
    a("s_lshl_b32 s4, s20, 5\ns_add_u32 s4, s4, s22\ns_lshl_b32 s4, s4, 14\ns_add_u32 s4, s4, %d\ns_mov_b32 s30, -1\ns_mov_b32 s31, -1\nv_lshlrev_b32 v4, 2, v1\ns_waitcnt vmcnt(0)" % (PRB + MB))
    for it in range(3):
        for hf in ((0, 1) if it % 2 == 0 else (1, 0)):
            a("s_add_u32 s5, s4, %d\ns_memtime s[32:33]\ns_waitcnt lgkmcnt(0)\nbuffer_store_dword v4, v4, s[8:11], s5 offen sc1\ns_waitcnt vmcnt(0)\ns_memtime s[34:35]\ns_waitcnt lgkmcnt(0)" % (hf * 8192 + it * 1024))
            a("s_sub_u32 s34, s34, s32\ns_min_u32 s%d, s%d, s34" % (30 + hf, 30 + hf))
    a("s_cmp_lt_u32 s31, s30\ns_cselect_b32 s4, 0x10001, 1\nv_mov_b32 v5, s4\nv_mov_b32 v4, 192\ns_mov_b64 exec, 1\nbuffer_atomic_add v5, v4, s[16:19], 0 offen\ns_mov_b64 exec, -1\nL_w_nov:")
    def init_wait(tag):
        a("""
        s_cmp_ge_u32 s61, 32
        s_cbranch_scc1 L_%s_d
        v_mov_b32 v4, 128
        L_%s:
        buffer_load_dword v5, v4, s[16:19], 0 offen sc1
        s_sub_u32 s62, s62, 1
        s_cbranch_scc1 L_w_fail
        s_waitcnt vmcnt(0)
        v_cmp_gt_u32 vcc, 4, v5
        s_cbranch_vccnz L_%s
        L_%s_d:
        """ % (tag, tag, tag, tag))
    a("""
    L_w_task:
    s_waitcnt lgkmcnt(0)
    s_cmp_ge_u32 s61, s59
    s_cbranch_scc1 L_end
    s_lshl_b32 s4, s61, 5
    s_add_u32 s4, s4, s58
    s_load_dwordx8 s[48:55], s[56:57], s4
    """)
    if trace: a("s_memrealtime s[88:89]")
    a("s_waitcnt lgkmcnt(0)")
    if cpf:
        a("s_cmp_ge_u32 s61, 32\ns_cbranch_scc1 L_w_npf\ns_cmp_eq_u32 s48, %d\ns_cbranch_scc1 L_w_npf" % T_LN1)
        a("s_cmp_eq_u32 s48, %d\ns_cselect_b32 s12, s%d, s%d\ns_cselect_b32 s13, s%d, s%d\ns_mov_b32 s14, 0x800000\ns_mov_b32 s15, 0x00020000" % (T_KB, P_WK, P_WV, P_WK + 1, P_WV + 1))
        a("v_lshrrev_b32 v4, 4, v0\nv_lshlrev_b32 v4, 13, v4\nv_and_b32 v5, 15, v0\nv_lshl_add_u32 v4, v5, 4, v4\ns_mov_b32 s4, s53\ns_mov_b32 s5, %d\nL_w_pf:" % cpf)
        a("buffer_load_dwordx4 v[8:11], v4, s[12:15], s4 offen\ns_add_u32 s4, s4, 131072\ns_waitcnt vmcnt(40)\ns_sub_u32 s5, s5, 1\ns_cmp_lg_u32 s5, 0\ns_cbranch_scc1 L_w_pf\ns_waitcnt vmcnt(0)\nL_w_npf:")
    a("""
    s_cmp_lg_u32 s21, 0
    s_cbranch_scc1 L_w_go
    s_cmp_eq_u32 s50, 0
    s_cbranch_scc1 L_w_go
    """)
    init_wait("wi1")
    a("""
    v_mov_b32 v4, 0
    L_w_poll:
    buffer_load_dword v5, v4, s[8:11], s49 offen sc1
    s_sub_u32 s62, s62, 1
    s_cbranch_scc1 L_w_fail
    s_waitcnt vmcnt(0)
    v_cmp_le_u32 vcc, s50, v5
    s_cbranch_vccnz L_w_go
    s_sleep 1
    s_branch L_w_poll
    L_w_go:
    s_barrier
    """)
    if trace: a("s_memrealtime s[90:91]")
    a("s_mov_b32 s%d, s52\ns_mov_b32 s%d, s53\ns_mov_b32 s%d, s54" % (s_xoff, s_woff, s_obase))
    for t in range(13): a("s_cmp_eq_u32 s48, %d\ns_cbranch_scc1 L_t%d" % (t, t))
    a("s_branch L_end")
    def get_near(tag):
        a("""
        s_cmp_lg_u32 s63, -1
        s_cbranch_scc1 L_%s_c
        v_mov_b32 v4, 192
        L_%s_p:
        buffer_load_dword v5, v4, s[16:19], 0 offen sc1
        s_sub_u32 s62, s62, 1
        s_cbranch_scc1 L_w_fail
        s_waitcnt vmcnt(0)
        v_readfirstlane_b32 s4, v5
        s_and_b32 s5, s4, 0xffff
        s_cmp_lt_u32 s5, 8
        s_cbranch_scc1 L_%s_p
        s_lshr_b32 s4, s4, 16
        s_cmp_ge_u32 s4, 4
        s_cselect_b32 s63, 8192, 0
        L_%s_c:
        """ % (tag, tag, tag, tag))
    def near_fix(tag, bywave):
        a("s_cmp_eq_u32 s%d, 0\ns_cbranch_scc1 L_%s_n" % (s_epi, tag))
        get_near(tag)
        a("s_lshl_b32 s4, s%d, %d\ns_xor_b32 s4, s4, s%d\ns_and_b32 s4, s4, 8192\ns_add_u32 s%d, s%d, s4\nL_%s_n:" % (s_w if bywave else 55, 12 if bywave else 13, s_near, s_obase, s_obase, tag))
    def wpf(tag):
        a("s_lshr_b32 s4, s55, 28\ns_cmp_eq_u32 s4, 0\ns_cbranch_scc1 L_%s_pf" % tag)
        a("s_and_b32 s5, s55, 0xfffffff\ns_and_b32 s6, s21, 1\ns_lshl_b32 s6, s6, 15\ns_add_u32 s5, s5, s6")
        set_w(a, P_WG, P_WU, 7 * MB)
        a("s_cmp_eq_u32 s4, 1\ns_cbranch_scc1 L_%s_p1" % tag)
        set_w(a, P_WD, P_WD, 7 * MB)
        a("s_lshr_b32 s6, s21, 1\ns_lshl_b32 s6, s6, 16\ns_add_u32 s5, s5, s6\nL_%s_p1:\nv_lshlrev_b32 v4, 7, v1" % tag)
        for k in range(4): a("buffer_load_dword v5, v4, s[12:15], s5 offen\nbuffer_load_dword v5, v4, s[12:15], s5 offen offset:64\ns_add_u32 s5, s5, 8192")
        a("L_%s_pf:" % tag)
    gA = Gemm("ga", 8, 8, 4); gAs = Gemm("gas", 8, 8, 4, swap=True); gB = Gemm("gb", 4, 4, 8); gBs = Gemm("gbs", 4, 4, 8, swap=True)
    def stub(t, g, pa, pb, wbytes, xrs, ldw, ngrp, ors, ohalf, epi, half=True, near=False):
        a("L_t%d:" % t)
        set_w(a, pa, pb, wbytes)
        a("s_mov_b32 s%d, %d\ns_mov_b32 s%d, %d\ns_mov_b32 s%d, %d\ns_mov_b32 s%d, %d\ns_mov_b32 s%d, %d\ns_mov_b32 s%d, %d" % (
            s_xrs, xrs, s_ldw, ldw, s_ngrp, ngrp, s_ors, ors, s_ohalf, ohalf, s_epi, epi))
        if half: a("s_lshr_b32 s%d, s%d, 1\ns_mul_i32 s%d, s%d, %d\ns_add_u32 s%d, s%d, s%d" % (t0_, s_w, t0_, t0_, g.BN, s_woff, s_woff, t0_))
        a("s_branch L_%s" % g.name)
    t0_ = 4
    stub(T_QA, gA, P_WQ, P_WQ, 8 * MB, 32768, 8192, 8, 131072, 4096, 0)
    stub(T_KA, gA, P_WK, P_WK, 8 * MB, 32768, 8192, 8, 262144, 4096, 1)
    stub(T_VA, gAs, P_WV, P_WV, 8 * MB, 32768, 8192, 8, 524288, 16384, 1)
    stub(T_KB, gB, P_WK, P_WK, 8 * MB, 32768, 8192, 4, 262144, 2048, 1)
    stub(T_VB, gBs, P_WV, P_WV, 8 * MB, 32768, 8192, 4, 524288, 4096, 1)
    class N:
        def __init__(q, n): q.name = n; q.BN = 128
    stub(T_SO, N("so"), P_WO, P_WO, 8 * MB, 131072, 2048, 0, 32768, 0, 0)
    stub(T_SGU, N("sgu"), P_WG, P_WU, 1024 * 7168, 32768, 7168, 0, 114688, 0, 0, half=False)
    stub(T_SD, N("sd"), P_WD, P_WD, 3584 * 2048, 114688, 2048, 0, 32768, 0, 0)
    a("L_ga:"); gA.body(a); near_fix("na", 1); wpf("na"); gA.epi_t16(a); a("s_branch L_w_done")
    a("L_gas:"); gAs.body(a); near_fix("nas", 1); wpf("nas"); gAs.epi_vt(a); a("s_branch L_w_done")
    a("L_gbs:"); gBs.body(a, krot); near_fix("nbs", 0); gBs.epi_vt(a); a("s_branch L_w_done")
    a("L_gb:"); gB.body(a, krot); near_fix("nb", 0); gB.epi_t16(a); a("s_branch L_w_done")
    a("L_t%d:" % T_PF)
    a("s_cmp_eq_u32 s52, 0\ns_cselect_b32 s12, s%d, s%d\ns_cselect_b32 s13, s%d, s%d\ns_mov_b32 s14, 0x800000\ns_mov_b32 s15, 0x00020000" % (P_WO, P_WQ, P_WO + 1, P_WQ + 1))
    a("s_lshl_b32 s4, s21, 14\ns_add_u32 s53, s53, s4\nL_pf:\ns_mov_b32 s4, s53")
    for k in range(16):
        a("buffer_load_dwordx4 v[8:11], v2, s[12:15], s4 offen offset:%d" % ((k % 4) * 1024))
        if k % 4 == 3: a("s_add_u32 s4, s4, 4096")
    a("s_waitcnt vmcnt(32)\ns_add_u32 s53, s53, 65536\ns_sub_u32 s54, s54, 1\ns_cmp_lg_u32 s54, 0\ns_cbranch_scc1 L_pf\ns_branch L_w_done")
    a("L_t%d:\ns_branch L_w_done" % T_LN1)
    WS_("so", 32, False, False).emit(a, trace, dsp, wnt, warm, d0, ahead2); WS_("sgu", 32, False, True).emit(a, trace, dsp, wnt, warm, d0, ahead2); WS_("sd", 28, True, False).emit(a, trace, dsp, wnt, warm, d0, ahead2)
    a("L_t%d:" % T_SLN); get_near("nl"); serv_rows(a, "sln", False, PART_O, PSLAB, RL, trace)
    a("L_t%d:" % T_SFIN); serv_rows(a, "sfin", True, PART_D, PSLAB, RF, trace, osc)
    a("L_t%d:" % T_SATT); get_near("nt"); serv_att(a, C_HP, trace)
    a("L_w_done:")
    a("s_waitcnt vmcnt(0)\ns_barrier")
    a("v_mov_b32 v7, %d" % CH.L_MISC)
    a("s_cmp_lg_u32 s21, 0\ns_cbranch_scc1 L_w_nx")
    a("""
    s_mov_b64 exec, 1
    s_lshr_b32 s4, s51, 16
    s_and_b32 s5, s51, 0xffff
    s_add_u32 s5, s5, %d
    v_mov_b32 v4, 0
    v_mov_b32 v5, s4
    v_mov_b32 v6, 1
    buffer_atomic_add v5, v4, s[8:11], s5 offen
    buffer_atomic_add v6, v4, s[8:11], s60 offen sc0
    """ % FLAGS)
    if trace:
        a("s_memrealtime s[92:93]\ns_lshl_b32 s4, s61, 5\ns_add_u32 s4, s4, s58\ns_add_u32 s4, s4, %d\ns_waitcnt lgkmcnt(0)" % (FLAGS + 4 * MB))
        a("v_mov_b32 v8, s88\nv_mov_b32 v9, s90\nv_mov_b32 v10, s92\nv_mov_b32 v11, s22\nbuffer_store_dwordx4 v[8:11], v4, s[8:11], s4 offen\nv_mov_b32 v12, s98\nbuffer_store_dword v12, v4, s[8:11], s4 offen offset:16")
    a("s_waitcnt vmcnt(0)")
    a("""
    ds_write_b32 v7, v6
    s_waitcnt lgkmcnt(0)
    s_mov_b64 exec, -1
    L_w_nx:
    s_barrier
    ds_read_b32 v6, v7
    s_waitcnt lgkmcnt(0)
    v_readfirstlane_b32 s61, v6
    s_add_u32 s61, s61, 32
    s_branch L_w_task
    L_w_fail:
    s_mov_b64 exec, -1
    v_mov_b32 v7, %d
    v_mov_b32 v6, 0x7fffff00
    ds_write_b32 v7, v6
    v_mov_b32 v4, 96
    v_mov_b32 v5, 1
    buffer_atomic_add v5, v4, s[16:19], 0 offen
    s_waitcnt vmcnt(0) lgkmcnt(0)
    L_end:
    s_endpgm
    """ % CH.L_MISC)
    kernel_desc(a, NAME, 512, 102, 256)
    a(".p2align 6\ntask_table:")
    off = 64
    hdr = []
    for l in lists: hdr += [off, len(l)]; off += 32 * len(l)
    a(".long " + ", ".join(map(str, hdr + [0] * (16 - len(hdr)))))
    for l in lists:
        for i in l:
            t = T[i]
            a(".long %d,%d,%d,%d,%d,%d,%d,%d" % (t.typ, t.share if hasattr(t, 'share') else FLAGS + 128 * (t.wait + (C_LNF if t.wait < 8 else 0)), t.target, 128 * t.sig | (t.inc << 16), *t.p))
    gen.T, gen.lists = T, lists
    return a.text()
if __name__ == "__main__":
    HDR = open("sequential_preLN__memory_aug_recurrent_mem_tr__swiglu_ffn__prompt.s.ref").read().split("; Override launch")[0]
    BEST = dict(tau=2.25, t0=20, ckw=dict(stamps=0))
    open(sys.argv[1], "w").write(HDR + gen(**BEST))
```

```python
import sys
from asmlib import *
from layout import *

L_PL = 0; L_KV0 = 16384; L_KV1 = 32768; L_F = 49152; L_O = 53248; L_DUM = 55296; L_TR = 57344; L_WO = 65536
L_KX = L_KV1
L_MISC = 158720
LDS_BYTES = 163840
OOB = 0x80000000
SPIN = 400000
NVOTE = 8
dstamp = lambda *x: None

def nop(a, n):
    while n > 0:
        k = min(n, 16); a("s_nop %d" % (k - 1)); n -= k

def srd(a, d, lo, hi, nbytes):
    a("s_mov_b32 s%d, s%d\ns_mov_b32 s%d, s%d\ns_mov_b32 s%d, 0x%x\ns_mov_b32 s%d, 0x00020000" % (d, lo, d + 1, hi, d + 2, nbytes, d + 3))

S_WS = 8; S_W = 12; S_DBG = 16
s_prog, s_tagl = 2, 3
s_xcc, s_w, s_i, s_x, s_h, s_b, s_step, s_spin = 20, 21, 22, 23, 24, 25, 26, 27
s_sent, s_scale = 28, 30
s_t0, s_t1, s_t2, s_t3 = 4, 5, 6, 7
o_qk_own, o_qk_par, s_e = 31, 32, 33
o_i3st = 34
o_i3ld, o_i3ld2, o_xs, o_xr, o_pl, o_plf, o_pp = 38, 39, 40, 41, 42, 43, 44
o_kv, o_km, b_kv, s_tag, s_cnt = 45, 46, 47, 48, 49
s_vt, m_kv, b_p, s_en = 52, 53, 54, 55
b_km, b_x = 100, 101
CUR = "s[12:15]"; WS = "s[8:11]"
R_QK2, R_I32 = 0, 524288
PBUF = RING + 2 * MB
o_qs, o_qr = 20, 24
v_ord, v_lane, v_l16, v_l8, v_idx, v_word, v_pst, v_i3st, v_i3l, v_xo, v_fown, v_fpar, v_owr, v_flag = range(14)
v_avx = 1
KMP = 14; M = 16; v_ones = 20; v_sel = 24
v_aq, v_ak, v_av = 28, 32, 36
V_WO = 96; V_WV = 128

def r4(v): return "v[%d:%d]" % (v, v + 3)
def r2(v): return "v[%d:%d]" % (v, v + 1)
def r8(v): return "v[%d:%d]" % (v, v + 7)

def wtile(m, f):
    if m == 0: return "a[%d:%d]" % (8 * f, 8 * f + 7)
    if m == 1: return "a[%d:%d]" % (128 + 8 * f, 128 + 8 * f + 7)
    return "v[%d:%d]" % (V_WV + 8 * f, V_WV + 8 * f + 7)

class LQ:
    def __init__(self, a): self.a = a; self.q = []
    def op(self, ins, tag=None): self.a(ins); self.q.append(tag)
    def need(self, tag):
        if tag not in self.q: return
        k = len(self.q) - 1 - self.q[::-1].index(tag)
        self.a("s_waitcnt lgkmcnt(%d)" % (len(self.q) - 1 - k)); self.q = self.q[k + 1:]
    def all(self):
        self.a("s_waitcnt lgkmcnt(0)"); self.q = []

def emit_chain(a, stamps=0, nsteps=64, pq=(6, 10, 14, 16), nokv=0, nokm=0, tw=0, focus=None, kvw=(3, 1), spos=(0, 1, 2, 3), rg=(40, 37), xl=(30, 16),
               v2=1, vpos=0, fdepth=24, xg=(14, 24, 36), xre=1, xb=1, x16=1, pbar=1, f16=1, cnt_='', worder=('o', 0, 1), rf=None, lin=0, nrep=1, fun=2, fchk=1, q2=1, vsplit=5, nv0=0, s1late=1, touch=1, wb=0, dlyw=0, tlb=2, lag2=1):
    A = a
    from serv import PROG
    from sched import C_HP
    import struct, math
    def stamp(k):
        if focus:
            k = focus.get(k)
            if k is None: return
        elif not isinstance(k, int): return
        if stamps > 1: A("s_memtime s[%d:%d]" % (60 + 2 * k, 61 + 2 * k))
    def cnt(k):
        if stamps: A("s_add_u32 s%d, s%d, 1" % (96 + k, 96 + k))
    z = lambda r: "v_mov_b64 %s, 0" % r2(r)
    T = 40
    A("s_load_dwordx8 s[48:55], s[0:1], 16")
    A("s_lshr_b32 s%d, s%d, 1\ns_lshl_b32 s%d, s%d, 4\ns_add_u32 s%d, s%d, s%d\ns_and_b32 s%d, s%d, 1" % (s_h, s_i, s_t0, s_x, s_h, s_h, s_t0, s_b, s_i))
    A("v_lshlrev_b32 v%d, 4, v%d\nv_lshlrev_b32 v%d, 3, v%d" % (v_l16, v_lane, v_l8, v_lane))
    vq, vo, vrq, vro = T, T + 1, T + 2, T + 3
    A("v_lshrrev_b32 v%d, 3, v%d\nv_lshlrev_b32 v%d, 13, v%d\nv_and_b32 v%d, 7, v%d\nv_lshl_add_u32 v%d, v%d, 4, v%d" % (T + 4, v_lane, T + 4, T + 4, T + 5, v_lane, vq, T + 5, T + 4))
    A("v_bfe_u32 v%d, v%d, 5, 1\nv_lshlrev_b32 v%d, 4, v%d" % (T + 4, v_lane, T + 4, T + 4))
    A("v_bfe_u32 v%d, v%d, 3, 1\nv_lshl_add_u32 v%d, v%d, 3, v%d" % (T + 5, v_lane, T + 4, T + 5, T + 4))
    A("v_bfe_u32 v%d, v%d, 2, 1\nv_add_u32 v%d, v%d, v%d" % (T + 5, v_lane, T + 4, T + 5, T + 4))
    A("v_bfe_u32 v%d, v%d, 4, 1\nv_lshl_add_u32 v%d, v%d, 2, v%d" % (T + 5, v_lane, T + 4, T + 5, T + 4))
    A("v_and_b32 v%d, 3, v%d\nv_lshlrev_b32 v%d, 3, v%d" % (T + 5, v_lane, T + 5, T + 5))
    A("s_lshl_b32 s%d, s%d, 5\nv_add_u32 v%d, s%d, v%d\nv_lshl_add_u32 v%d, v%d, 7, v%d" % (s_t0, s_w, T + 6, s_t0, T + 5, vrq, T + 4, T + 6))
    A("v_bfe_u32 v%d, v%d, 4, 1\nv_xor_b32 v%d, s%d, v%d\nv_lshlrev_b32 v%d, 4, v%d" % (T + 4, v_lane, T + 4, s_b, T + 4, T + 4, T + 4))
    A("v_bfe_u32 v%d, v%d, 5, 1\nv_lshl_add_u32 v%d, v%d, 2, v%d" % (T + 6, v_lane, T + 4, T + 6, T + 4))
    A("v_bfe_u32 v%d, v%d, 2, 1\nv_add_u32 v%d, v%d, v%d" % (T + 6, v_lane, T + 4, T + 6, T + 4))
    A("v_bfe_u32 v%d, v%d, 3, 1\nv_lshl_add_u32 v%d, v%d, 5, v%d" % (T + 6, v_lane, T + 5, T + 6, T + 5))
    A("s_lshl_b32 s%d, s%d, 8\nv_add_u32 v%d, s%d, v%d\nv_lshl_add_u32 v%d, v%d, 10, v%d" % (s_t0, s_w, T + 6, s_t0, T + 5, vro, T + 4, T + 6))
    A("s_waitcnt lgkmcnt(0)")
    chunks = [(m, c) for m in list(worder) + [2] for c in range(4)]
    bufs = [(2, 3, 4, 0, 1)[k] for k in [0, 1, 2, 3, 4, 0, 1, 2, 3, 4, 0, 1, 3, 4, 3, 4]]
    n0 = 5
    if lag2: bufs = [k & 1 for k in range(16)]; n0 = 2
    def issue(ci):
        kind, c = chunks[ci]; buf = bufs[ci]
        p = 54 if kind == "o" else 48 + 2 * kind
        srd(a, S_W, p, p + 1, 8 * MB)
        A("s_lshl_b32 s%d, s%d, 13\ns_add_u32 s%d, s%d, %d" % (s_t2, s_w, s_t2, s_t2, buf * 32768))
        if kind == "o":
            A("s_lshr_b32 s%d, s%d, 1\ns_lshl_b32 s%d, s%d, 6\ns_and_b32 s%d, s%d, 1\ns_lshl_b32 s%d, s%d, 3\ns_add_u32 s%d, s%d, s%d" % (
                s_t0, s_w, s_t0, s_t0, s_t1, s_w, s_t1, s_t1, s_t0, s_t0, s_t1))
            A("s_lshl_b32 s%d, s%d, 7\ns_add_u32 s%d, s%d, s%d\ns_add_u32 s%d, s%d, %d\ns_lshl_b32 s%d, s%d, 11" % (s_t1, s_h, s_t0, s_t0, s_t1, s_t0, s_t0, 16 * c, s_t0, s_t0))
            A("s_lshl_b32 s%d, s%d, 10\ns_add_u32 s%d, s%d, s%d" % (s_t1, s_b, s_t0, s_t0, s_t1))
            va, stride = v_l16, 2048
        else:
            A("s_lshl_b32 s%d, s%d, 6\ns_add_u32 s%d, s%d, %d\ns_lshl_b32 s%d, s%d, 13" % (s_t0, s_w, s_t0, s_t0, 256 * c, s_t0, s_t0))
            A("s_lshl_b32 s%d, s%d, 8\ns_add_u32 s%d, s%d, s%d\ns_lshl_b32 s%d, s%d, 7\ns_add_u32 s%d, s%d, s%d" % (s_t1, s_h, s_t0, s_t0, s_t1, s_t1, s_b, s_t0, s_t0, s_t1))
            va, stride = vq, 8 * 8192
        for j in range(8):
            A("s_add_u32 m0, s%d, %d\ns_nop 0" % (s_t2, j * 1024))
            A("buffer_load_dwordx4 v%d, s[12:15], s%d offen%s lds" % (va, s_t0, cnt_))
            if j < 7: A("s_add_u32 s%d, s%d, %d" % (s_t0, s_t0, stride))
    issued = 0
    extra = [0]
    def consume(ci):
        kind, c = chunks[ci]; buf = bufs[ci]
        A("s_waitcnt vmcnt(%d)\ns_barrier" % (8 * (issued - ci - 1) + extra[0]))
        A("v_add_u32 v%d, %d, v%d" % (T + 8, buf * 32768, vro if kind == "o" else vrq))
        if kind == "o":
            for u in range(4):
                for rho in range(4):
                    d = V_WV + (u * 4 + c) * 8 + 2 * rho
                    A("ds_read_b64_tr_b16 %s, v%d offset:%d" % (r2(d), T + 8, (8 * (rho >> 1) + 2 * (rho & 1)) * 1024 + u * 64))
        else:
            for fp in range(4):
                for rho in range(4):
                    f = 4 * c + fp
                    base = (8 * f if kind == 0 else 128 + 8 * f if kind == 1 else V_WV + 8 * f) + 2 * rho
                    dst = ("a[%d:%d]" if kind < 2 else "v[%d:%d]") % (base, base + 1)
                    A("ds_read_b64_tr_b16 %s, v%d offset:%d" % (dst, T + 8, (64 * fp + 32 * (rho >> 1) + 2 * (rho & 1)) * 128))
        A("s_waitcnt lgkmcnt(0)\ns_barrier")
    if stamps: A("s_memtime s[56:57]\ns_waitcnt lgkmcnt(0)\ns_sub_u32 s80, s56, s94")
    dstamp(12)
    if tlb:
        A("s_lshl_b32 s%d, s%d, 2\ns_add_u32 s%d, s%d, s%d\ns_lshl_b32 s%d, s%d, 16\ns_lshl_b32 s%d, s%d, 21" % (s_t0, s_i, s_t0, s_t0, s_w, s_t1, s_t0, s_t0, s_t0))
        for p in (54, 48, 50, 52): A("s_load_dword s93, s[%d:%d], s%d" % (p, p + 1, s_t1))
        A("s_load_dword s93, s[8:9], s%d offset:%d" % (s_t0, 1048576 - 64))
    for ci in range(n0): issue(ci); issued += 1
    if stamps: A("s_memtime s[56:57]\ns_waitcnt lgkmcnt(0)\ns_sub_u32 s88, s56, s94")
    T = 52
    A("s_mov_b32 s%d, 0x%x\ns_mov_b32 s%d, 0x%x" % (s_sent, SENT, s_sent + 1, SENT))
    A("s_mov_b32 s%d, 0x%x" % (s_scale, struct.unpack("<I", struct.pack("<f", 128 ** -0.5 * math.log2(math.e)))[0]))
    A("v_and_b32 v%d, 15, v%d\nv_lshrrev_b32 v%d, 4, v%d\nv_and_b32 v%d, 7, v%d" % (T, v_lane, T + 1, v_lane, T + 2, v_lane))
    A("v_cmp_gt_u32 vcc, 8, v%d\nv_mov_b32 v%d, 0xeeee\nv_mov_b32 v%d, 0x4444\nv_cndmask_b32 v%d, v%d, v%d, vcc" % (T, T + 3, T + 4, v_idx, T + 3, T + 4))
    A("v_lshl_add_u32 v%d, v%d, 3, v%d\nv_lshlrev_b32 v%d, 4, v%d" % (T + 5, T + 1, T + 2, T + 5, T + 5))
    A("v_add_u32 v%d, %d, v%d\ns_lshl_b32 s%d, s%d, 9\nv_add_u32 v%d, s%d, v%d" % (v_ord, L_O, T + 5, s_t0, s_w, v_xo, s_t0, v_l8))
    if x16: A("v_lshrrev_b32 v%d, 1, v%d" % (v_xo, v_xo))
    A("s_lshl_b32 s%d, s%d, 8\ns_cmp_lt_u32 s%d, 2\ns_cselect_b32 s%d, s%d, 0x%x\ns_lshl_b32 s%d, s%d, 9\ns_add_u32 s%d, s%d, s%d" % (s_t1, s_w, s_w, s_t1, s_t1, OOB, s_t0, s_i, s_t0, s_t0, s_t1))
    A("v_mov_b32 v%d, 0x%x\nv_lshrrev_b32 v%d, 5, v%d\nv_lshl_add_u32 v%d, v%d, 3, v%d\nv_lshlrev_b32 v%d, 4, v%d" % (T + 7, OOB, T + 6, v_lane, T + 6, T + 6, T + 2, T + 6, T + 6))
    A("v_bfe_u32 v%d, v%d, 4, 1\nv_lshl_add_u32 v%d, v%d, 3, v%d\nv_add_u32 v%d, s%d, v%d\nv_bfe_u32 v%d, v%d, 3, 1\nv_lshl_add_u32 v%d, v%d, 2, v%d" % (T + 8, v_lane, T + 6, T + 8, T + 6, T + 6, s_t0, T + 6, T + 8, v_lane, v_pst, T + 8, T + 6))
    A("s_lshl_b32 s%d, s%d, 9\ns_add_u32 s%d, s%d, %d" % (s_t0, s_w, s_t0, s_t0, L_O))
    A("v_and_b32 v%d, 5, v%d\nv_bfe_u32 v%d, v%d, 3, 1\nv_lshl_add_u32 v%d, v%d, 1, v%d\nv_lshl_add_u32 v%d, v%d, 3, v%d" % (T + 6, v_lane, T + 7, v_lane, T + 6, T + 7, T + 6, T + 6, T + 1, T + 6))
    A("v_lshl_add_u32 v%d, v%d, 4, s%d\nv_add_u32 v%d, %d, v%d\nv_and_b32 v%d, 2, v%d\nv_cmp_ne_u32 vcc, 0, v%d\ns_nop 1" % (T + 6, T + 6, s_t0, T + 7, L_DUM, v_l16, T + 8, v_lane, T + 8))
    A("v_cndmask_b32 v%d, v%d, v%d, vcc" % (v_owr, T + 7, T + 6))
    A("v_lshrrev_b32 v%d, 1, v%d\nv_lshl_add_u32 v%d, v%d, 4, v%d\nv_lshlrev_b32 v%d, 4, v%d" % (T + 3, T + 1, T + 3, T + 3, T, T + 3, T + 3))
    A("v_and_b32 v%d, 1, v%d\nv_lshl_add_u32 v%d, v%d, 3, v%d" % (T + 4, T + 1, v_i3st, T + 4, T + 3))
    A("v_lshlrev_b32 v%d, 4, v%d\nv_lshl_add_u32 v%d, v%d, 9, v%d" % (T + 3, T, v_i3l, T + 1, T + 3))
    A("v_lshlrev_b32 v%d, 5, v%d\nv_lshl_add_u32 v%d, v%d, 3, v%d" % (T + 3, T, T + 3, T + 1, T + 3))
    A("s_lshl_b32 s%d, s%d, 9\ns_add_u32 s%d, s%d, %d" % (s_t0, s_w, s_t0, s_t0, L_F))
    A("v_add_u32 v%d, s%d, v%d\nv_xor_b32 v%d, 2048, v%d" % (v_fown, s_t0, T + 3, v_fpar, v_fown))
    A("s_lshl_b32 s%d, s%d, 1\ns_add_u32 s%d, s%d, s%d\nv_mov_b32 v%d, 0x%x" % (s_t0, s_i, s_t0, s_t0, s_w, v_flag, OOB))
    for k in range(nrep): A("v_writelane_b32 v%d, s%d, %d\ns_add_u32 s%d, s%d, 256" % (v_flag, s_t0, k, s_t0, s_t0))
    A("s_cmp_lt_u32 s%d, 2\ns_cbranch_scc1 L_c_fl01\ns_and_b32 s%d, s%d, %d\ns_lshl_b32 s%d, s%d, 8\nv_lshl_add_u32 v%d, v%d, 2, s%d\nL_c_fl01:" % (s_w, s_t0, s_i, nrep - 1, s_t0, s_t0, v_flag, v_lane, s_t0))
    A("s_mul_i32 s%d, s%d, 24576\ns_add_u32 s%d, s%d, %d\nv_add_u32 v%d, s%d, v%d" % (s_t0, s_w, s_t0, s_t0, L_WO, v_word, s_t0, v_l16))
    A("v_mov_b32 v%d, 0x3f80\nv_mov_b32 v%d, 0x3f800000\nv_mov_b32 v%d, 0" % (T + 3, T + 4, T + 5))
    for q in range(4):
        A("v_cmp_eq_u32 vcc, %d, v%d\ns_nop 1\nv_cndmask_b32 v%d, v%d, v%d, vcc" % (2 * q, T + 2, v_sel + q, T + 5, T + 3))
        A("v_cmp_eq_u32 vcc, %d, v%d\ns_nop 1\nv_cndmask_b32 v%d, v%d, v%d, vcc" % (2 * q + 1, T + 2, v_sel + q, v_sel + q, T + 4))
    A("s_lshl_b32 s%d, s%d, 5\ns_add_u32 s%d, s%d, s%d" % (s_t0, s_x, s_t0, s_t0, s_i))
    A("s_lshl_b32 s%d, s%d, 2\ns_add_u32 s%d, s%d, s%d\ns_lshl_b32 s%d, s%d, 11\ns_xor_b32 s%d, s%d, 8192" % (s_t1, s_t0, s_t1, s_t1, s_w, o_qk_own, s_t1, o_qk_par, o_qk_own))
    A("s_lshr_b32 s%d, s%d, 1\ns_lshl_b32 s%d, s%d, 14\ns_lshl_b32 s%d, s%d, 12\ns_add_u32 s%d, s%d, s%d\ns_add_u32 s%d, s%d, %d" % (s_t1, s_t0, s_t1, s_t1, s_t2, s_b, s_t1, s_t1, s_t2, b_x, s_t1, PRB))
    A("s_lshl_b32 s%d, s%d, 7\ns_add_u32 s%d, s%d, %d" % (s_prog, s_t0, s_prog, s_prog, PROG))
    A("s_lshl_b32 s%d, s%d, 2\ns_add_u32 s%d, s%d, s%d\ns_lshl_b32 s%d, s%d, 6" % (s_t1, s_b, s_t1, s_t1, s_w, s_t1, s_t1))
    A("s_lshr_b32 s%d, s%d, 1\ns_add_u32 s%d, s%d, s%d\ns_lshl_b32 s%d, s%d, 9" % (s_t2, s_i, s_t1, s_t1, s_t2, s_t1, s_t1))
    A("s_lshl_b32 s%d, s%d, 18\ns_add_u32 s%d, s%d, %d\ns_add_u32 s%d, s%d, s%d" % (s_t2, s_x, s_t2, s_t2, R_I32, o_i3st, s_t1, s_t2))
    for u in range(1, 4): A("s_add_u32 s%d, s%d, %d" % (o_i3st + u, o_i3st, u * 8192))
    A("s_lshl_b32 s%d, s%d, 13\ns_add_u32 s%d, s%d, s%d\ns_lshl_b32 s%d, s%d, 8\ns_add_u32 s%d, s%d, s%d\ns_add_u32 s%d, s%d, 4096" % (s_t1, s_i, s_t3, s_t1, s_t2, s_t1, s_w, o_i3ld, s_t3, s_t1, o_i3ld2, o_i3ld))
    A("s_lshl_b32 s%d, s%d, 12\ns_add_u32 s%d, s%d, %d" % (s_tagl, s_x, s_tagl, s_tagl, PFL))
    if stamps: A("s_memtime s[56:57]\ns_waitcnt lgkmcnt(0)\ns_sub_u32 s89, s56, s94")
    for k in range(4): A("v_mov_b32 v%d, 0\nv_mov_b32 v%d, -1" % (64 + k, 68 + k))
    A("v_mov_b64 v[72:73], s[%d:%d]" % (s_sent, s_sent + 1))
    A("s_lshl_b32 s%d, s%d, 11\ns_add_u32 s%d, s%d, s%d" % (s_t1, s_w, s_t3, s_t3, s_t1))
    ninit = 0
    for sl in range(2):
        A("s_add_u32 s%d, s%d, %d\ns_add_u32 s%d, s%d, %d" % (s_t0, o_qk_own, RING + sl * SLOT, s_t1, s_t3, RING + sl * SLOT))
        for k in range(2):
            A("buffer_store_dwordx4 v[64:67], v%d, %s, s%d offen offset:%d\nbuffer_store_dwordx4 v[68:71], v%d, %s, s%d offen offset:%d" % (v_l16, WS, s_t0, k * 1024, v_l16, WS, s_t1, k * 1024))
        A("s_lshl_b32 s%d, s%d, 14\ns_add_u32 s%d, s%d, %d\nbuffer_store_dword v72, v%d, %s, s%d offen" % (s_t0, s_x, s_t0, s_t0, PBUF + sl * 262144, v_pst, WS, s_t0))
        A("s_lshr_b32 s%d, s%d, 2\ns_add_u32 s%d, s%d, %d\nbuffer_store_dwordx2 v[72:73], v%d, %s, s%d offen" % (s_t0, o_qk_own, s_t0, s_t0, PBUF + sl * 262144 + 131072, v_l8, WS, s_t0))
        ninit += 6
    A("s_lshr_b32 s%d, s%d, 1\ns_lshl_b32 s%d, s%d, 19\ns_and_b32 s%d, s%d, 1\ns_lshl_b32 s%d, s%d, 13\ns_add_u32 s%d, s%d, s%d\ns_add_u32 s%d, s%d, s%d" % (
        s_t0, s_w, s_t0, s_t0, s_t1, s_w, s_t1, s_t1, s_t0, s_t0, s_t1, s_t0, s_t0, b_x))
    A("buffer_store_dwordx4 v[68:71], v%d, %s, s%d offen sc1\nbuffer_store_byte v64, v%d, %s, s%d offen" % (v_l16, WS, s_t0, v_flag, WS, s_tagl))
    ninit += 2
    T = 40
    def wait_kv(tag, off):
        A("v_mov_b32 v40, 0\nL_c_kw%s:" % tag)
        A("buffer_load_dword v41, v40, %s, s%d offen sc1" % (WS, off))
        A("s_sub_u32 s%d, s%d, 1\ns_cbranch_scc1 L_c_fail\ns_waitcnt vmcnt(0)" % (s_spin, s_spin))
        A("v_and_b32 v41, 15, v41\nv_cmp_ne_u32 vcc, 8, v41\ns_cbranch_vccnz L_c_kw%s" % tag)
    def signal(val):
        A("v_mov_b32 v40, 0\nv_mov_b32 v41, %s\ns_mov_b64 exec, 1\nbuffer_store_dword v41, v40, %s, s%d offen sc1\ns_mov_b64 exec, -1" % (val, WS, s_prog))
    def kv_ld(js, off=o_kv): return ["buffer_load_dwordx4 v%d, %s, s%d offen offset:%d sc1 lds" % (v_l16, WS, off, j * 1024) for j in js]
    kv_flip = "s_xor_b32 s%d, s%d, %d" % (m_kv, m_kv, L_KV0 ^ L_KV1)
    gate_ld = "s_mov_b64 exec, 3\nbuffer_load_dword v74, v75, s[16:19], 0 offen sc1\ns_mov_b64 exec, -1"
    def after12():
        A("s_mov_b32 s%d, %d\nv_lshlrev_b32 v75, 7, v%d\nv_add_u32 v75, 64, v75\n" % (s_spin, SPIN, v_lane) + gate_ld)
    def after13():
        A("s_load_dwordx2 s[48:49], s[0:1], 8")
        A("L_c_w:\nv_readlane_b32 s%d, v74, 0\nv_readlane_b32 s%d, v74, 1\ns_and_b32 s%d, s%d, 0xffff\ns_cmp_lt_u32 s%d, 68\ns_cselect_b32 s%d, 0, s%d\ns_cmp_ge_u32 s%d, %d\ns_cbranch_scc1 L_c_wd" % (
            s_t0, s_t3, s_t1, s_t3, s_t0, s_t1, s_t1, s_t1, NVOTE))
        A(gate_ld + "\ns_sub_u32 s%d, s%d, 1\ns_cbranch_scc1 L_c_fail\ns_waitcnt vmcnt(0)\ns_branch L_c_w\nL_c_wd:" % (s_spin, s_spin))
        A("s_lshr_b32 s%d, s%d, 16\ns_cmp_ge_u32 s%d, %d\ns_cselect_b32 s%d, 8192, 0\ns_waitcnt lgkmcnt(0)" % (s_t3, s_t3, s_t3, NVOTE // 2, s_t3))
        srd(a, S_W, 48, 49, 16384)
        A("v_and_b32 v72, 7, v%d\nv_lshlrev_b32 v72, 11, v72\nv_lshrrev_b32 v73, 4, v%d\nv_lshl_add_u32 v72, v73, 3, v72" % (v_lane, v_lane))
        A("s_lshl_b32 s%d, s%d, 6\ns_and_b32 s%d, s%d, 1\ns_lshl_b32 s%d, s%d, 5\ns_add_u32 s%d, s%d, s%d" % (s_t0, s_i, s_t1, s_w, s_t1, s_t1, s_t0, s_t0, s_t1))
        A("buffer_load_dwordx2 v[76:77], v72, s[12:15], s%d offen" % s_t0)
        if touch:
            A("s_mul_i32 s%d, s%d, 1792\ns_add_u32 s%d, s%d, s%d" % (s_t2, s_w, s_t2, s_t2, o_i3ld))
            for sl in range(2):
                A("s_add_u32 s%d, s%d, %d\ns_add_u32 s%d, s%d, %d" % (s_t0, o_qk_own, RING + sl * SLOT, s_t1, s_t2, RING + sl * SLOT))
                A("buffer_load_dwordx2 v[64:65], v%d, %s, s%d offen offset:1024 sc1" % (v_l8, WS, s_t0))
                for k in range(2): A("buffer_load_dwordx4 v[64:67], v%d, %s, s%d offen offset:%d sc1" % (v_l16, WS, s_t1, k * 1024))
            for sl in range(4):
                A("s_lshl_b32 s%d, s%d, 14\ns_add_u32 s%d, s%d, %d\nbuffer_load_dword v64, v%d, %s, s%d offen sc1" % (s_t0, s_x, s_t0, s_t0, PBUF + sl * 262144, v_pst, WS, s_t0))
                A("s_lshr_b32 s%d, s%d, 2\ns_add_u32 s%d, s%d, %d\nbuffer_load_dwordx2 v[64:65], v%d, %s, s%d offen sc1" % (s_t0, o_qk_own, s_t0, s_t0, PBUF + sl * 262144 + 131072, v_l8, WS, s_t0))
            A("buffer_load_ubyte v64, v%d, %s, s%d offen sc1" % (v_flag, WS, s_tagl))
            if tlb != 1: A("v_lshlrev_b32 v70, 21, v%d\ns_mov_b32 s%d, %d\ns_mov_b32 exec_hi, 0xffff\nbuffer_load_dword v64, v70, %s, s%d offen sc1\ns_mov_b32 exec_hi, -1" % (v_lane, s_t0, KX - 128, WS, s_t0))
        A("s_lshr_b32 s%d, s%d, 1\ns_lshl_b32 s%d, s%d, 7\ns_add_u32 s%d, s%d, %d\nv_mov_b32 v73, 0\nbuffer_load_dword v74, v73, %s, s%d offen sc1" % (s_t0, s_h, s_t0, s_t0, s_t0, s_t0, FLAGS + 128 * C_HP, WS, s_t0))
    def after14():
        A("s_add_u32 s%d, s%d, s%d\ns_add_u32 s%d, s%d, s%d" % (b_x, b_x, s_t3, s_prog, s_prog, s_t3))
        A("s_lshr_b32 s%d, s%d, 1\ns_lshl_b32 s%d, s%d, 7\ns_add_u32 s%d, s%d, %d" % (s_t0, s_h, s_cnt, s_t0, s_cnt, s_cnt, FLAGS + 128 * C_HP))
        A("s_lshl_b32 s%d, s%d, 14\ns_and_b32 s%d, s%d, 1\ns_lshl_b32 s%d, s%d, 12\ns_add_u32 s%d, s%d, s%d" % (s_t0, s_t0, s_t2, s_h, s_t2, s_t2, s_t0, s_t0, s_t2))
        A("s_lshl_b32 s%d, s%d, 18\ns_add_u32 s%d, s%d, s%d\ns_add_u32 s%d, s%d, %d" % (s_t2, s_w, s_t2, s_t2, s_t0, s_t2, s_t2, KX))
        A("s_lshl_b32 s%d, s%d, 14\ns_lshl_b32 s%d, s%d, 12\ns_add_u32 s%d, s%d, s%d\ns_add_u32 s%d, s%d, %d" % (s_t0, s_h, s_t1, s_w, b_kv, s_t0, s_t1, b_kv, b_kv, VT - 8192))
        A("s_cmp_lt_u32 s%d, 2\ns_cselect_b32 s%d, s%d, s%d\ns_add_u32 s%d, s%d, s%d\ns_add_u32 s%d, s%d, %d" % (s_w, b_kv, s_t2, b_kv, b_kv, b_kv, s_t3, m_kv, s_t1, L_KV0))
        A("s_lshl_b32 s%d, s%d, 2\ns_add_u32 s%d, s%d, s%d\ns_lshl_b32 s%d, s%d, 10" % (s_vt, s_b, s_vt, s_vt, s_w, s_vt, s_vt))
        A("s_lshr_b32 s%d, s%d, 1\ns_add_u32 s%d, s%d, s%d\ns_add_u32 s%d, s%d, s%d\ns_add_u32 s%d, s%d, %d" % (s_t1, s_vt, b_km, s_t0, s_t1, b_km, b_km, s_t3, b_km, b_km, KM))
        A("s_lshl_b32 s%d, s%d, 14\ns_add_u32 s%d, s%d, %d" % (b_p, s_x, b_p, b_p, PBUF))
        A("s_add_u32 s%d, s%d, %d\nv_add_u32 v%d, s%d, v%d" % (s_t0, s_vt, L_KV0, v_avx, s_t0, v_l16))
        A("s_lshl_b32 s%d, s%d, 11\ns_sub_u32 s%d, s%d, s%d" % (s_t0, s_b, s_vt, s_vt, s_t0))
        if stamps: A("s_memtime s[56:57]\ns_waitcnt lgkmcnt(0)\ns_sub_u32 s86, s56, s94")
        A("L_c_k0:\nv_and_b32 v74, 15, v74\nv_cmp_ne_u32 vcc, 8, v74\ns_cbranch_vccz L_c_k1")
        A("buffer_load_dword v74, v73, %s, s%d offen sc1\ns_sub_u32 s%d, s%d, 1\ns_cbranch_scc1 L_c_fail\ns_waitcnt vmcnt(0)\ns_branch L_c_k0\nL_c_k1:" % (WS, s_cnt, s_spin, s_spin))
        if stamps: A("s_memtime s[56:57]\ns_waitcnt lgkmcnt(0)\ns_sub_u32 s87, s56, s94")
        for x in ["s_mov_b32 m0, s%d" % m_kv, kv_flip] + kv_ld(range(4), b_kv): A(x)
    nxt_after = {0: [5], 1: [6], 2: [7], 3: [8], 4: [9], 5: [10], 6: [11], 8: [12], 9: [13], 12: [14], 13: [15]}
    if lag2: nxt_after = {k: [k + 2] for k in range(14)}
    for ci in range(16):
        extra[0] = ninit if ci < n0 else 4 if ci == 15 else 0
        consume(ci)
        if stamps and ci in (0, 3, 7, 11, 15): A("s_memtime s[56:57]\ns_waitcnt lgkmcnt(0)\ns_sub_u32 s%d, s56, s94" % (81 + (ci + 1) // 4))
        if ci == 3: dstamp(14)
        if ci == n0:
            A("s_cmp_lg_u32 s%d, 0\ns_cbranch_scc1 L_c_nog\nv_mov_b32 v64, 1\nv_mov_b32 v65, 64\ns_mov_b64 exec, 1\nbuffer_atomic_add v64, v65, s[16:19], 0 offen\ns_mov_b64 exec, -1\nL_c_nog:" % s_w)
        if ci in (12, 13, 14): (after12, after13, after14)[ci - 12]()
        for n in nxt_after.get(ci, []):
            assert n == issued
            issue(n); issued += 1
        if lag2 and 4 <= ci < 10:
            assert worder[0] == "o"
            for fr in range(2 * (ci - 4), 2 * (ci - 4) + 2):
                for hf in range(2):
                    A("ds_write_b128 v%d, %s offset:%d" % (v_word, r4(V_WV + fr * 8 + 4 * hf), fr * 2048 + hf * 1024))
        if lag2 and ci == 10:
            for k in range(0, 32, 2): A("v_mov_b64 %s, %s" % (r2(V_WO + k), r2(V_WV + 96 + k)))
        if ci == 11 and not lag2:
            for fr in range(12):
                for hf in range(2):
                    A("ds_write_b128 v%d, %s offset:%d" % (v_word, r4(V_WV + fr * 8 + 4 * hf), fr * 2048 + hf * 1024))
            for k in range(32): A("v_mov_b32 v%d, v%d" % (V_WO + k, V_WV + 96 + k))
            A("s_waitcnt lgkmcnt(0)")
    A("s_sleep 100\n" * dlyw)
    J1 = list(range(kvw[0])); J2 = list(range(kvw[0], 4))
    if nokv: J1 = J2 = []
    RD = 60
    for k in range(2): A("v_lshlrev_b32 v%d, 16, v%d\nv_and_b32 v%d, 0xffff0000, v%d" % (RD + 2 * k, 76 + k, RD + 2 * k + 1, 76 + k))
    A("s_mov_b32 s14, %d\ns_mov_b32 s15, 0x00020000\ns_mov_b32 s%d, 0\ns_mov_b32 s50, 0x3f803f80\ns_mov_b32 s51, 0x3f803f80" % (SLOT, s_step))
    def seg_off(dst, base, delta):
        A("s_add_u32 s%d, s%d, %d\ns_lshl_b32 s%d, s%d, 11\ns_and_b32 s%d, s%d, 8192\ns_xor_b32 s%d, s%d, s%d\ns_lshl_b32 s%d, s%d, 19\ns_add_u32 s%d, s%d, s%d" % (
            s_t0, s_step, delta, s_t1, s_t0, s_t1, s_t1, s_t1, s_t1, base, s_t0, s_t0, dst, s_t0, s_t1))
    def book():
        A("s_and_b32 s%d, s%d, 3\ns_lshl_b32 s%d, s%d, 18\ns_add_u32 s%d, s%d, s%d\ns_xor_b32 s%d, s%d, 524288" % (s_t0, s_step, s_t1, s_t0, o_pl, s_t1, b_p, o_pp, o_pl))
        A("s_lshr_b32 s%d, s%d, 2\ns_add_u32 s%d, s%d, s%d\ns_add_u32 s%d, s%d, %d\ns_xor_b32 s%d, s%d, 2048" % (o_qs, o_qk_own, o_qs, o_qs, s_t1, o_qs, o_qs, PBUF + 131072, o_qr, o_qs))
        A("s_lshl_b32 s%d, s%d, 10\ns_add_u32 s%d, s%d, s%d\ns_lshr_b32 s%d, s%d, 1\ns_add_u32 s%d, s%d, 1" % (s_t1, s_w, o_plf, o_pl, s_t1, s_en, s_t0, s_tag, s_step))
        A("s_and_b32 s%d, s%d, 1\ns_lshl_b32 s%d, s%d, 19\ns_add_u32 s%d, s%d, s%d" % (s_t0, s_step, s_t1, s_t0, o_xs, s_t1, b_x))
        A("s_lshl_b32 s%d, s%d, 20\ns_add_u32 s%d, s%d, %d\ns_add_u32 s12, s8, s%d\ns_addc_u32 s13, s9, 0" % (s_t0, s_t0, s_t0, s_t0, RING, s_t0))
        seg_off(o_km, b_km, 0); seg_off(o_kv, b_kv, 1)
    def prep():
        A("v_subrev_u32 v45, s%d, v%d\nv_xor_b32 v44, 2048, v45" % (s_vt, v_avx))
        for k in range(8): A("ds_read_b128 %s, v%d offset:%d" % (r4(64 + 4 * k), 44 if k & 2 else 45, (k >> 2) * 4096 + (k & 1) * 1024))
        A("v_mov_b32 v%d, s%d" % (M + 3, s_tag))
        for k in range(6): A(z(v_aq + 2 * k))
    ppoison = ["v_mov_b64 v[40:41], s[%d:%d]" % (s_sent, s_sent + 1), "buffer_store_dword v40, v%d, %s, s%d offen" % (v_pst, WS, o_pp),
               "s_xor_b32 s%d, s%d, 524288" % (s_t0, o_qs), "buffer_store_dwordx2 v[40:41], v%d, %s, s%d offen" % (v_l8, WS, s_t0)]
    book()
    A("v_mov_b64 v[20:21], v[122:123]"); dstamp(10); A("s_nop 4\nv_mov_b64 v[122:123], v[20:21]")
    A("s_waitcnt vmcnt(0)\ns_barrier")
    if stamps:
        A("s_memtime s[56:57]\ns_memrealtime s[58:59]")
        for k in range(4): A("s_mov_b32 s%d, 0" % (96 + k))
        A("s_waitcnt lgkmcnt(0)")
    AR = 40; NR = 6
    def smf(m, f): A("v_smfmac_f32_16x16x64_bf16 %s, %s, %s, v%d" % (r4((v_aq, v_ak, v_av)[m]), r4(AR + 4 * (f % NR)), wtile(m, f % 16), v_idx))
    def qrd(lq, f): lq.op("ds_read_b128 %s, v%d offset:%d" % (r4(AR + 4 * (f % NR)), v_l16, L_PL + (f % 16) * 1024), ("A", f))
    def fetch_pre(): A("s_lshl_b32 m0, s%d, 10\ns_mov_b32 s%d, s%d" % (s_w, s_t1, o_plf))
    def fetch():
        for j in range(4):
            A("buffer_load_dwordx4 v%d, %s, s%d offen sc1 lds" % (v_l16, WS, s_t1))
            if j < 3: A("s_add_u32 m0, m0, 4096\ns_add_u32 s%d, s%d, 4096" % (s_t1, s_t1))
    A("s_cmp_ge_u32 s%d, 2\ns_cbranch_scc1 L_c_idle3" % s_w)
    prep()
    for x in ppoison: A(x)
    HM = "s[90:91]"
    A("s_mov_b32 s90, 0xff00ff00\ns_mov_b32 s91, 0xff00ff00")
    A("v_cndmask_b32 v20, v60, v62, %s\nv_cndmask_b32 v21, v61, v63, %s\nv_cvt_pk_bf16_f32 v46, v20, v21" % (HM, HM))
    A("L_c_xok:")
    A("buffer_store_dword v46, v%d, %s, s%d offen" % (v_pst, WS, o_pl))
    A("buffer_store_byte v%d, v%d, %s, s%d offen" % (M + 3, v_flag, WS, s_tagl))
    stamp(1)
    A("L_c_b0:")
    if pbar: A("s_barrier")
    if stamps == 3:
        A("s_waitcnt lgkmcnt(0)")
        A("s_mul_i32 s%d, s%d, 64\ns_add_u32 s%d, s%d, %d\ns_cmp_lg_u32 s%d, %d\ns_cselect_b32 s%d, %d, s%d\nv_mov_b32 v60, s%d" % (
            s_t0, s_step, s_t0, s_t0, L_TR, s_w, tw, s_t0, L_DUM, s_t0, s_t0))
        for k in range(14):
            A("v_mov_b32 v61, s%d\nds_write_b32 v60, v61 offset:%d" % (60 + 2 * k if k < 10 else 86 + k, 4 * k))
    fetch_pre()
    A("L_c_b0x:")
    A("s_barrier")
    if f16: A("s_mov_b64 exec, -1")
    stamp(9)
    if stamps == 3: A("s_memrealtime s[64:65]")
    fetch()
    A("s_mov_b32 m0, s%d\ns_mov_b32 s%d, s%d\ns_waitcnt vmcnt(3) lgkmcnt(0)" % (m_kv, s_e, s_en))
    A("L_c_b1:")
    A("s_barrier")
    stamp(0)
    lq = LQ(a)
    for f in range(4): qrd(lq, f)
    slow = kv_ld(J1); nj = 0; rdn = 4
    for f in range(11):
        lq.need(("A", f)); smf(0, f)
        while rdn <= min(f + NR - 1, 15) and f > 0:
            if rdn % 4 == 0: A("s_waitcnt vmcnt(%d)\ns_barrier" % (3 - rdn // 4 + nj))
            qrd(lq, rdn); rdn += 1
        smf(1, f)
        if f < nv0: smf(2, f)
        if slow and f in spos:
            A(slow.pop(0)); nj += 1
    assert not slow
    for f in range(11, 16):
        lq.need(("A", f)); smf(0, f)
    VS = list(range(nv0, 11))
    slot = lambda k: AR + 4 * ((10 + k) % NR)
    def vrd(k): lq.op("ds_read_b128 %s, v%d offset:%d" % (r4(slot(k)), v_l16, L_PL + VS[k] * 1024), ("V", k))
    smf(1, 11); vrd(0); nop(a, 1); smf(1, 12); nop(a, 2); smf(1, 13); nop(a, 1)
    A("v_permlane32_swap_b32 v28, v30")
    smf(1, 14)
    A("v_permlane32_swap_b32 v29, v31")
    smf(1, 15)
    A("v_add_f32 v28, v28, v30\nv_add_f32 v29, v29, v31")
    smf(2, 11)
    A("v_cmp_u_f32 vcc, v28, v29\nv_cvt_pk_bf16_f32 v%d, v28, v29" % (KMP + 1))
    vrd(1)
    A("v_mov_b64 %s, s[%d:%d]\ns_nop 0" % (r2(M), s_sent, s_sent + 1))
    A("v_permlane32_swap_b32 v32, v34\nv_permlane32_swap_b32 v33, v35")
    A("v_pk_add_f32 v[32:33], v[32:33], v[34:35]\nv_cvt_pk_bf16_f32 v%d, v32, v33" % KMP)
    A("s_cbranch_vccnz L_c_nanq\nL_c_qok:")
    A("buffer_store_dwordx2 %s, v%d, %s, s%d offen" % (r2(KMP), v_l8, WS, o_qs))
    stamp(3)
    lq.op("ds_write_b64 v%d, %s" % (v_fown, r2(KMP)), "fw")
    MK = "s[4:5]"
    chk = lambda r: "v_cmp_eq_u32 vcc, s%d, v%d\nv_cmp_eq_u32 %s, s%d, v%d\ns_or_b64 vcc, vcc, %s" % (s_sent, r, MK, s_sent, r + 1, MK)
    ldq = lambda r: "buffer_load_dwordx2 %s, v%d, %s, s%d offen sc1" % (r2(r), v_l8, WS, o_qr)
    FR = [32, 20, 40, 44]
    def frd(kp):
        for hf in range(2): lq.op("ds_read_b64_tr_b16 %s, v%d offset:%d" % (r2(FR[kp] + 2 * hf), v_l8, L_F + kp * 1024 + hf * 512), ("F", kp))
    n = 0
    def vside():
        nonlocal n
        n += 1
        if n in pq: A(ldq([28, 30][pq.index(n)] if pq.index(n) < 2 else M))
    for f in range(12, 16):
        smf(2, f); vrd(f - 10); vside()
    nb = len(VS) - 5
    for k in range(len(VS)):
        if k % 2 == 0: lq.need(("V", min(k + 1, len(VS) - 1)))
        A("v_smfmac_f32_16x16x64_bf16 %s, %s, %s, v%d" % (r4(v_av), r4(slot(k)), wtile(2, VS[k]), v_idx))
        if k + 6 < len(VS): vrd(k + 6)
        if k == nb - 1:
            lq.need("fw"); A("s_barrier")
        if k in (nb, nb + 1): frd(k - nb)
        vside()
    stamp("v1")
    Tm, T0, T1 = 52, 48, 56
    def smma(kp, side):
        lq.need(("F", kp))
        F = r4(FR[kp])
        for j, (D, Aop) in enumerate(((Tm, F), (T0, r4(64 + 4 * kp)), (T1, r4(80 + 4 * kp)))):
            A("v_mfma_f32_16x16x32_bf16 %s, %s, %s, %s" % (r4(D), Aop, F, "0" if kp == 0 else r4(D)))
            for x in side.get(j, []):
                if isinstance(x, tuple): lq.op(*x)
                else: A(x)
    late = [f for f in pq if f > n]
    assert len(late) <= 1
    vpost = ["v_permlane32_swap_b32 v36, v38", "v_permlane32_swap_b32 v37, v39", "v_pk_add_f32 v[36:37], v[36:37], v[38:39]",
             "v_cvt_pk_bf16_f32 v%d, v36, v37" % (M + 2), "buffer_store_dwordx2 %s, v%d, %s, s%d offen offset:1024" % (r2(M + 2), v_l8, CUR, o_qk_own)]
    s0 = lambda: smma(0, {0: ["v_xor_b32 v60, 4096, v%d" % v_avx], 1: [ldq(M)] if late else []})
    if s1late < 2: s0()
    else: assert not late
    vb = 0
    if not s1late:
        if vsplit < 0:
            smma(1, {1: vpost[:1], 2: vpost[1:]}); vpost = []; vb = 1
        else: smma(1, {})
    stamp("ve")
    A("s_waitcnt vmcnt(%d)\nds_write_b64 v%d, v[28:29]\n" % (len(pq) - 1 + vb, v_fpar) + chk(28) + "\ns_cbranch_vccnz L_c_qretry")
    A("L_c_qgot:")
    stamp("qg")
    if s1late:
        lq.q.append(None)
        if s1late == 2: s0()
        smma(1, {})
    for x in vpost[:vsplit]: A(x)
    stamp("vp")
    lq.all()
    A("s_barrier")
    stamp(4)
    lq = LQ(a)
    frd(2); frd(3)
    for x in vpost[vsplit:]: A(x)
    A("s_cmp_eq_u32 s%d, %d\nv_mov_b32 v%d, v%d\nv_mov_b64 v[36:37], %s" % (s_step, nsteps - 1, KMP + 1, M + 2, r2(M + 2)))
    smma(2, {0: ["v_mov_b64 v[20:21], s[50:51]"], 1: ["v_mov_b64 v[22:23], s[50:51]"]})
    smma(3, {0: [("ds_read_b128 v[40:43], v%d offset:8192" % v_avx, "vx")]})
    BUF = [64, 72, 80, 88, 56]
    def word(fr, buf):
        for hf in range(2): lq.op("ds_read_b128 %s, v%d offset:%d" % (r4(BUF[buf] + 4 * hf), v_word, fr * 2048 + hf * 1024), ("W", fr))
    stamp("se")
    A("s_cbranch_scc1 L_c_last")
    lq.op("ds_read_b128 v[44:47], v60 offset:8192", "vx")
    word(0, 0)
    A("s_waitcnt vmcnt(%d)\nv_mov_b32 v29, 0\nv_mov_b64 v[30:31], 0" % (len(pq) - 1))
    A("v_max3_f32 v61, v52, v53, v48\nv_max3_f32 v62, v49, v50, v51")
    A("v_max3_f32 v61, v56, v57, v61\nv_max3_f32 v62, v58, v59, v62\nv_max_f32 v61, v61, v62")
    A("v_mov_b32 v62, v61")
    word(1, 1)
    A("v_permlane32_swap_b32 v61, v62\nv_max_f32 v61, v61, v62")
    A("v_mov_b32 v62, v61")
    ldv = lambda r: "buffer_load_dwordx2 %s, v%d, %s, s%d offen offset:1024 sc1" % (r2(r), v_l8, CUR, o_qk_par)
    if vpos == 0: A(ldv(38) + "\ns_nop 0")
    else: word(2, 2)
    A("v_permlane16_swap_b32 v61, v62\nv_max_f32 v61, v61, v62")
    A("v_mul_f32 v61, s%d, v61" % s_scale)
    stamp("mx")
    if vpos == 1: A(ldv(38))
    regs = [48, 49, 50, 51, 56, 57, 58, 59]
    for r in regs: A("v_fma_f32 v%d, v%d, s%d, -v61" % (r, r, s_scale))
    for r in regs: A("v_exp_f32 v%d, v%d" % (r, r))
    A("v_fma_f32 v52, v52, s%d, -v61" % s_scale)
    A("v_cvt_pk_bf16_f32 v32, v48, v49\nv_cvt_pk_bf16_f32 v33, v50, v51\nv_cvt_pk_bf16_f32 v34, v56, v57\nv_cvt_pk_bf16_f32 v35, v58, v59")
    A("v_fma_f32 v53, v53, s%d, -v61" % s_scale)
    lq.need("vx")
    LS, O0, O1 = 60, 56, 48
    stamp(5)
    A("v_mfma_f32_16x16x32_bf16 %s, %s, v[32:35], 0" % (r4(LS), r4(v_ones)))
    A("v_exp_f32 v52, v52")
    A("v_mfma_f32_16x16x32_bf16 %s, v[40:43], v[32:35], 0" % r4(O0))
    A("v_exp_f32 v53, v53")
    A("v_mfma_f32_16x16x32_bf16 %s, v[44:47], v[32:35], 0" % r4(O1))
    if v2: A(ldv(M))
    A("v_cvt_pk_bf16_f32 v28, v52, v53")
    A("s_waitcnt vmcnt(%d)\nv_cmp_ne_u32 vcc, s%d, v39" % (1 if v2 else 0, s_tag))
    A("v_mfma_f32_16x16x32_bf16 %s, %s, v[28:31], %s" % (r4(LS), r4(v_ones), r4(LS)))
    A("s_cbranch_vccnz L_c_vretry\nL_c_vok:")
    A("v_mfma_f32_16x16x32_bf16 %s, v[36:39], v[28:31], %s" % (r4(O0), r4(O0)))
    A("v_mfma_f32_16x16x32_bf16 %s, v[38:41], v[28:31], %s" % (r4(O1), r4(O1)))
    stamp("pv")
    ACC = [20, 32, 28, 36]
    if vpos == 0: word(2, 2)
    else: A(z(32) + "\n" + z(34))
    A(z(20) + "\n" + z(22) + "\nv_xor_b32 v%d, %d, v%d" % (v_avx, L_KV0 ^ L_KV1, v_avx))
    A("v_rcp_f32 v52, v%d" % LS)
    A(z(28))
    A("v_pk_mul_f32 v[56:57], v[56:57], v[52:53] op_sel_hi:[1,0]\nv_pk_mul_f32 v[58:59], v[58:59], v[52:53] op_sel_hi:[1,0]")
    A("v_pk_mul_f32 v[48:49], v[48:49], v[52:53] op_sel_hi:[1,0]\nv_pk_mul_f32 v[50:51], v[50:51], v[52:53] op_sel_hi:[1,0]")
    A("v_cvt_pk_bf16_f32 v44, v56, v57\nv_cvt_pk_bf16_f32 v45, v58, v59\nv_cvt_pk_bf16_f32 v46, v48, v49\nv_cvt_pk_bf16_f32 v47, v50, v51")
    lq.op("ds_write_b128 v%d, v[44:47]" % v_owr, "ow")
    stamp("ow")
    word(3, 3)
    word(4, 4)
    km_store = "buffer_store_dwordx2 %s, v%d, %s, s%d offen sc1" % (r2(KMP), v_l8, WS, o_km)
    nw2 = 0
    if not nokm:
        A(km_store); nw2 += 1
    A("\n".join(z(r) for r in ((32, 34, 38, 36) if vpos == 0 else (38, 36))))
    lq.need("ow")
    A("s_barrier")
    stamp(6)
    for k in range(4): lq.op("ds_read_b128 %s, v%d offset:%d" % (r4(40 + 4 * k), v_ord, k * 512), ("o", k))
    for x in kv_ld(J2): A(x)
    nw2 += len(J2)
    A(kv_flip + "\ns_add_u32 s%d, s%d, 1" % (s_step, s_step))
    def post(u):
        t = ACC[u]
        return ["v_cvt_pk_bf16_f32 v%d, v%d, v%d" % (t, t, t + 1), "v_cvt_pk_bf16_f32 v%d, v%d, v%d" % (t + 1, t + 2, t + 3),
                "v_and_or_b32 v%d, v%d, -2, s%d" % (t, t, s_e)] + (["v_and_or_b32 v%d, v%d, -2, s%d" % (t + 1, t + 1, s_e)] if rf else []) + [
                "buffer_store_dwordx2 %s, v%d, %s, s%d offen" % (r2(t), v_l8 if lin else v_i3st, CUR, o_i3st + u)]
    where = {k: k for k in range(5)}
    nxt = [5]
    def wmf(fr):
        u, kp = fr >> 2, fr & 3
        lq.need(("o", kp))
        if fr < 12: lq.need(("W", fr))
        B = r8(V_WO + 8 * (fr - 12)) if fr >= 12 else r8(BUF[where[fr]])
        A("v_smfmac_f32_16x16x64_bf16 %s, %s, %s, v%d" % (r4(ACC[u]), r4(40 + 4 * kp), B, v_idx))
        if fr < 12 and nxt[0] < 12:
            where[nxt[0]] = where[fr]; word(nxt[0], where[fr]); nxt[0] += 1
    for fr in (0, 1, 2, 3, 4, 12, 13, 14, 15): wmf(fr)
    for x in post(0): A(x)
    wmf(5); wmf(6)
    for x in post(3): A(x)
    for fr in (7, 8, 9, 10, 11): wmf(fr)
    A("s_cmp_ge_u32 s%d, 2" % s_w)
    for x in post(1): A(x)
    nop(a, 2 if rf else 3)
    for x in post(2): A(x)
    stamp(7)
    A("s_cbranch_scc1 L_c_idle")
    SETS = [64, 80]
    def rloads(st):
        for k in range(4): A("buffer_load_dwordx4 %s, v%d, %s, s%d offen offset:%d sc1" % (r4(SETS[st] + 4 * k), v_i3l, CUR, o_i3ld if k < 2 else o_i3ld2, (k & 1) * 2048))
    def rproc(st):
        for k in range(4):
            d = SETS[st] + 4 * k
            A("s_waitcnt vmcnt(%d)" % (4 * len(rg) - 1 - k))
            A("v_mfma_f32_16x16x32_bf16 %s, %s, %s, %s" % (r4(RD), r4(d), r4(v_sel), "0" if k == 0 else r4(RD)))
            A("v_bitop3_b32 v%d, v%d, v%d, s%d bitop3:0x7e" % (40 + k, d, d + 2, s_e))
            if k == 2: A("v_or3_b32 v40, v40, v41, v42")
        A("v_or_b32 v40, v40, v43\nv_and_b32 v40, 1, v40\nv_cmp_ne_u32 vcc, 0, v40")
        nop(a, 3)
    def spaced(work, gap):
        for _ in range(gap):
            if not work: break
            A(work.pop(0)); gap -= 1
        nop(a, gap)
    def grab(f):
        n0 = len(a.lines); f(); w = [x.strip() for x in a.lines[n0:]]; del a.lines[n0:]
        return w
    XP = [58, 56, 54, 52][:len(xg)]; NXP = len(XP)
    work = [z(r) for r in XP] + ["s_xor_b32 s%d, s%d, 262144" % (o_xr, o_xs)]
    if rf:
        D0 = SETS[0]
        def r4l():
            for k in range(4): A("buffer_load_dwordx4 %s, v%d, %s, s%d offen offset:%d sc1" % (r4(D0 + 4 * k), v_i3l, CUR, o_i3ld if k < 2 else o_i3ld2, (k & 1) * 2048))
        for g in rf[:-1]:
            spaced(work, g); r4l()
        for x in work: A(x)
        A("s_waitcnt vmcnt(%d)" % (4 * (len(rf) - 2)))
        A("L_c_rl:")
        for k in range(8):
            A("v_bitop3_b32 v%d, v%d, v%d, s%d bitop3:0x7e" % (40 + k, D0 + 2 * k, D0 + 2 * k + 1, s_e))
            if k & 1: A("v_mfma_f32_16x16x32_bf16 %s, %s, %s, %s" % (r4(RD), r4(D0 + 2 * k - 2), r4(v_sel), "0" if k == 1 else r4(RD)))
        A("v_or3_b32 v40, v40, v41, v42\nv_or3_b32 v43, v43, v44, v45\nv_or3_b32 v40, v40, v46, v47\nv_or_b32 v40, v40, v43\nv_and_b32 v40, 1, v40\nv_cmp_ne_u32 vcc, 0, v40\ns_nop 0")
        A("s_cbranch_vccnz L_c_r1")
    else:
        spaced(work, rg[0]); rloads(0); stamp("ri")
        if len(rg) > 1: spaced(work, rg[1]); rloads(1)
        rproc(0)
        A("s_cbranch_vccnz L_c_r1")
    A("L_c_rok:")
    A("v_cndmask_b32 v20, v60, v62, %s\nv_cndmask_b32 v21, v61, v63, %s" % (HM, HM))
    if x16:
        A("v_cvt_pk_bf16_f32 v22, v20, v21\nv_and_or_b32 v22, v22, -2, s%d\nbuffer_store_dword v22, v%d, %s, s%d offen sc1" % (s_e, v_xo, WS, o_xs))
    else:
        for k in range(2): A("v_and_or_b32 v%d, v%d, -2, s%d" % (20 + k, 20 + k, s_e))
        A("buffer_store_dwordx2 v[20:21], v%d, %s, s%d offen sc1" % (v_xo, WS, o_xs))
    stamp(8)
    xat = lambda r: "buffer_atomic_add_x2 %s, v%d, %s, s%d offen sc0" % (r2(XP[r]), v_xo, WS, o_xr)
    if x16: xat = lambda r: "buffer_atomic_add v%d, v%d, %s, s%d offen sc0" % (XP[r], v_xo, WS, o_xr)
    work = grab(book)
    order = []
    def spaced2(gap):
        for _ in range(gap):
            if not work: break
            x = work.pop(0)
            if x == "BAR": x = "s_waitcnt vmcnt(%d)\ns_barrier" % (len(order) + 1)
            A(x); gap -= 1
            if x.startswith("buffer_"): order.append("s")
        nop(a, gap)
    work += ["BAR"] + grab(prep) + ppoison
    for r in range(NXP):
        spaced2(xg[r]); A(xat(r)); order.append(r)
    spaced2(len(work))
    stamp("xw")
    def xuse(r):
        x = XP[r]
        k = order.index(r)
        A("s_waitcnt vmcnt(%d)" % (len(order) - 1 - k)); del order[:k + 1]
        if x16:
            A("v_and_b32 v42, 1, v%d\nv_cmp_ne_u32 vcc, s%d, v42\nv_and_b32 v%d, 0xffff0000, v%d\nv_lshlrev_b32 v%d, 16, v%d" % (x, s_e, x + 1, x, x, x))
        else: A("v_bitop3_b32 v42, v%d, v%d, s%d bitop3:0x7e\nv_and_b32 v42, 1, v42\nv_cmp_ne_u32 vcc, 0, v42" % (x, x + 1, s_e))
        A("v_pk_add_f32 v[48:49], v[20:21], %s\nv_cvt_pk_bf16_f32 v46, v48, v49\ns_cbranch_vccz L_c_xok" % r2(x))
    for r in range(NXP):
        xuse(r)
        cnt(2)
        if r >= xre:
            A(z(XP[r]) + "\n" + xat(r)); order.append(r)
    A("L_c_xl:")
    order[:] = [o for o in order if o != "s"]
    for r in range(xre, NXP):
        xuse(r)
        cnt(2)
        A(z(XP[r]) + "\n" + xat(r)); order.append(r)
    A("s_sub_u32 s%d, s%d, 1\ns_cbranch_scc0 L_c_xl\ns_branch L_c_fail" % (s_spin, s_spin))
    A("L_c_r1:")
    if rf:
        r4l(); cnt(0); nop(a, rf[-1])
        A("s_waitcnt vmcnt(24)\ns_sub_u32 s%d, s%d, 1\ns_cbranch_scc0 L_c_rl\ns_branch L_c_fail" % (s_spin, s_spin))
    for st in range(0 if rf else len(rg)):
        cnt(0)
        rloads(st)
        rproc((st + 1) % len(rg))
        A("s_cbranch_vccz L_c_rok")
    if not rf: A("s_sub_u32 s%d, s%d, 1\ns_cbranch_scc0 L_c_r1\ns_branch L_c_fail" % (s_spin, s_spin))
    A("L_c_idle:")
    book()
    A("s_waitcnt vmcnt(0)\ns_barrier")
    A("s_cmp_lg_u32 s%d, 3\ns_cbranch_scc1 L_c_idle3" % s_w)
    signal("s%d" % s_step)
    A("s_add_u32 s%d, s%d, 1\ns_and_b32 s%d, s%d, 7\ns_cbranch_scc1 L_c_idle3\ns_cmp_ge_u32 s%d, 64\ns_cbranch_scc1 L_c_idle3" % (s_t1, s_step, s_t0, s_t1, s_t1))
    A("s_lshl_b32 s%d, s%d, 8\ns_add_u32 s%d, s%d, s%d" % (s_t0, s_t1, s_t0, s_t0, s_cnt))
    wait_kv("n", s_t0)
    A("L_c_idle3:")
    prep()
    for x in (ppoison[0], ppoison[2], ppoison[3]): A(x)
    A("s_cmp_lg_u32 s%d, 2\ns_cbranch_scc1 L_c_b0" % s_w)
    fetch_pre()
    A("v_mov_b32 v46, 0")
    if f16: A("s_mul_i32 s%d, s%d, 0x01010101\ns_mov_b64 exec, 0xffff" % (s_t2, s_tag))
    if pbar: A("s_barrier")
    A("L_c_fp:")
    A("s_waitcnt vmcnt(%d)" % fdepth)
    for k in range(fun):
        A("buffer_load_dword v46, v%d, %s, s%d offen sc1" % (v_flag, WS, s_tagl))
        for _ in range(fchk): A("v_cmp_ne_u32 vcc, s%d, v46\ns_cbranch_vccz L_c_b0x" % s_t2)
    cnt(1)
    A("s_sub_u32 s%d, s%d, 1\ns_cbranch_scc0 L_c_fp\ns_branch L_c_fail" % (s_spin, s_spin))
    A("L_c_qretry:")
    A("s_waitcnt vmcnt(%d)\nds_write_b64 v%d, v[30:31]\n" % (len(pq) - 2 + vb, v_fpar) + chk(30) + "\ns_cbranch_vccz L_c_qgot")
    A("L_c_qr1:")
    A(ldq(M) + "\ns_waitcnt vmcnt(24)\n" + chk(M) + "\ns_cbranch_vccz L_c_qr2")
    cnt(3)
    A("s_sub_u32 s%d, s%d, 1\ns_cbranch_scc0 L_c_qr1\ns_branch L_c_fail" % (s_spin, s_spin))
    A("L_c_qr2:\nds_write_b64 v%d, %s\ns_branch L_c_qgot" % (v_fpar, r2(M)))
    A("L_c_vretry:")
    if v2:
        cnt(3)
        A("s_waitcnt vmcnt(0)\nv_mov_b64 v[38:39], v[16:17]\nv_cmp_ne_u32 vcc, s%d, v17\ns_cbranch_vccz L_c_vok" % s_tag)
    A("L_c_vr2:")
    A(ldv(38))
    cnt(3)
    A("s_sub_u32 s%d, s%d, 1\ns_cbranch_scc1 L_c_fail\ns_waitcnt vmcnt(0)\nv_cmp_ne_u32 vcc, s%d, v39\ns_cbranch_vccnz L_c_vr2\ns_branch L_c_vok" % (s_spin, s_spin, s_tag))
    A("L_c_nanq:")
    if stamps: A("s_add_u32 s97, s97, 0x10000")
    A("v_mov_b32 v34, -1")
    for f in range(16):
        A("ds_read_b128 v[20:23], v%d offset:%d\ns_waitcnt lgkmcnt(0)" % (v_l16, L_PL + f * 1024))
        for k in range(4): A("v_xor_b32 v%d, s%d, v%d" % (20 + k, s_sent, 20 + k))
        A("v_min3_u32 v34, v20, v21, v34\nv_min3_u32 v34, v22, v23, v34")
    A("v_cmp_eq_u32 vcc, 0, v34\ns_cbranch_vccz L_c_qok")
    A("s_sub_u32 s%d, s%d, 1\ns_cbranch_scc1 L_c_fail" % (s_spin, s_spin))
    for k in range(6): A(z(v_aq + 2 * k))
    fetch_pre()
    A("s_barrier")
    fetch()
    A("s_mov_b32 m0, s%d\ns_waitcnt vmcnt(0)\ns_branch L_c_b1" % m_kv)
    A("L_c_last:")
    A(km_store)
    A("s_waitcnt vmcnt(0)\ns_barrier\ns_cmp_lg_u32 s%d, 0\ns_cbranch_scc1 L_c_done" % s_w)
    signal("64")
    if wb: A("s_cmp_lg_u32 s%d, 0\ns_cbranch_scc1 L_c_done\nbuffer_wbl2 sc1" % s_i)
    A("s_branch L_c_done")
    A("L_c_fail:\ns_mov_b64 exec, -1")
    A("v_mov_b32 v40, 1\nv_mov_b32 v41, 96\nbuffer_atomic_add v40, v41, s[16:19], 0 offen")
    A("L_c_done:")
    dstamp(11)
    A("s_waitcnt vmcnt(0)")
    if stamps:
        A("s_memtime s[60:61]\ns_memrealtime s[62:63]\ns_waitcnt lgkmcnt(0)\ns_sub_u32 s60, s60, s56\ns_sub_u32 s61, s62, s58")
        A("s_sub_u32 s62, s56, s94")
        A("s_lshl_b32 s%d, s%d, 5\ns_add_u32 s%d, s%d, s%d\ns_lshl_b32 s%d, s%d, 2\ns_add_u32 s%d, s%d, s%d\ns_lshl_b32 s%d, s%d, 7\ns_add_u32 s%d, s%d, %d" % (
            s_t0, s_x, s_t0, s_t0, s_i, s_t0, s_t0, s_t0, s_t0, s_w, s_t0, s_t0, s_t0, s_t0, FLAGS + MB))
        for k, sr in enumerate([60, 61, 62] + list(range(80, 90)) + [96, 97, 98, 99]): A("v_mov_b32 v%d, s%d" % (40 + k, sr))
        if stamps == 3:
            A("s_cmp_lg_u32 s%d, %d\ns_cbranch_scc1 L_c_notr" % (s_w, tw))
            A("s_lshl_b32 s%d, s%d, 5\ns_add_u32 s%d, s%d, s%d\ns_lshl_b32 s%d, s%d, 12\ns_add_u32 s%d, s%d, %d" % (s_t1, s_x, s_t1, s_t1, s_i, s_t1, s_t1, s_t1, s_t1, FLAGS + 2 * MB))
            A("v_add_u32 v64, %d, v%d" % (L_TR, v_l16))
            for k in range(4):
                A("ds_read_b128 v[68:71], v64 offset:%d\ns_waitcnt lgkmcnt(0)\nbuffer_store_dwordx4 v[68:71], v%d, %s, s%d offen offset:%d\ns_waitcnt vmcnt(0)" % (k * 1024, v_l16, WS, s_t1, k * 1024))
            A("L_c_notr:")
            A("v_mov_b32 v43, s56\nv_mov_b32 v44, s58")
        A("v_mov_b32 v60, 0\ns_mov_b64 exec, 1")
        for k in range(5): A("buffer_store_dwordx4 %s, v60, %s, s%d offen offset:%d" % (r4(40 + 4 * k), WS, s_t0, 16 * k))
        A("s_waitcnt vmcnt(0)")

def emit_role_prologue(a, nwg=256, early=None):
    a("""
    s_cmp_ge_u32 s2, {n}
    s_cbranch_scc1 L_end
    s_load_dwordx4 s[4:7], s[0:1], 96
    s_memtime s[94:95]
    s_getreg_b32 s{xcc}, hwreg(HW_REG_XCC_ID)
    s_and_b32 s{xcc}, s{xcc}, 15
    v_and_b32 v1, 63, v0
    v_lshrrev_b32 v2, 6, v0
    s_waitcnt lgkmcnt(0)
    """.format(n=nwg, xcc=s_xcc))
    srd(a, S_WS, 6, 7, WS_BYTES)
    srd(a, S_DBG, 4, 5, 256)
    if early: early()
    a("""
    v_readfirstlane_b32 s{w}, v2
    v_mov_b32 v3, 1
    s_lshl_b32 s{i}, s{xcc}, 2
    v_mov_b32 v4, s{i}
    v_mov_b32 v5, {misc}
    v_cmp_eq_u32 vcc, 0, v0
    s_and_saveexec_b64 s[48:49], vcc
    s_cbranch_execz L_skipt
    buffer_atomic_add v3, v4, s[16:19], 0 offen sc0
    s_waitcnt vmcnt(0)
    ds_write_b32 v5, v3
    s_waitcnt lgkmcnt(0)
    L_skipt:
    s_mov_b64 exec, s[48:49]
    s_barrier
    ds_read_b32 v3, v5
    s_waitcnt lgkmcnt(0)
    v_readfirstlane_b32 s{i}, v3
    s_barrier
    """.format(w=s_w, i=s_i, xcc=s_xcc, misc=L_MISC))
```

```python
import sys
from asmlib import *
from layout import *
from tasks import *
import chain2 as CH
import sched as SC_
from sched import *
from serv import *
NAME = "sequential_preLN__memory_aug_recurrent_mem_tr__swiglu_ffn__prompt_kernel"
SPINW = 200000
def gen(tau=2.6, t0=22.0, ckw={}, trace=0, skw={}, dsp=2, wnt=' nt', lead=1, cpf=0, RL=4, RF=8, warm=0, krot=0, osc='', d0=8, ahead2=0, r3=5, diag=0, dlyc=0, dlya=0, dlys=0):
    DLY[0] = dlys
    T = build(tau, t0, krot=krot, **skw); lists = simulate(T, tau, t0, r3=r3)
    a = Asm()
    a("; @launch grid=(256,1,1) block=(256,1,1) lds=%d" % CH.LDS_BYTES)
    a('.amdgcn_target "amdgcn-amd-amdhsa--gfx950"')
    kernel_begin(a, NAME)
    a("s_cmp_ge_u32 s2, 256\ns_cbranch_scc1 L_end\ns_load_dwordx4 s[4:7], s[0:1], 96\ns_memtime s[94:95]")
    if trace: a("s_memrealtime s[98:99]")
    a("s_getreg_b32 s20, hwreg(HW_REG_XCC_ID)\ns_and_b32 s20, s20, 15\nv_and_b32 v1, 63, v0\nv_lshrrev_b32 v3, 6, v0")
    load_ptrs(a)
    a("v_readfirstlane_b32 s21, v3\ns_mov_b32 s62, %d" % SPINW)
    set_srd(a, 8, 6, WS_BYTES); set_srd(a, 16, 4, 256)
    def dstamp(word, op="umax"):
        if diag == 2: word = {11: None, 13: None, 21: 11, 23: 13}.get(word, word)
        if word is None or word > 15: return
        L = a.label("L_ds")
        if diag: a("s_cmp_lg_u32 s21, 0\ns_cbranch_scc1 %s" % L)
        if diag: a("s_memrealtime s[92:93]\ns_waitcnt lgkmcnt(0)\n" + ("s_not_b32 s92, s92\n" if op == "min" else "") + "v_mov_b32 v122, s92\nv_mov_b32 v123, %d\ns_mov_b64 s[92:93], exec\ns_mov_b64 exec, 1\nbuffer_atomic_umax v122, v123, s[16:19], 0 offen\ns_mov_b64 exec, s[92:93]\n%s:" % (4 * word, L))
    CH.dstamp = dstamp
    if diag:
        a("s_cmp_ge_u32 s2, 8\ns_cbranch_scc1 L_nd0"); dstamp(8, "min"); a("L_nd0:")
    def ticket(): a("v_mov_b32 v3, 1\ns_lshl_b32 s22, s20, 2\nv_mov_b32 v4, s22\nbuffer_atomic_add v3, v4, s[16:19], 0 offen sc0")
    a("s_mov_b32 s52, -1\ns_and_b32 s4, s2, 7\ns_cmp_lt_u32 s4, 2\ns_cbranch_scc1 L_e_tk\ns_lshr_b32 s52, s2, 3\ns_mul_i32 s52, s52, 6\ns_add_u32 s52, s52, s4\ns_sub_u32 s52, s52, 2")
    a("s_cmp_ge_u32 s52, 128\ns_cbranch_scc1 L_e_nl")
    task_ln1(a, 52)
    if diag:
        a("s_cmp_ge_u32 s52, 16\ns_cbranch_scc1 L_nd1\ns_waitcnt vmcnt(0)"); dstamp(21); a("L_nd1:")
    a("""
    s_cmp_lg_u32 s21, 0
    s_cbranch_scc1 L_e_l1
    v_mov_b32 v4, 128
    L_e_l0:
    buffer_load_dword v5, v4, s[16:19], 0 offen sc1
    s_sub_u32 s62, s62, 1
    s_cbranch_scc1 L_e_l1
    s_waitcnt vmcnt(0)
    v_cmp_gt_u32 vcc, 4, v5
    s_cbranch_vccnz L_e_l0
    L_e_l1:
    s_waitcnt vmcnt(0)
    s_barrier
    s_cmp_lg_u32 s21, 0
    s_cbranch_scc1 L_e_bc
    s_mov_b64 exec, 1
    s_lshr_b32 s5, s52, 4
    s_lshl_b32 s5, s5, 7
    s_add_u32 s5, s5, %d
    v_mov_b32 v6, 0
    v_mov_b32 v5, 1
    buffer_atomic_add v5, v6, s[8:11], s5 offen sc0
    """ % (FLAGS + 128 * C_LN1))
    ticket()
    a("s_waitcnt vmcnt(1)\nv_cmp_eq_u32 vcc, 15, v5\ns_cbranch_vccz L_e_l2\nv_mov_b32 v5, 16\ns_add_u32 s5, s5, %d\nbuffer_store_dword v5, v6, s[8:11], s5 offen sc1\ns_waitcnt vmcnt(1)\ns_branch L_e_put" % (128 * C_LNF))
    a("L_e_l2:\ns_waitcnt vmcnt(0)\ns_branch L_e_put")
    a("L_e_nl:\ns_cmp_ge_u32 s52, 132\ns_cbranch_scc1 L_e_tk\ns_sub_u32 s30, s52, 128")
    a("v_lshlrev_b32 v3, 4, v0\nv_mov_b32 v4, 0\nv_mov_b32 v5, 0\nv_mov_b32 v6, 0\nv_mov_b32 v7, 0\ns_mul_i32 s30, s30, %d\ns_add_u32 s30, s30, %d" % (ZERO_BYTES // 4, FLAGS))
    for k in range(ZERO_BYTES // 16384):
        a("buffer_store_dwordx4 v[4:7], v3, s[8:11], s30 offen sc1\ns_add_u32 s30, s30, 4096")
    a("s_waitcnt vmcnt(0)\ns_barrier\nv_mov_b32 v4, 1\nv_lshlrev_b32 v5, 6, v0\nv_add_u32 v5, 64, v5")
    a("v_cmp_gt_u32 vcc, 2, v0\ns_and_saveexec_b64 s[48:49], vcc\ns_cbranch_execz L_ini2\nbuffer_atomic_add v4, v5, s[16:19], 0 offen\nL_ini2:\ns_mov_b64 exec, s[48:49]")
    a("L_e_tk:")
    if lead == 2:
        a("s_sub_u32 s4, s52, 164\ns_cmp_ge_u32 s4, 28\ns_cbranch_scc1 L_e_l2x\ns_lshl_b32 s4, s4, 15\nv_lshlrev_b32 v4, 7, v0")
        set_srd(a, 12, P_WQ, 8 * MB)
        for k in range(10): a("s_add_u32 s5, s4, %d\nbuffer_load_dwordx2 v[124:125], v4, s[12:15], s5 offen offset:60" % (k * 28 * 32768))
        a("s_waitcnt vmcnt(0)\ns_barrier\nL_e_l2x:")
    if lead in (1, 2):
        a("s_sub_u32 s4, s52, 132\ns_cmp_ge_u32 s4, 32\ns_cbranch_scc1 L_e_nt")
        a("s_lshl_b32 s4, s4, 18\nv_lshlrev_b32 v4, 10, v0\nv_or_b32 v5, 0x1f80, v4")
        for p in (P_WO, P_WQ, P_WK, P_WV):
            set_srd(a, 12, p, 8 * MB)
            a("buffer_load_dwordx2 v[124:125], v4, s[12:15], s4 offen offset:%d\nbuffer_load_dwordx2 v[124:125], v5, s[12:15], s4 offen offset:60" % (3 * 128 + 60))
    elif lead == 0: a("s_branch L_e_nt")
    else:
        a("s_sub_u32 s4, s52, 132\ns_cmp_ge_u32 s4, 56\ns_cbranch_scc1 L_e_nt\ns_lshl_b32 s4, s4, 15\nv_lshlrev_b32 v4, 7, v0")
        for p in lead:
            set_srd(a, 12, p, 8 * MB)
            for k in range(5): a("s_add_u32 s5, s4, %d\nbuffer_load_dwordx2 v[124:125], v4, s[12:15], s5 offen offset:60" % (k * 56 * 32768))
    a("s_waitcnt vmcnt(0)\ns_barrier")
    a("L_e_nt:\ns_cmp_lg_u32 s21, 0\ns_cbranch_scc1 L_e_t1\ns_mov_b64 exec, 1")
    ticket()
    a("s_mov_b64 exec, -1\nL_e_t1:\ns_barrier")
    nside = 8
    a("s_cmp_ge_u32 s20, 2\ns_cbranch_scc1 L_e_w0")
    set_srd(a, 12, P_WO, 8 * MB)
    a("s_lshr_b32 s4, s2, 3\ns_and_b32 s5, s4, 1\ns_lshl_b32 s5, s5, 10\ns_lshr_b32 s4, s4, 1\ns_lshl_b32 s6, s20, 4\ns_add_u32 s4, s4, s6\ns_lshl_b32 s4, s4, 18\ns_add_u32 s4, s4, s5")
    a("s_lshr_b32 s5, s21, 1\ns_lshl_b32 s5, s5, 17\ns_add_u32 s4, s4, s5\ns_and_b32 s5, s21, 1\ns_lshl_b32 s5, s5, 14\ns_add_u32 s4, s4, s5")
    for k in range(8):
        a("buffer_load_dwordx4 v[124:127], v2, s[12:15], s4 offen" + ("\ns_add_u32 s4, s4, 2048" if k < 7 else ""))
    a("L_e_w8:\ns_waitcnt vmcnt(8)\ns_branch L_e_w\nL_e_w0:\ns_waitcnt vmcnt(0)\nL_e_w:\ns_cmp_lg_u32 s21, 0\ns_cbranch_scc1 L_e_bc\ns_mov_b64 exec, 1")
    a("""
    L_e_put:
    v_mov_b32 v5, %d
    ds_write_b32 v5, v3
    s_waitcnt lgkmcnt(0)
    s_mov_b64 exec, -1
    L_e_bc:
    s_barrier
    v_mov_b32 v5, %d
    ds_read_b32 v3, v5
    s_waitcnt lgkmcnt(0)
    v_readfirstlane_b32 s22, v3
    s_barrier
    """ % (CH.L_MISC, CH.L_MISC))
    a("s_cmp_ge_u32 s%d, 32\ns_cbranch_scc1 L_end\ns_cmp_ge_u32 s%d, 8\ns_cbranch_scc1 L_end" % (CH.s_i, CH.s_xcc))
    a("s_cmp_ge_u32 s%d, 2\ns_cbranch_scc1 L_worker\ns_mov_b32 s%d, s%d" % (CH.s_xcc, CH.s_x, CH.s_xcc))
    CH.emit_chain(a, **ckw)
    a("s_endpgm")
    a("L_worker:")
    a("s_getpc_b64 s[56:57]\ns_add_u32 s56, s56, task_table@rel32@lo+4\ns_addc_u32 s57, s57, task_table@rel32@hi+12")
    a("s_sub_u32 s20, s20, 2\ns_lshl_b32 s4, s20, 3\ns_load_dwordx2 s[58:59], s[56:57], s4")
    a("s_lshl_b32 s60, s20, 7\ns_add_u32 s60, s60, %d" % (FLAGS + 128 * C_Q))
    a("s_mov_b32 s61, s22\ns_mov_b32 s62, %d\ns_mov_b32 s63, -1" % SPINW)
    a("s_cmp_ge_u32 s20, 2\ns_cbranch_scc1 L_w_nov\ns_cmp_ge_u32 s22, 4\ns_cbranch_scc1 L_w_nov\ns_cmp_lg_u32 s21, 0\ns_cbranch_scc1 L_w_nov")
    a("s_lshl_b32 s4, s20, 5\ns_add_u32 s4, s4, s22\ns_lshl_b32 s4, s4, 14\ns_add_u32 s4, s4, %d\ns_mov_b32 s30, -1\ns_mov_b32 s31, -1\nv_lshlrev_b32 v4, 2, v1\ns_waitcnt vmcnt(0)" % (PRB + MB))
    for it in range(3):
        for hf in ((0, 1) if it % 2 == 0 else (1, 0)):
            a("s_add_u32 s5, s4, %d\ns_memtime s[32:33]\ns_waitcnt lgkmcnt(0)\nbuffer_store_dword v4, v4, s[8:11], s5 offen sc1\ns_waitcnt vmcnt(0)\ns_memtime s[34:35]\ns_waitcnt lgkmcnt(0)" % (hf * 8192 + it * 1024))
            a("s_sub_u32 s34, s34, s32\ns_min_u32 s%d, s%d, s34" % (30 + hf, 30 + hf))
    a("s_cmp_lt_u32 s31, s30\ns_cselect_b32 s4, 0x10001, 1\nv_mov_b32 v5, s4\nv_mov_b32 v4, 192\ns_mov_b64 exec, 1\nbuffer_atomic_add v5, v4, s[16:19], 0 offen\ns_mov_b64 exec, -1\nL_w_nov:")
    def init_wait(tag):
        a("""
        s_cmp_ge_u32 s61, 32
        s_cbranch_scc1 L_%s_d
        v_mov_b32 v4, 128
        L_%s:
        buffer_load_dword v5, v4, s[16:19], 0 offen sc1
        s_sub_u32 s62, s62, 1
        s_cbranch_scc1 L_w_fail
        s_waitcnt vmcnt(0)
        v_cmp_gt_u32 vcc, 4, v5
        s_cbranch_vccnz L_%s
        L_%s_d:
        """ % (tag, tag, tag, tag))
    a("""
    L_w_task:
    s_waitcnt lgkmcnt(0)
    s_cmp_ge_u32 s61, s59
    s_cbranch_scc1 L_fin
    s_lshl_b32 s4, s61, 5
    s_add_u32 s4, s4, s58
    s_load_dwordx8 s[48:55], s[56:57], s4
    """)
    if trace: a("s_memrealtime s[88:89]")
    a("s_waitcnt lgkmcnt(0)")
    if cpf:
        a("s_cmp_ge_u32 s61, 32\ns_cbranch_scc1 L_w_npf\ns_cmp_eq_u32 s48, %d\ns_cbranch_scc1 L_w_npf" % T_LN1)
        a("s_cmp_eq_u32 s48, %d\ns_cselect_b32 s12, s%d, s%d\ns_cselect_b32 s13, s%d, s%d\ns_mov_b32 s14, 0x800000\ns_mov_b32 s15, 0x00020000" % (T_KB, P_WK, P_WV, P_WK + 1, P_WV + 1))
        a("v_lshrrev_b32 v4, 4, v0\nv_lshlrev_b32 v4, 13, v4\nv_and_b32 v5, 15, v0\nv_lshl_add_u32 v4, v5, 4, v4\ns_mov_b32 s4, s53\ns_mov_b32 s5, %d\nL_w_pf:" % cpf)
        a("buffer_load_dwordx4 v[8:11], v4, s[12:15], s4 offen\ns_add_u32 s4, s4, 131072\ns_waitcnt vmcnt(40)\ns_sub_u32 s5, s5, 1\ns_cmp_lg_u32 s5, 0\ns_cbranch_scc1 L_w_pf\ns_waitcnt vmcnt(0)\nL_w_npf:")
    a("""
    s_cmp_lg_u32 s21, 0
    s_cbranch_scc1 L_w_go
    s_cmp_eq_u32 s50, 0
    s_cbranch_scc1 L_w_go
    """)
    init_wait("wi1")
    a("""
    v_mov_b32 v4, 0
    L_w_poll:
    buffer_load_dword v5, v4, s[8:11], s49 offen sc1
    s_sub_u32 s62, s62, 1
    s_cbranch_scc1 L_w_fail
    s_waitcnt vmcnt(0)
    v_cmp_le_u32 vcc, s50, v5
    s_cbranch_vccnz L_w_go
    s_sleep 1
    s_branch L_w_poll
    L_w_go:
    s_barrier
    """)
    if trace: a("s_memrealtime s[90:91]")
    a("s_mov_b32 s%d, s52\ns_mov_b32 s%d, s53\ns_mov_b32 s%d, s54" % (s_xoff, s_woff, s_obase))
    for t in range(13): a("s_cmp_eq_u32 s48, %d\ns_cbranch_scc1 L_t%d" % (t, t))
    a("s_branch L_end")
    def get_near(tag):
        a("""
        s_cmp_lg_u32 s63, -1
        s_cbranch_scc1 L_%s_c
        v_mov_b32 v4, 192
        L_%s_p:
        buffer_load_dword v5, v4, s[16:19], 0 offen sc1
        s_sub_u32 s62, s62, 1
        s_cbranch_scc1 L_w_fail
        s_waitcnt vmcnt(0)
        v_readfirstlane_b32 s4, v5
        s_and_b32 s5, s4, 0xffff
        s_cmp_lt_u32 s5, 8
        s_cbranch_scc1 L_%s_p
        s_lshr_b32 s4, s4, 16
        s_cmp_ge_u32 s4, 4
        s_cselect_b32 s63, 8192, 0
        L_%s_c:
        """ % (tag, tag, tag, tag))
    def near_fix(tag, bywave):
        a("s_cmp_eq_u32 s%d, 0\ns_cbranch_scc1 L_%s_n" % (s_epi, tag))
        get_near(tag)
        a("s_lshl_b32 s4, s%d, %d\ns_xor_b32 s4, s4, s%d\ns_and_b32 s4, s4, 8192\ns_add_u32 s%d, s%d, s4\nL_%s_n:" % (s_w if bywave else 55, 12 if bywave else 13, s_near, s_obase, s_obase, tag))
    def wpf(tag):
        a("s_lshr_b32 s4, s55, 28\ns_cmp_eq_u32 s4, 0\ns_cbranch_scc1 L_%s_pf" % tag)
        a("s_and_b32 s5, s55, 0xfffffff\ns_and_b32 s6, s21, 1\ns_lshl_b32 s6, s6, 15\ns_add_u32 s5, s5, s6")
        set_w(a, P_WG, P_WU, 7 * MB)
        a("s_cmp_eq_u32 s4, 1\ns_cbranch_scc1 L_%s_p1" % tag)
        set_w(a, P_WD, P_WD, 7 * MB)
        a("s_lshr_b32 s6, s21, 1\ns_lshl_b32 s6, s6, 16\ns_add_u32 s5, s5, s6\nL_%s_p1:\nv_lshlrev_b32 v4, 7, v1" % tag)
        for k in range(4): a("buffer_load_dword v5, v4, s[12:15], s5 offen\nbuffer_load_dword v5, v4, s[12:15], s5 offen offset:64\ns_add_u32 s5, s5, 8192")
        a("L_%s_pf:" % tag)
    gA = Gemm("ga", 8, 8, 4); gAs = Gemm("gas", 8, 8, 4, swap=True); gB = Gemm("gb", 4, 4, 8); gBs = Gemm("gbs", 4, 4, 8, swap=True)
    def stub(t, g, pa, pb, wbytes, xrs, ldw, ngrp, ors, ohalf, epi, half=True, near=False):
        a("L_t%d:" % t)
        set_w(a, pa, pb, wbytes)
        a("s_mov_b32 s%d, %d\ns_mov_b32 s%d, %d\ns_mov_b32 s%d, %d\ns_mov_b32 s%d, %d\ns_mov_b32 s%d, %d\ns_mov_b32 s%d, %d" % (
            s_xrs, xrs, s_ldw, ldw, s_ngrp, ngrp, s_ors, ors, s_ohalf, ohalf, s_epi, epi))
        if half: a("s_lshr_b32 s%d, s%d, 1\ns_mul_i32 s%d, s%d, %d\ns_add_u32 s%d, s%d, s%d" % (t0_, s_w, t0_, t0_, g.BN, s_woff, s_woff, t0_))
        a("s_branch L_%s" % g.name)
    t0_ = 4
    def adly(tag):
        if dlya: a("s_cmp_ge_u32 s61, 32\ns_cbranch_scc1 L_dl%s\n" % tag + "s_sleep 100\n" * dlya + "L_dl%s:" % tag)
    stub(T_QA, gA, P_WQ, P_WQ, 8 * MB, 32768, 8192, 8, 131072, 4096, 0)
    stub(T_KA, gA, P_WK, P_WK, 8 * MB, 32768, 8192, 8, 262144, 4096, 1)
    stub(T_VA, gAs, P_WV, P_WV, 8 * MB, 32768, 8192, 8, 524288, 16384, 1)
    stub(T_KB, gB, P_WK, P_WK, 8 * MB, 32768, 8192, 4, 262144, 2048, 1)
    stub(T_VB, gBs, P_WV, P_WV, 8 * MB, 32768, 8192, 4, 524288, 4096, 1)
    class N:
        def __init__(q, n): q.name = n; q.BN = 128
    stub(T_SO, N("so"), P_WO, P_WO, 8 * MB, 131072, 2048, 0, 32768, 0, 0)
    stub(T_SGU, N("sgu"), P_WG, P_WU, 1024 * 7168, 32768, 7168, 0, 114688, 0, 0, half=False)
    stub(T_SD, N("sd"), P_WD, P_WD, 3584 * 2048, 114688, 2048, 0, 32768, 0, 0)
    a("L_ga:"); adly("a"); gA.body(a); near_fix("na", 1); wpf("na"); gA.epi_t16(a); a("s_branch L_w_done")
    a("L_gas:"); adly("as"); gAs.body(a); near_fix("nas", 1); wpf("nas"); gAs.epi_vt(a); a("s_branch L_w_done")
    a("L_gbs:"); dstamp(23); gBs.body(a, krot); dstamp(15); a("s_sleep 100\n" * dlyc); near_fix("nbs", 0); gBs.epi_vt(a); a("s_branch L_w_done")
    a("L_gb:"); gB.body(a, krot); near_fix("nb", 0); gB.epi_t16(a); a("s_branch L_w_done")
    a("L_t%d:" % T_PF)
    a("s_cmp_eq_u32 s52, 0\ns_cselect_b32 s12, s%d, s%d\ns_cselect_b32 s13, s%d, s%d\ns_mov_b32 s14, 0x800000\ns_mov_b32 s15, 0x00020000" % (P_WO, P_WQ, P_WO + 1, P_WQ + 1))
    a("s_lshl_b32 s4, s21, 14\ns_add_u32 s53, s53, s4\nL_pf:\ns_mov_b32 s4, s53")
    for k in range(16):
        a("buffer_load_dwordx4 v[8:11], v2, s[12:15], s4 offen offset:%d" % ((k % 4) * 1024))
        if k % 4 == 3: a("s_add_u32 s4, s4, 4096")
    a("s_waitcnt vmcnt(32)\ns_add_u32 s53, s53, 65536\ns_sub_u32 s54, s54, 1\ns_cmp_lg_u32 s54, 0\ns_cbranch_scc1 L_pf\ns_branch L_w_done")
    a("L_t%d:\ns_branch L_w_done" % T_LN1)
    WS_("so", 32, False, False).emit(a, trace, dsp, wnt, warm, d0, ahead2); WS_("sgu", 32, False, True).emit(a, trace, dsp, wnt, warm, d0, ahead2); WS_("sd", 28, True, False).emit(a, trace, dsp, wnt, warm, d0, ahead2)
    a("L_t%d:" % T_SLN); get_near("nl"); serv_rows(a, "sln", False, PART_O, PSLAB, RL, trace)
    a("L_t%d:" % T_SFIN); serv_rows(a, "sfin", True, PART_D, PSLAB, RF, trace, osc)
    a("L_t%d:" % T_SATT); get_near("nt"); serv_att(a, C_HP, trace)
    a("L_w_done:")
    a("s_waitcnt vmcnt(0)\ns_barrier")
    a("v_mov_b32 v7, %d" % CH.L_MISC)
    a("s_cmp_lg_u32 s21, 0\ns_cbranch_scc1 L_w_nx")
    a("""
    s_mov_b64 exec, 1
    s_lshr_b32 s4, s51, 16
    s_and_b32 s5, s51, 0xffff
    s_add_u32 s5, s5, %d
    v_mov_b32 v4, 0
    v_mov_b32 v5, s4
    v_mov_b32 v6, 1
    buffer_atomic_add v5, v4, s[8:11], s5 offen
    buffer_atomic_add v6, v4, s[8:11], s60 offen sc0
    """ % FLAGS)
    if trace:
        a("s_memrealtime s[92:93]\ns_lshl_b32 s4, s61, 5\ns_add_u32 s4, s4, s58\ns_add_u32 s4, s4, %d\ns_waitcnt lgkmcnt(0)" % (FLAGS + 4 * MB))
        a("v_mov_b32 v8, s88\nv_mov_b32 v9, s90\nv_mov_b32 v10, s92\nv_mov_b32 v11, s22\nbuffer_store_dwordx4 v[8:11], v4, s[8:11], s4 offen\nv_mov_b32 v12, s98\nbuffer_store_dword v12, v4, s[8:11], s4 offen offset:16")
    a("s_waitcnt vmcnt(0)")
    a("""
    ds_write_b32 v7, v6
    s_waitcnt lgkmcnt(0)
    s_mov_b64 exec, -1
    L_w_nx:
    s_barrier
    ds_read_b32 v6, v7
    s_waitcnt lgkmcnt(0)
    v_readfirstlane_b32 s61, v6
    s_add_u32 s61, s61, 32
    s_branch L_w_task
    L_w_fail:
    s_mov_b64 exec, -1
    v_mov_b32 v7, %d
    v_mov_b32 v6, 0x7fffff00
    ds_write_b32 v7, v6
    v_mov_b32 v4, 96
    v_mov_b32 v5, 1
    buffer_atomic_add v5, v4, s[16:19], 0 offen
    s_waitcnt vmcnt(0) lgkmcnt(0)
    L_end:
    s_endpgm
    """ % CH.L_MISC)
    a("L_fin:"); dstamp(13); a("s_endpgm")
    kernel_desc(a, NAME, 512, 102, 256)
    a(".p2align 6\ntask_table:")
    off = 64
    hdr = []
    for l in lists: hdr += [off, len(l)]; off += 32 * len(l)
    a(".long " + ", ".join(map(str, hdr + [0] * (16 - len(hdr)))))
    for l in lists:
        for i in l:
            t = T[i]
            a(".long %d,%d,%d,%d,%d,%d,%d,%d" % (t.typ, t.share if hasattr(t, 'share') else FLAGS + 128 * (t.wait + (C_LNF if t.wait < 8 else 0)), t.target, 128 * t.sig | (t.inc << 16), *t.p))
    gen.T, gen.lists = T, lists
    return a.text()
if __name__ == "__main__":
    HDR = open("sequential_preLN__memory_aug_recurrent_mem_tr__swiglu_ffn__prompt.s.ref").read().split("; Override launch")[0]
    BEST = dict(tau=2.25, t0=20, ckw=dict(stamps=0))
    open(sys.argv[1], "w").write(HDR + gen(**BEST))
```

```python
import sys
sys.path.insert(0,"gen")
import mega_gen
HDR = open("sequential_preLN__memory_aug_recurrent_mem_tr__swiglu_ffn__prompt.s.ref").read().split("; Override launch")[0]
for k, kw in enumerate(eval(sys.argv[1])):
    c = dict(stamps=0); c.update(kw.pop("ckw", {})); b = dict(tau=2.25, t0=20); b.update(kw)
    open("t%d.s" % k, "w").write(HDR + mega_gen.gen(ckw=c, **b))
```
